```python
import torch

def _softmax(x, axis=-1):
    return torch.softmax(x, dim=axis)
def _gelu(x):
    return torch.nn.functional.gelu(x, approximate="tanh")
def _silu(x):
    return torch.nn.functional.silu(x)
def _sigmoid(x):
    return torch.sigmoid(x)
def _layernorm(x, axis=-1, eps=1e-5):
    m = x.mean(dim=axis, keepdim=True)
    v = x.var(dim=axis, keepdim=True, unbiased=False)
    return (x - m) / torch.sqrt(v + eps)
def _scatter_add(tgt, idx, src, axis=0):
    return tgt.clone().index_add_(axis, idx, src)
def _segment_sum(src, seg, n):
    out = torch.zeros((n,) + src.shape[1:], dtype=src.dtype)
    return out.index_add_(0, seg, src)
def _pad(x, pw):
    flat = tuple(v for pair in reversed(pw) for v in pair)
    return torch.nn.functional.pad(x, flat)

kernel_name = 'sequential_preLN__spectral_gfnet__mixer_token_mlp__prompt'

def setup_inputs():

    _w = (lambda a: (lambda t: t.to(torch.bfloat16) if t.is_floating_point() else t)(torch.as_tensor(a)))
    def _A_setup():
        B, S, D = 1, 2048, 512
        Df = D // 2 + 1
        return {
            "x": _w((lambda *s: torch.randn(*s, dtype=torch.bfloat16) * 0.05)(B, S, D)),
            "w_r": _w((lambda *s: torch.randn(*s, dtype=torch.bfloat16) * 0.2)(S, Df) * 0.02),
            "w_i": _w((lambda *s: torch.randn(*s, dtype=torch.bfloat16) * 0.2)(S, Df) * 0.02),
        }
    _A_in = _A_setup()

    def _B_setup():
        B, S, D, F = 1, 2048, 512, 1376
        return {
            "x": _w((lambda *s: torch.randn(*s, dtype=torch.bfloat16) * 0.05)(B, S, D)),
            "w1": _w((lambda *s: torch.randn(*s, dtype=torch.bfloat16) * 0.4)(S, F) * (S ** -0.5)),
            "b1": _w((lambda *s: torch.randn(*s, dtype=torch.bfloat16) * 3.2)(F) * 0.02),
            "w2": _w((lambda *s: torch.randn(*s, dtype=torch.bfloat16) * 0.2)(F, S) * (F ** -0.5)),
            "b2": _w((lambda *s: torch.randn(*s, dtype=torch.bfloat16) * 0.4)(S) * 0.02),
        }
    _B_in = _B_setup()

    return {
        "A_x": _A_in["x"],
        "A_w_r": _A_in["w_r"],
        "A_w_i": _A_in["w_i"],
        "B_x": _B_in["x"],
        "B_w1": _B_in["w1"],
        "B_b1": _B_in["b1"],
        "B_w2": _B_in["w2"],
        "B_b2": _B_in["b2"],
    }

def reference(A_x, A_w_r, A_w_i, B_x, B_w1, B_b1, B_w2, B_b2):
    def _A_ref(x, w_r, w_i):
        B, S, D = x.shape
        X = (lambda x, axes=(-2,-1): torch.fft.rfft2(x.float(), dim=axes))(x, axes=(-2, -1))
        W = w_r + 1j * w_i
        X = X * W
        y = (lambda x, s, axes=(-2,-1): torch.fft.irfft2(x, s=s, dim=axes).to(torch.bfloat16))(X, (S, D), axes=(-2, -1))
        return y

    def _B_ref(x, w1, b1, w2, b2):
        B, S, D = x.shape
        h = _layernorm(x, axis=-1)
        u = torch.einsum("bsd,sf->bdf", h, w1) + b1
        u = _gelu(u)
        y = torch.einsum("bdf,fs->bds", u, w2) + b2
        return (lambda x, *d: x.permute(*d))(y, 0, 2, 1)

    x = A_x
    h = x + _A_ref(_layernorm(x, axis=-1), A_w_r, A_w_i)
    h2 = h + _B_ref(_layernorm(h, axis=-1), B_w1, B_b1, B_w2, B_b2)
    return h2
```

```python
import re

REG_RE = re.compile(r'(?<![\w.])([vsa])(?:(\d+)|\[(\d+):(\d+)\])(?![\w])')
TRANS = ('v_exp_f32', 'v_log_f32', 'v_rcp_f32', 'v_rsq_f32', 'v_sqrt_f32', 'v_sin_f32', 'v_cos_f32')


def regs_of(tok):
    out = set()
    for m in REG_RE.finditer(tok):
        k = m.group(1)
        if m.group(2) is not None:
            out.add((k, int(m.group(2))))
        else:
            for i in range(int(m.group(3)), int(m.group(4)) + 1):
                out.add((k, i))
    t = tok.strip()
    if re.search(r'\bvcc\b', t):
        out.add(('s', 'vcc'))
    if re.search(r'\bexec\b', t):
        out.add(('s', 'exec'))
    if re.search(r'\bm0\b', t):
        out.add(('s', 'm0'))
    return out


def split_ops(s):
    ops, depth, cur = [], 0, ''
    for ch in s:
        if ch == '[':
            depth += 1
        if ch == ']':
            depth -= 1
        if ch == ',' and depth == 0:
            ops.append(cur.strip())
            cur = ''
        else:
            cur += ch
    if cur.strip():
        ops.append(cur.strip())
    return ops


class Ins:
    __slots__ = ('text', 'op', 'ops', 'dst', 'src', 'kind', 'passes', 'label', 'target', 'dpp', 'srcC', 'srcAB',
                 'wide_store', 'store_data', 'lds_dma', 'comment', 'nstates', 'auto')

    def __init__(self, text, label=None):
        self.text = text
        self.label = label
        self.dst = set()
        self.src = set()
        self.kind = 'other'
        self.passes = 0
        self.target = None
        self.dpp = False
        self.srcC = set()
        self.srcAB = set()
        self.wide_store = False
        self.store_data = set()
        self.lds_dma = False
        self.nstates = 1
        self.auto = False
        if label is not None:
            self.kind = 'label'
            self.op = ''
            self.ops = []
            self.nstates = 0
            return
        body = text.split(';')[0].strip()
        if not body or body.startswith('.'):
            self.kind = 'dir'
            self.op = ''
            self.ops = []
            self.nstates = 0
            return
        parts = body.split(None, 1)
        self.op = op = parts[0]
        rest = parts[1] if len(parts) > 1 else ''
        self.ops = ops = split_ops(rest)
        R = [regs_of(o) for o in ops]
        allsrc = lambda i: set().union(*R[i:]) if len(R) > i else set()
        if op.startswith('v_mfma'):
            self.kind = 'mfma'
            self.dst = R[0]
            self.srcAB = R[1] | R[2]
            self.srcC = R[3]
            self.src = self.srcAB | self.srcC
            if '32x32x16' in op or '32x32x8' in op:
                self.passes = 8
            elif '16x16x32' in op or '16x16x16' in op:
                self.passes = 4
            else:
                raise ValueError('unknown mfma ' + op)
        elif op.startswith('v_'):
            self.kind = 'trans' if op.replace('_e32', '').replace('_e64', '') in TRANS else 'valu'
            if 'permlane' in op and 'swap' in op:
                self.kind = 'permlane'
                self.dst = R[0] | R[1]
                self.src = R[0] | R[1]
            elif op.startswith('v_cmp'):
                self.dst = R[0]
                self.src = allsrc(1)
                if op.startswith('v_cmpx'):
                    self.dst = self.dst | {('s', 'exec')}
            elif op.startswith(('v_add_co', 'v_sub_co', 'v_subrev_co', 'v_addc_co', 'v_subb_co')):
                self.dst = R[0] | R[1]
                self.src = allsrc(2)
            elif op.startswith('v_readlane') or op.startswith('v_readfirstlane'):
                self.kind = 'readlane'
                self.dst = R[0]
                self.src = allsrc(1)
            else:
                self.dst = R[0]
                self.src = allsrc(1)
                if op.startswith(('v_fmac', 'v_mac', 'v_writelane', 'v_pk_fmac', 'v_dot2c')):
                    self.src = self.src | R[0]
                if op.startswith('v_cndmask') and len(ops) == 3:
                    self.src = self.src | {('s', 'vcc')}
            if re.search(r'\b(quad_perm|row_shl|row_shr|row_ror|row_mirror|row_half_mirror|row_bcast|wave_shl|wave_shr|wave_rol|wave_ror|row_newbcast)', rest):
                self.dpp = True
                self.src = self.src | R[0]
            if 'sdwa' in op or 'op_sel' in rest:
                self.kind = 'valu_opsel' if self.kind == 'valu' else self.kind
        elif op.startswith('buffer_') or op.startswith('global_'):
            self.kind = 'vmem'
            is_lds = bool(re.search(r'\blds\b', rest)) or '_lds_' in op
            if op.startswith(('buffer_load', 'global_load')):
                if is_lds:
                    self.lds_dma = True
                    self.src = allsrc(0) | {('s', 'm0')}
                else:
                    self.dst = R[0]
                    self.src = allsrc(1)
                    if 'd16' in op:
                        self.src = self.src | R[0]
            elif op.startswith(('buffer_store', 'global_store')):
                self.src = allsrc(0)
                self.store_data = R[0] if op.startswith('buffer_') else R[1]
                if 'x4' in op or 'x3' in op:
                    self.wide_store = True
            elif 'atomic' in op:
                self.src = allsrc(0)
                if re.search(r'\bsc0\b', rest):
                    self.dst = R[0]
            elif op.startswith(('buffer_inv', 'buffer_wbl2')):
                pass
            else:
                raise ValueError('unknown vmem ' + text)
        elif op.startswith('ds_'):
            self.kind = 'ds'
            if op.startswith(('ds_read', 'ds_bpermute', 'ds_permute', 'ds_swizzle')):
                self.dst = R[0]
                self.src = allsrc(1)
                if 'd16' in op:
                    self.src = self.src | R[0]
            elif op.startswith(('ds_add_rtn', 'ds_inc_rtn')):
                self.dst = R[0]
                self.src = allsrc(1)
            else:
                self.src = allsrc(0)
        elif op.startswith('s_load') or op.startswith('s_memtime') or op.startswith('s_memrealtime') or op.startswith('s_buffer_load'):
            self.kind = 'smem'
            self.dst = R[0]
            self.src = allsrc(1)
        elif op.startswith('s_'):
            self.kind = 'salu'
            if op == 's_nop':
                self.kind = 'nop'
                self.nstates = int(ops[0], 0) + 1
            elif op in ('s_branch',) or op.startswith('s_cbranch'):
                self.kind = 'branch'
                self.target = ops[0]
                if 'vcc' in op:
                    self.src = {('s', 'vcc')}
                if 'exec' in op:
                    self.src = {('s', 'exec')}
            elif op == 's_endpgm':
                self.kind = 'end'
            elif op == 's_waitcnt':
                self.kind = 'waitcnt'
            elif op in ('s_barrier', 's_setprio', 's_sleep', 's_getreg_b32', 's_setreg_b32'):
                if op == 's_getreg_b32':
                    self.dst = R[0]
            elif op.startswith('s_cmp') or op.startswith('s_bitcmp'):
                self.src = allsrc(0)
            elif 'saveexec' in op:
                self.dst = R[0] | {('s', 'exec')}
                self.src = allsrc(1) | {('s', 'exec')}
            else:
                self.dst = R[0]
                self.src = allsrc(1)
                if op.startswith(('s_addk', 's_mulk', 's_cmov')):
                    self.src |= R[0]
        else:
            raise ValueError('unknown op ' + text)

    def is_valu(self):
        return self.kind in ('valu', 'trans', 'permlane', 'readlane', 'valu_opsel')


def isv(r):
    return r[0] in ('v', 'a')


def iss(r):
    return r[0] == 's'


def required(prod, cons):
    need = 0
    pv = prod.is_valu()
    if pv:
        wv = {r for r in prod.dst if isv(r)}
        ws = {r for r in prod.dst if iss(r)}
        if cons.kind == 'mfma' and (wv & cons.src):
            need = max(need, 2)
        if cons.kind == 'mfma' and ('s', 'exec') in ws:
            need = max(need, 4)
        if cons.dpp and (wv & cons.src):
            need = max(need, 2)
        if cons.dpp and ('s', 'exec') in ws:
            need = max(need, 5)
        if cons.kind == 'permlane' and (wv & cons.src):
            need = max(need, 2)
        if cons.kind == 'permlane' and ('s', 'exec') in ws:
            need = max(need, 4)
        if cons.kind == 'readlane' and (wv & cons.src):
            need = max(need, 1)
        if cons.kind == 'readlane' and ('s', 'exec') in ws:
            need = max(need, 4)
        if cons.kind == 'vmem' and (ws & cons.src):
            need = max(need, 5)
        if cons.is_valu() and (ws & cons.src):
            need = max(need, 2)
            if cons.kind == 'readlane' or cons.op.startswith('v_writelane'):
                need = max(need, 4)
        if prod.kind == 'trans' and (cons.is_valu() or cons.kind in ('mfma',)) and cons.kind != 'trans' and (wv & cons.src):
            need = max(need, 1)
        if prod.kind == 'trans' and cons.kind == 'trans' and (wv & cons.src):
            need = max(need, 1)
        if prod.kind == 'valu_opsel' and (cons.is_valu()) and (wv & (cons.src | cons.dst)):
            need = max(need, 1)
        if cons.kind == 'branch' and cons.src and (ws & cons.src):
            need = max(need, 5)
    if prod.kind == 'mfma':
        p = prod.passes
        raw = {2: 5, 4: 8, 8: 12, 16: 20}[p]
        if cons.kind == 'mfma':
            if prod.dst & cons.srcAB:
                need = max(need, raw)
            if prod.dst & cons.srcC:
                if prod.dst == cons.srcC and prod.passes == cons.passes:
                    pass
                else:
                    need = max(need, {2: 4, 4: 6, 8: 10, 16: 18}[p])
            elif prod.dst & cons.dst:
                need = max(need, raw)
        else:
            if prod.dst & (cons.src | cons.dst):
                need = max(need, raw)
        if cons.is_valu() and (prod.srcC & cons.dst):
            need = max(need, {2: 1, 4: 3, 8: 7, 16: 15}[p])
    if prod.kind == 'vmem' and prod.wide_store:
        if cons.dst & prod.store_data:
            need = max(need, 2 if cons.is_valu() else 1)
    if prod.kind in ('salu',) and ('s', 'm0') in prod.dst:
        if cons.lds_dma or cons.op.startswith('ds_') and 'addtid' in cons.op:
            need = max(need, 1)
    if prod.kind == 'salu' and ('s', 'exec') in prod.dst:
        pass
    return need


MAXD = 21


class Asm:
    def __init__(self):
        self.ins = []

    def __call__(self, text):
        for line in text.strip('\n').split('\n'):
            s = line.strip()
            if not s:
                continue
            m = re.match(r'^([A-Za-z_.$][\w.$]*):\s*(;.*)?$', s)
            if m:
                self.ins.append(Ins(s, label=m.group(1)))
            else:
                self.ins.append(Ins(s))

    def label(self, name):
        self.ins.append(Ins(name + ':', label=name))

    def raw(self, text):
        for line in text.split('\n'):
            i = Ins(';')
            i.text = line
            i.kind = 'dir'
            self.ins.append(i)

    def preds(self):
        lab = {i.label: n for n, i in enumerate(self.ins) if i.kind == 'label'}
        pred = [[] for _ in self.ins]
        for n, i in enumerate(self.ins):
            if n + 1 < len(self.ins):
                if not (i.kind == 'end' or (i.kind == 'branch' and i.op == 's_branch')):
                    pred[n + 1].append(n)
            if i.kind == 'branch':
                if i.target in lab:
                    pred[lab[i.target]].append(n)
                else:
                    raise ValueError('unknown label ' + i.target)
        return pred

    def fix_hazards(self, verbose=False):
        total = 0
        while True:
            pred = self.preds()
            inserted = False
            for n, c in enumerate(self.ins):
                if c.kind in ('label', 'dir', 'nop', 'waitcnt', 'end'):
                    continue
                need = 0
                why = None
                stack = [(p, 0) for p in pred[n]]
                seen = {}
                while stack:
                    p, d = stack.pop()
                    if d >= MAXD:
                        continue
                    if seen.get(p, 99) <= d:
                        continue
                    seen[p] = d
                    pi = self.ins[p]
                    if pi.kind not in ('label', 'dir'):
                        r = required(pi, c)
                        if r - d > need:
                            need = r - d
                            why = pi.text
                    for q in pred[p]:
                        stack.append((q, d + pi.nstates))
                if need > 0:
                    k = need
                    new = []
                    while k > 0:
                        t = min(k, 16)
                        x = Ins('s_nop %d' % (t - 1))
                        x.auto = True
                        x.text = 's_nop %d' % (t - 1) + '   ; auto: ' + why.split(';')[0].strip()[:60]
                        new.append(x)
                        k -= t
                    self.ins[n:n] = new
                    total += need
                    inserted = True
                    break
            if not inserted:
                break
        return total

    def check_waits(self, name='', loop_iters=2, max_steps=400000):
        lab = {i.label: n for n, i in enumerate(self.ins) if i.kind == 'label'}
        errs = []
        starts = [0]

        def run(start, take):
            vm = []
            lg = []
            cnt = {}
            n = start
            steps = 0
            while n < len(self.ins) and steps < max_steps:
                steps += 1
                i = self.ins[n]
                if i.kind in ('label', 'dir', 'nop'):
                    n += 1
                    continue
                if i.kind == 'waitcnt':
                    m = re.search(r'vmcnt\((\d+)\)', i.text)
                    if m:
                        k = int(m.group(1))
                        while len(vm) > k:
                            vm.pop(0)
                    m = re.search(r'lgkmcnt\((\d+)\)', i.text)
                    if m:
                        k = int(m.group(1))
                        if any(x[2] for x in lg):
                            if k == 0:
                                lg.clear()
                        else:
                            while len(lg) > k:
                                lg.pop(0)
                    n += 1
                    continue
                touched = i.src | i.dst
                for d, t in vm:
                    if d & touched:
                        errs.append('%s: vmcnt: "%s" touches regs of in-flight "%s"' % (name, i.text, t))
                for d, t, _ in lg:
                    if d & touched:
                        errs.append('%s: lgkmcnt: "%s" touches regs of in-flight "%s"' % (name, i.text, t))
                if i.kind == 'vmem' and not i.op.startswith(('buffer_inv', 'buffer_wbl2')):
                    vm.append((set(i.dst), i.text))
                    if len(vm) > 63:
                        errs.append('%s: vmcnt overflow (>63) at "%s"' % (name, i.text))
                if i.kind == 'ds':
                    lg.append((set(i.dst), i.text, False))
                if i.kind == 'smem':
                    lg.append((set(i.dst), i.text, True))
                if len([x for x in lg if not x[2]]) > 15 and False:
                    errs.append('%s: lgkmcnt overflow' % name)
                if i.kind == 'end':
                    return
                if i.kind == 'branch':
                    tgt = lab[i.target]
                    if i.op == 's_branch':
                        n = tgt
                        continue
                    if tgt <= n:
                        cnt[n] = cnt.get(n, 0) + 1
                        if cnt[n] < loop_iters:
                            n = tgt
                            continue
                        cnt[n] = 0
                    else:
                        if n in take:
                            n = tgt
                            continue
                n += 1

        fwd = [n for n, i in enumerate(self.ins) if i.kind == 'branch' and i.op != 's_branch' and lab[i.target] > n]
        run(0, set())
        for f in fwd:
            run(0, {f})
        out = []
        for e in errs:
            if e not in out:
                out.append(e)
        return out

    def text(self):
        out = []
        for i in self.ins:
            if i.kind == 'label':
                out.append(i.label + ':')
            elif i.kind == 'dir':
                out.append(i.text)
            else:
                out.append('    ' + i.text)
        return '\n'.join(out) + '\n'
```

```python
import sys, struct
sys.path.insert(0, 'work')
from asmgen import Asm

NAME = 'sequential_preLN__spectral_gfnet__mixer_token_mlp__prompt'

WS_X1 = 0x000000; SZ_X1 = 256 * 8320
WS_WT = 0x300000; SZ_WT = 257 * 8192
WS_Y1 = 0x600000; SZ_Y1 = 257 * 8320
WS_H = 0x900000; SZ_H = 2048 * 1024
WS_L2 = 0xC00000; SZ_L2 = 2048 * 1024
WS_U = 0xF00000; SZ_U = 32 * 43 * 1024


def f2u(x):
    return struct.unpack('<I', struct.pack('<f', x))[0]


def fl(x):
    return '0x%08x' % f2u(x)


def vr(a, n=1):
    return 'v%d' % a if n == 1 else 'v[%d:%d]' % (a, a + n - 1)


def sr(a, n=1):
    return 's%d' % a if n == 1 else 's[%d:%d]' % (a, a + n - 1)


def srd(a, R, lo, size, off=0):
    if off:
        a('s_add_u32 s%d, s%d, 0x%x' % (R, lo, off))
        a('s_addc_u32 s%d, s%d, 0' % (R + 1, lo + 1))
        a('s_and_b32 s%d, s%d, 0xffff' % (R + 1, R + 1))
    else:
        a('s_mov_b32 s%d, s%d' % (R, lo))
        a('s_and_b32 s%d, s%d, 0xffff' % (R + 1, lo + 1))
    a('s_mov_b32 s%d, 0x%x' % (R + 2, size))
    a('s_mov_b32 s%d, 0x20000' % (R + 3))


def wave_sum(a, regs):
    steps = ['quad_perm:[1,0,3,2] row_mask:0xf', 'quad_perm:[2,3,0,1] row_mask:0xf', 'row_half_mirror row_mask:0xf',
             'row_mirror row_mask:0xf', 'row_bcast:15 row_mask:0xa', 'row_bcast:31 row_mask:0xc']
    for st in steps:
        for r in regs:
            a('v_add_f32_dpp v%d, v%d, v%d %s bank_mask:0xf' % (r, r, r, st))


def ln_rows(a, X, T, S, nrows, out_pk=None, keep_f32=False):
    n = nrows
    sm = [T + j for j in range(n)]
    mean = [T + n + j for j in range(n)]
    mb = [T + 2 * n + j for j in range(n)]
    sq = [T + 3 * n + j for j in range(n)]
    t1 = [T + 4 * n + j for j in range(n)]
    t2 = [T + 5 * n + j for j in range(n)]
    for j in range(n):
        a('v_add_f32 v%d, v%d, v%d' % (sm[j], X[j][0], X[j][1]))
        a('v_add_f32 v%d, v%d, v%d' % (t1[j], X[j][2], X[j][3]))
        a('v_add_f32 v%d, v%d, v%d' % (t2[j], X[j][4], X[j][5]))
        a('v_add_f32 v%d, v%d, v%d' % (sq[j], X[j][6], X[j][7]))
    for j in range(n):
        a('v_add_f32 v%d, v%d, v%d' % (sm[j], sm[j], t1[j]))
        a('v_add_f32 v%d, v%d, v%d' % (t2[j], t2[j], sq[j]))
    for j in range(n):
        a('v_add_f32 v%d, v%d, v%d' % (sm[j], sm[j], t2[j]))
    wave_sum(a, sm)
    for j in range(n):
        a('v_readlane_b32 s%d, v%d, 63' % (S + j, sm[j]))
    for j in range(n):
        a('v_mov_b32 v%d, s%d' % (mean[j], S + j))
    for j in range(n):
        a('v_mul_f32 v%d, %s, v%d' % (mean[j], fl(1.0 / 512), mean[j]))
    for j in range(n):
        a('v_cvt_pk_bf16_f32 v%d, v%d, v%d' % (mb[j], mean[j], mean[j]))
    for j in range(n):
        a('v_and_b32 v%d, 0xffff0000, v%d' % (mb[j], mb[j]))
    for k in range(8):
        for j in range(n):
            a('v_sub_f32 v%d, v%d, v%d' % (X[j][k], X[j][k], mb[j]))
    for j in range(n):
        a('v_mul_f32 v%d, v%d, v%d' % (sq[j], X[j][0], X[j][0]))
        a('v_mul_f32 v%d, v%d, v%d' % (t1[j], X[j][1], X[j][1]))
    for k in range(2, 8, 2):
        for j in range(n):
            a('v_fmac_f32 v%d, v%d, v%d' % (sq[j], X[j][k], X[j][k]))
            a('v_fmac_f32 v%d, v%d, v%d' % (t1[j], X[j][k + 1], X[j][k + 1]))
    for j in range(n):
        a('v_add_f32 v%d, v%d, v%d' % (sq[j], sq[j], t1[j]))
    wave_sum(a, sq)
    for j in range(n):
        for k in range(0, 8, 2):
            a('v_cvt_pk_bf16_f32 v%d, v%d, v%d' % (X[j][k + 1], X[j][k], X[j][k + 1]))
    for j in range(n):
        a('v_readlane_b32 s%d, v%d, 63' % (S + j, sq[j]))
    for j in range(n):
        for k in range(0, 8, 2):
            a('v_lshlrev_b32 v%d, 16, v%d' % (X[j][k], X[j][k + 1]))
            a('v_and_b32 v%d, 0xffff0000, v%d' % (X[j][k + 1], X[j][k + 1]))
    for j in range(n):
        a('v_sub_f32 v%d, v%d, v%d' % (t1[j], mean[j], mb[j]))
        a('v_mov_b32 v%d, s%d' % (sq[j], S + j))
    for j in range(n):
        a('v_mul_f32 v%d, v%d, v%d' % (t1[j], t1[j], t1[j]))
        a('v_mul_f32 v%d, %s, v%d' % (sq[j], fl(1.0 / 512), sq[j]))
    for j in range(n):
        a('v_sub_f32 v%d, v%d, v%d' % (sq[j], sq[j], t1[j]))
    for j in range(n):
        a('v_max_f32 v%d, 0, v%d' % (sq[j], sq[j]))
    for j in range(n):
        a('v_cvt_pk_bf16_f32 v%d, v%d, v%d' % (sq[j], sq[j], sq[j]))
    for j in range(n):
        a('v_and_b32 v%d, 0xffff0000, v%d' % (sq[j], sq[j]))
    for j in range(n):
        a('v_add_f32 v%d, %s, v%d' % (sq[j], fl(1e-5), sq[j]))
    for j in range(n):
        a('v_cvt_pk_bf16_f32 v%d, v%d, v%d' % (sq[j], sq[j], sq[j]))
    for j in range(n):
        a('v_and_b32 v%d, 0xffff0000, v%d' % (sq[j], sq[j]))
    for j in range(n):
        a('v_sqrt_f32 v%d, v%d' % (sq[j], sq[j]))
    for j in range(n):
        a('v_cvt_pk_bf16_f32 v%d, v%d, v%d' % (sq[j], sq[j], sq[j]))
    for j in range(n):
        a('v_and_b32 v%d, 0xffff0000, v%d' % (sq[j], sq[j]))
    for j in range(n):
        a('v_rcp_f32 v%d, v%d' % (sq[j], sq[j]))
    for k in range(8):
        for j in range(n):
            a('v_mul_f32 v%d, v%d, v%d' % (X[j][k], X[j][k], sq[j]))
    for j in range(n):
        for k in range(0, 8, 2):
            a('v_cvt_pk_bf16_f32 v%d, v%d, v%d' % (out_pk[j][k // 2], X[j][k], X[j][k + 1]))
    if keep_f32:
        for j in range(n):
            for k in range(0, 8, 2):
                a('v_lshlrev_b32 v%d, 16, v%d' % (X[j][k], out_pk[j][k // 2]))
                a('v_and_b32 v%d, 0xffff0000, v%d' % (X[j][k + 1], out_pk[j][k // 2]))


def cmul_tw(a, re, im, c, s, ore, oim, sign):
    a('v_mul_f32 v%d, v%d, v%d' % (ore, re, c))
    a('v_mul_f32 v%d, v%d, v%d' % (oim, im, c))
    if sign < 0:
        a('v_fmac_f32 v%d, v%d, v%d' % (ore, im, s))
        a('v_fma_f32 v%d, -v%d, v%d, v%d' % (oim, re, s, oim))
    else:
        a('v_fma_f32 v%d, -v%d, v%d, v%d' % (ore, im, s, ore))
        a('v_fmac_f32 v%d, v%d, v%d' % (oim, re, s))


def gen_k1():
    a = Asm()
    L = 'k1_kernel'
    a.label(L)
    a('s_cmp_ge_u32 s2, 256')
    a('s_cbranch_scc1 K1_TR')
    a('s_load_dwordx2 s[4:5], s[0:1], 0')
    a('s_load_dwordx2 s[6:7], s[0:1], 80')
    a('v_and_b32 v1, 63, v0')
    a('v_lshrrev_b32 v2, 6, v0')
    a('s_lshr_b32 s12, s2, 3')
    a('v_readfirstlane_b32 s3, v2')
    a('s_and_b32 s13, s2, 7')
    a('s_lshl_b32 s13, s13, 8')
    a('s_add_u32 s13, s13, s12')
    a('v_lshlrev_b32 v3, 4, v1')
    a('s_lshl_b32 s14, s3, 6')
    a('s_add_u32 s13, s13, s14')
    a('s_lshl_b32 s13, s13, 10')
    a('s_add_u32 s14, s13, 32768')
    a('s_waitcnt lgkmcnt(0)')
    srd(a, 8, 4, 2048 * 1024)
    a('buffer_load_dwordx4 v[4:7], v3, s[8:11], s13 offen')
    a('buffer_load_dwordx4 v[8:11], v3, s[8:11], s14 offen')
    srd(a, 16, 6, SZ_X1, WS_X1)
    a('s_mul_i32 s15, s2, 8320')
    G, N, FG, FN = 12, 13, 14, 15
    a('v_lshrrev_b32 v%d, 4, v1' % G)
    a('v_and_b32 v%d, 15, v1' % N)
    a('v_cvt_f32_u32 v%d, v%d' % (FG, G))
    a('v_cvt_f32_u32 v%d, v%d' % (FN, N))
    B1 = 16
    T = 96
    a('v_mul_f32 v%d, v%d, v%d' % (T, FN, FG))
    a('v_mul_f32 v%d, 0.125*1, v%d'.replace('0.125*1', fl(0.125)) % (T, T))
    for o in range(1, 4):
        a('v_fmamk_f32 v%d, v%d, %s, v%d' % (T + o, FN, fl(o / 32.0), T))
    for o in range(4):
        a('v_cos_f32 v%d, v%d' % (T + 4 + o, T + o))
        a('v_sin_f32 v%d, v%d' % (T + 8 + o, T + o))
    a('v_and_b32 v%d, 1, v1' % (T + 12))
    a('v_mul_u32_u24 v%d, 0x8000, v%d' % (T + 12, T + 12))
    a('v_lshl_or_b32 v%d, v%d, 16, v%d' % (T + 12, T + 12, T + 12))
    a('v_cvt_pk_bf16_f32 v%d, v%d, v%d' % (B1 + 0, T + 4, T + 5))
    a('v_cvt_pk_bf16_f32 v%d, v%d, v%d' % (B1 + 1, T + 6, T + 7))
    a('v_cvt_pk_bf16_f32 v%d, -v%d, -v%d' % (B1 + 4, T + 8, T + 9))
    a('v_cvt_pk_bf16_f32 v%d, -v%d, -v%d' % (B1 + 5, T + 10, T + 11))
    for cs in range(2):
        for rr in range(2):
            a('v_xor_b32 v%d, v%d, v%d' % (B1 + cs * 4 + 2 + rr, B1 + cs * 4 + rr, T + 12))
    for q in range(8):
        a('v_xor_b32 v%d, 0x80000000, v%d' % (B1 + 8 + q, B1 + q))
    TC, TS = 32, 40
    a('v_mul_f32 v%d, %s, v%d' % (T, fl(1.0 / 512), FN))
    a('v_add_f32 v%d, %s, v%d' % (T + 1, fl(16.0 / 512), T))
    a('v_mul_f32 v%d, 4.0, v%d' % (T + 2, FG))
    for r in range(1, 4):
        a('v_add_f32 v%d, %s, v%d' % (T + 2 + r, fl(float(r)), T + 2))
    for hf in range(2):
        for r in range(4):
            a('v_mul_f32 v%d, v%d, v%d' % (T + 6 + hf * 4 + r, T + hf, T + 2 + r))
    for q in range(8):
        a('v_cos_f32 v%d, v%d' % (TC + q, T + 6 + q))
        a('v_sin_f32 v%d, v%d' % (TS + q, T + 6 + q))
    A3 = 48
    a('v_lshrrev_b32 v%d, 1, v%d' % (T, N))
    a('v_cvt_f32_u32 v%d, v%d' % (T, T))
    a('v_mul_f32 v%d, %s, v%d' % (T, fl(1.0 / 16), T))
    a('v_and_b32 v%d, 1, v%d' % (T + 1, N))
    a('v_cvt_f32_u32 v%d, v%d' % (T + 1, T + 1))
    a('v_mul_f32 v%d, %s, v%d' % (T + 1, fl(0.25), T + 1))
    for rr in range(4):
        a('v_fma_f32 v%d, v%d, v%d, v%d' % (T + 6 + rr, T, T + 2 + rr, T + 1))
    for rr in range(4):
        a('v_cos_f32 v%d, v%d' % (T + 10 + rr, T + 6 + rr))
        a('v_sin_f32 v%d, v%d' % (T + 14 + rr, T + 6 + rr))
    for rr in range(4):
        a('v_cvt_pk_bf16_f32 v%d, v%d, v%d' % (A3 + rr, T + 10 + rr, T + 14 + rr))
    G8 = 52
    for rr in range(4):
        a('v_mov_b32 v%d, 0x%x' % (G8 + rr, 0x3F80 if rr % 2 == 0 else 0xBF80))
    a('s_lshl_b32 s20, s3, 3')
    a('v_lshlrev_b32 v56, 5, v%d' % N)
    a('v_lshl_add_u32 v56, v%d, 11, v56' % G)
    a('v_add_u32 v56, s20, v56')
    a('s_add_u32 s21, s20, 8192')
    a('v_mov_b32 v57, 0x40000000')
    a('v_writelane_b32 v57, s21, 0')
    a('s_lshl_b32 s22, s3, 11')
    a('v_add_u32 v58, s22, v3')
    a('v_lshlrev_b32 v59, 3, v1')
    a('v_add_u32 v59, s22, v59')
    a('s_waitcnt vmcnt(0)')
    X = [[64 + k for k in range(8)], [72 + k for k in range(8)]]
    for j in range(2):
        for k in range(4):
            a('v_lshlrev_b32 v%d, 16, v%d' % (X[j][2 * k], 4 + 4 * j + k))
            a('v_and_b32 v%d, 0xffff0000, v%d' % (X[j][2 * k + 1], 4 + 4 * j + k))
    ln_rows(a, X, T, 24, 2, out_pk=[[4, 5, 6, 7], [8, 9, 10, 11]])
    a('ds_write_b128 v58, v[4:7]')
    a('ds_write_b128 v58, v[8:11] offset:1024')
    a('ds_read_b64_tr_b16 v[60:61], v59')
    a('ds_read_b64_tr_b16 v[62:63], v59 offset:512')
    a('ds_read_b64_tr_b16 v[64:65], v59 offset:1024')
    a('ds_read_b64_tr_b16 v[66:67], v59 offset:1536')
    D1 = 68
    A = [60, 64]
    for j in range(2):
        a('s_waitcnt lgkmcnt(%d)' % (2 - 2 * j))
        for hf in range(2):
            for cs in range(2):
                d = D1 + ((j * 2 + hf) * 2 + cs) * 4
                a('v_mfma_f32_16x16x32_bf16 %s, %s, %s, 0' % (vr(d, 4), vr(A[j], 4), vr(B1 + hf * 8 + cs * 4, 4)))
    P = 100
    for j in range(2):
        for hf in range(2):
            dre = D1 + ((j * 2 + hf) * 2 + 0) * 4
            dim = dre + 4
            for r in range(4):
                cmul_tw(a, dre + r, dim + r, TC + hf * 4 + r, TS + hf * 4 + r, 116 + 2 * r, 117 + 2 * r, -1)
            for r in range(4):
                a('v_cvt_pk_bf16_f32 v%d, v%d, v%d' % (P + (j * 2 + hf) * 4 + r, 116 + 2 * r, 117 + 2 * r))
    D3 = 68
    for j in range(2):
        for hf in range(2):
            a('v_mfma_f32_16x16x32_bf16 %s, %s, %s, 0' % (vr(D3 + (j * 2 + hf) * 4, 4), vr(A3, 4), vr(P + (j * 2 + hf) * 4, 4)))
    for j in range(2):
        a('v_mfma_f32_16x16x32_bf16 %s, %s, %s, 0' % (vr(D3 + 16 + j * 4, 4), vr(G8, 4), vr(P + (j * 2) * 4, 4)))
    O = 4
    for hf in range(2):
        for p in range(2):
            o = O + (hf * 2 + p) * 2
            for j in range(2):
                d = D3 + (j * 2 + hf) * 4 + 2 * p
                a('v_cvt_pk_bf16_f32 v%d, v%d, v%d' % (o + j, d, d + 1))
            a('buffer_store_dwordx2 %s, v56, s[16:19], s15 offen offset:%d' % (vr(o, 2), hf * 512 + p * 1024))
    for j in range(2):
        a('v_cvt_pk_bf16_f32 v%d, v%d, 0' % (60 + j, D3 + 16 + j * 4))
    a('buffer_store_dwordx2 v[60:61], v57, s[16:19], s15 offen')
    a('s_endpgm')
    a.label('K1_TR')
    a('s_cmp_ge_u32 s2, 320')
    a('s_cbranch_scc1 K1_END')
    a('s_load_dwordx4 s[4:7], s[0:1], 8')
    a('s_load_dwordx2 s[12:13], s[0:1], 80')
    a('s_sub_u32 s3, s2, 256')
    a('s_and_b32 s14, s3, 7')
    a('s_lshr_b32 s15, s3, 3')
    a('s_lshl_b32 s20, s14, 3')
    a('s_lshl_b32 s21, s15, 8')
    a('s_add_u32 s20, s20, s21')
    a('s_mul_i32 s20, s20, 514')
    for r in range(1, 4):
        a('s_add_u32 s%d, s20, %d' % (20 + r, r * 64 * 514))
    a('v_lshlrev_b32 v1, 4, v0')
    a('v_and_b32 v2, 3, v0')
    a('v_mul_u32_u24 v2, %d, v2' % (64 * 514))
    a('v_add_u32 v2, 4096, v2')
    a('s_waitcnt lgkmcnt(0)')
    srd(a, 8, 4, 2048 * 514)
    srd(a, 16, 6, 2048 * 514)
    srd(a, 24, 12, SZ_WT, WS_WT)
    for r in range(4):
        a('buffer_load_dwordx4 %s, v1, s[8:11], s%d offen' % (vr(4 + 4 * r, 4), 20 + r))
    for r in range(4):
        a('buffer_load_dwordx4 %s, v1, s[16:19], s%d offen' % (vr(20 + 4 * r, 4), 20 + r))
    a('buffer_load_dwordx4 v[36:39], v2, s[8:11], s20 offen')
    a('buffer_load_dwordx4 v[40:43], v2, s[16:19], s20 offen')
    RUN = 4112
    a('v_and_b32 v3, 3, v0')
    a('v_mul_u32_u24 v3, %d, v3' % RUN)
    a('v_add_u32 v3, 4096, v3')
    a('v_and_b32 v45, 7, v0')
    a('v_bfe_u32 v46, v0, 3, 3')
    a('v_lshrrev_b32 v47, 6, v0')
    a('v_lshrrev_b32 v48, 1, v47')
    a('v_lshlrev_b32 v48, 7, v48')
    a('v_lshl_add_u32 v48, v46, 4, v48')
    a('v_and_b32 v47, 1, v47')
    a('v_lshl_add_u32 v48, v47, 3, v48')
    a('v_mul_u32_u24 v49, 514, v45')
    a('v_lshl_add_u32 v49, v48, 1, v49')
    a('v_lshlrev_b32 v50, 13, v48')
    a('v_lshl_add_u32 v50, v45, 4, v50')
    a('s_lshr_b32 s28, s14, 1')
    a('s_lshl_b32 s28, s28, 11')
    a('s_lshr_b32 s29, s15, 2')
    a('s_lshl_b32 s29, s29, 10')
    a('s_add_u32 s28, s28, s29')
    a('s_and_b32 s29, s15, 3')
    a('s_lshl_b32 s29, s29, 8')
    a('s_add_u32 s28, s28, s29')
    a('s_and_b32 s29, s14, 1')
    a('s_lshl_b32 s29, s29, 7')
    a('s_add_u32 s28, s28, s29')
    for r in range(8):
        a('s_waitcnt vmcnt(%d)' % (9 - r))
        a('ds_write_b128 v1, %s offset:%d' % (vr(4 + 4 * r, 4), r * RUN))
    a('s_waitcnt vmcnt(0)')
    a('v_cmp_gt_u32 vcc, 4, v0')
    a('s_and_saveexec_b64 s[30:31], vcc')
    a('s_cbranch_execz K1_TR2')
    a('ds_write_b128 v3, v[36:39]')
    a('ds_write_b128 v3, v[40:43] offset:%d' % (4 * RUN))
    a.label('K1_TR2')
    a('s_mov_b64 exec, s[30:31]')
    a('s_waitcnt lgkmcnt(0)')
    a('s_barrier')
    for it in range(9):
        koff = it if it < 8 else None
        if it == 8:
            a('v_add_u32 v49, 512, v49')
            a('v_add_u32 v50, 0x%x, v50' % (256 * 8192))
            koff = 0
        base = 4 + (it % 2) * 12
        for r in range(4):
            a('ds_read_u16 v%d, v49 offset:%d' % (base + 2 * r, r * RUN + koff * 2))
            a('ds_read_u16 v%d, v49 offset:%d' % (base + 2 * r + 1, (4 + r) * RUN + koff * 2))
        a('s_waitcnt lgkmcnt(0)')
        o = 28 + (it % 2) * 4
        for r in range(4):
            a('v_lshl_or_b32 v%d, v%d, 16, v%d' % (o + r, base + 2 * r + 1, base + 2 * r))
        if it < 8:
            a('s_add_u32 s29, s28, %d' % (it * 8192))
        else:
            a('s_mov_b32 s29, s28')
        a('buffer_store_dwordx4 %s, v50, s[24:27], s29 offen' % vr(o, 4))
    a.label('K1_END')
    a('s_endpgm')
    return dict(name=L, asm=a, grid=320, lds=8 * 4112 + 1024, vgpr=124, sgpr=34)

def gen_k2():
    a = Asm()
    L = 'k2_kernel'
    a.label(L)
    a('s_cmp_ge_u32 s2, 257')
    a('s_cbranch_scc1 K2_END')
    a('s_load_dwordx2 s[4:5], s[0:1], 80')
    a('v_and_b32 v1, 63, v0')
    a('v_lshrrev_b32 v2, 6, v0')
    a('s_and_b32 s12, s2, 7')
    a('s_lshl_b32 s12, s12, 5')
    a('v_readfirstlane_b32 s3, v2')
    a('s_lshr_b32 s13, s2, 3')
    a('s_add_u32 s12, s12, s13')
    a('s_cmp_eq_u32 s2, 256')
    a('s_cselect_b32 s12, 256, s12')
    G, N = 2, 3
    a('v_lshrrev_b32 v2, 4, v1')
    a('v_and_b32 v3, 15, v1')
    a('v_lshlrev_b32 v4, 3, v3')
    a('v_lshrrev_b32 v5, 1, v2')
    a('v_add_u32 v4, v4, v5')
    a('v_mul_u32_u24 v4, 8320, v4')
    a('v_and_b32 v5, 1, v2')
    a('v_lshl_add_u32 v4, v5, 4, v4')
    a('s_lshl_b32 s14, s3, 1')
    a('s_mul_i32 s14, s14, 8320')
    a('s_lshl_b32 s15, s12, 5')
    a('s_add_u32 s14, s14, s15')
    a('s_add_u32 s15, s14, %d' % (128 * 8320))
    a('s_lshl_b32 s16, s3, 11')
    a('v_lshlrev_b32 v5, 4, v1')
    a('s_lshl_b32 s17, s12, 13')
    a('s_add_u32 s17, s17, s16')
    a('s_waitcnt lgkmcnt(0)')
    srd(a, 8, 4, SZ_X1, WS_X1)
    a('s_mov_b32 m0, s16')
    srd(a, 20, 4, SZ_WT, WS_WT)
    a('buffer_load_dwordx4 v4, s[8:11], s14 offen lds')
    a('s_add_u32 m0, s16, 1024')
    srd(a, 24, 4, SZ_Y1, WS_Y1)
    a('buffer_load_dwordx4 v4, s[8:11], s15 offen lds')
    W = 112
    a('buffer_load_dwordx4 %s, v5, s[20:23], s17 offen' % vr(W, 4))
    a('buffer_load_dwordx4 %s, v5, s[20:23], s17 offen offset:1024' % vr(W + 4, 4))
    TAB = 16384
    T = 176
    a('v_cvt_f32_u32 v%d, v1' % T)
    a('v_mul_f32 v%d, %s, v%d' % (T, fl(1.0 / 64), T))
    a('v_cos_f32 v%d, v%d' % (T + 1, T))
    a('v_sin_f32 v%d, v%d' % (T + 2, T))
    a('s_lshl_b32 s18, s3, 9')
    a('s_add_u32 s18, s18, %d' % TAB)
    a('v_mov_b32 v6, s18')
    a('v_cvt_pk_bf16_f32 v%d, v%d, v%d' % (T + 1, T + 1, T + 2))
    a('v_lshl_add_u32 v%d, v1, 2, v6' % (T + 2))
    a('ds_write2st64_b32 v%d, v%d, v%d offset0:0 offset1:1' % (T + 2, T + 1, T + 1))
    F64, F32 = 16, 48
    a('s_mov_b32 s19, 0xff')
    a('s_lshl_b32 s28, s3, 4')
    a('v_add_u32 v7, s28, v3')
    a('v_lshlrev_b32 v8, 2, v7')
    a('v_lshlrev_b32 v9, 2, v2')
    a('v_mul_u32_u24 v10, v9, v8')
    for ks in range(2):
        for rr in range(4):
            t = T + 4 + ks * 4 + rr
            a('v_mad_u32_u24 v%d, v8, %d, v10' % (t, 16 * ks + rr))
            a('v_and_or_b32 v%d, v%d, s19, v6' % (t, t))
    a('v_lshlrev_b32 v11, 3, v3')
    a('v_mul_u32_u24 v12, v9, v11')
    for rr in range(4):
        t = T + 12 + rr
        a('v_mad_u32_u24 v%d, v11, %d, v12' % (t, rr))
        a('v_and_or_b32 v%d, v%d, s19, v6' % (t, t))
    for ks in range(2):
        for rr in range(4):
            t = T + 4 + ks * 4 + rr
            a('ds_read_b32 v%d, v%d' % (F64 + ks * 8 + rr, t))
            a('ds_read_b32 v%d, v%d offset:64' % (F64 + ks * 8 + 4 + rr, t))
    for rr in range(4):
        t = T + 12 + rr
        a('ds_read_b32 v%d, v%d' % (F32 + rr, t))
        a('ds_read_b32 v%d, v%d offset:64' % (F32 + 4 + rr, t))
    T1C, T1S, T2C, T2S = 80, 88, 96, 104
    a('v_cvt_f32_u32 v%d, v7' % T)
    a('v_mul_f32 v%d, %s, v%d' % (T, fl(1.0 / 2048), T))
    a('v_cvt_f32_u32 v%d, v9' % (T + 1))
    for mt in range(2):
        for r in range(4):
            q = mt * 4 + r
            a('v_add_f32 v%d, %s, v%d' % (T + 2, fl(float(16 * mt + r)), T + 1))
            a('v_mul_f32 v%d, v%d, v%d' % (T + 2, T + 2, T))
            a('v_cos_f32 v%d, v%d' % (T1C + q, T + 2))
            a('v_sin_f32 v%d, v%d' % (T1S + q, T + 2))
    a('v_add_u32 v13, s28, v9')
    a('v_cvt_f32_u32 v%d, v13' % (T + 1))
    a('v_cvt_f32_u32 v%d, v3' % T)
    a('v_mul_f32 v%d, %s, v%d' % (T, fl(1.0 / 2048), T))
    a('v_add_f32 v%d, %s, v%d' % (T + 3, fl(16.0 / 2048), T))
    for bt in range(2):
        for r in range(4):
            q = bt * 4 + r
            a('v_add_f32 v%d, %s, v%d' % (T + 2, fl(float(r)), T + 1))
            a('v_mul_f32 v%d, v%d, v%d' % (T + 2, T + 2, T + 3 * bt))
            a('v_cos_f32 v%d, v%d' % (T2C + q, T + 2))
            a('v_sin_f32 v%d, v%d' % (T2S + q, T + 2))
    a('v_and_b32 v14, 1, v1')
    a('v_mul_u32_u24 v14, 0x8000, v14')
    a('v_lshl_or_b32 v14, v14, 16, v14')
    a('s_waitcnt lgkmcnt(0)')
    for q in range(16):
        a('v_xor_b32 v%d, v%d, v14' % (F64 + 16 + q, F64 + q))
    for q in range(8):
        a('v_xor_b32 v%d, v%d, v14' % (F32 + 8 + q, F32 + q))
    for K in range(2):
        for q in range(8):
            src = F32 + K * 8 + q
            dst = F32 + 16 + K * 8 + q
            if (q & 1):
                a('v_xor_b32 v%d, 0x80008000, v%d' % (dst, src))
            else:
                a('v_mov_b32 v%d, v%d' % (dst, src))
    a('v_lshlrev_b32 v15, 8, v3')
    a('v_lshl_add_u32 v15, v2, 4, v15')
    a('s_mul_i32 s29, s12, 8320')
    a('s_lshl_b32 s30, s3, 6')
    a('s_add_u32 s29, s29, s30')
    a('s_add_u32 s30, s29, 4096')
    FR = 120
    D = 152
    P = 168
    a('s_waitcnt vmcnt(2)')
    a('s_barrier')
    for ks in range(4):
        for mt in range(2):
            a('ds_read_b128 %s, v5 offset:%d' % (vr(FR + (ks * 2 + mt) * 4, 4), (ks * 2 + mt) * 1024))
    for ks in range(4):
        a('s_waitcnt lgkmcnt(%d)' % (6 - 2 * ks))
        for mt in range(2):
            for ro in range(2):
                d = D + (mt * 2 + ro) * 4
                c = '0' if ks == 0 else vr(d, 4)
                a('v_mfma_f32_16x16x32_bf16 %s, %s, %s, %s' % (vr(d, 4), vr(FR + (ks * 2 + mt) * 4, 4), vr(F64 + ks * 8 + ro * 4, 4), c))

    def twpack(TC, TS):
        for mt in range(2):
            dre = D + (mt * 2) * 4
            dim = dre + 4
            for r in range(4):
                cmul_tw(a, dre + r, dim + r, TC + mt * 4 + r, TS + mt * 4 + r, T + 2 * r, T + 2 * r + 1, -1)
            for r in range(4):
                a('v_cvt_pk_bf16_f32 v%d, v%d, v%d' % (P + mt * 4 + r, T + 2 * r, T + 2 * r + 1))
    twpack(T1C, T1S)
    for mt in range(2):
        for et in range(2):
            for ro in range(2):
                d = D + (et * 2 + ro) * 4
                c = '0' if mt == 0 else vr(d, 4)
                a('v_mfma_f32_16x16x32_bf16 %s, %s, %s, %s' % (vr(d, 4), vr(F32 + (et * 2 + mt) * 8 + ro * 4, 4), vr(P + mt * 4, 4), c))
    a('s_waitcnt vmcnt(0)')
    for t in range(2):
        for r in range(4):
            wv = W + t * 4 + r
            xr, xi = D + (t * 2) * 4 + r, D + (t * 2 + 1) * 4 + r
            a('v_lshlrev_b32 v%d, 16, v%d' % (T + 8, wv))
            a('v_and_b32 v%d, 0xffff0000, v%d' % (T + 9, wv))
            cmul_tw(a, xr, xi, T + 8, T + 9, T + 10, T + 11, +1)
            a('v_cvt_pk_bf16_f32 v%d, v%d, -v%d' % (P + t * 4 + r, T + 10, T + 11))
    for t in range(2):
        for bt in range(2):
            for ro in range(2):
                d = D + (bt * 2 + ro) * 4
                c = '0' if t == 0 else vr(d, 4)
                a('v_mfma_f32_16x16x32_bf16 %s, %s, %s, %s' % (vr(d, 4), vr(P + t * 4, 4), vr(F32 + (bt * 2 + t) * 8 + ro * 4, 4), c))
    twpack(T2C, T2S)
    EX = 8192
    a('s_add_u32 s31, s16, %d' % EX)
    a('v_add_u32 v4, s31, v5')
    a('ds_write_b128 v4, %s' % vr(P, 4))
    a('ds_write_b128 v4, %s offset:1024' % vr(P + 4, 4))
    a('s_waitcnt lgkmcnt(0)')
    a('s_barrier')
    for ks in range(4):
        for nt in range(2):
            a('ds_read_b128 %s, v5 offset:%d' % (vr(FR + (ks * 2 + nt) * 4, 4), EX + (ks * 2 + nt) * 1024))
    for ks in range(4):
        a('s_waitcnt lgkmcnt(%d)' % (6 - 2 * ks))
        for nt in range(2):
            for ro in range(2):
                d = D + (nt * 2 + ro) * 4
                c = '0' if ks == 0 else vr(d, 4)
                a('v_mfma_f32_16x16x32_bf16 %s, %s, %s, %s' % (vr(d, 4), vr(F64 + ks * 8 + ro * 4, 4), vr(FR + (ks * 2 + nt) * 4, 4), c))
    for nt in range(2):
        dre = D + nt * 8
        for r in range(4):
            a('v_cvt_pk_bf16_f32 v%d, v%d, -v%d' % (P + nt * 4 + r, dre + r, dre + 4 + r))
        a('buffer_store_dwordx4 %s, v15, s[24:27], s%d offen' % (vr(P + nt * 4, 4), 29 + nt))
    a.label('K2_END')
    a('s_endpgm')
    return dict(name=L, asm=a, grid=257, lds=16384 + 2048, vgpr=192, sgpr=34)

def gen_k3():
    a = Asm()
    L = 'k3_kernel'
    a.label(L)
    a('s_cmp_ge_u32 s2, 256')
    a('s_cbranch_scc1 K3_END')
    a('s_load_dwordx2 s[4:5], s[0:1], 80')
    a('s_load_dwordx2 s[6:7], s[0:1], 0')
    a('v_and_b32 v1, 63, v0')
    a('v_lshrrev_b32 v2, 6, v0')
    a('s_and_b32 s12, s2, 7')
    a('s_lshr_b32 s13, s2, 3')
    a('v_readfirstlane_b32 s3, v2')
    a('s_lshl_b32 s12, s12, 2')
    a('s_lshr_b32 s14, s13, 3')
    a('s_add_u32 s12, s12, s14')
    a('s_and_b32 s13, s13, 7')
    a('s_lshl_b32 s14, s12, 8')
    a('s_lshl_b32 s15, s13, 5')
    a('s_add_u32 s14, s14, s15')
    a('v_mul_u32_u24 v4, 8320, v0')
    a('s_lshl_b32 s15, s13, 8')
    a('s_lshl_b32 s16, s3, 6')
    a('s_add_u32 s15, s15, s16')
    a('s_add_u32 s15, s15, s12')
    a('s_lshl_b32 s15, s15, 10')
    a('s_add_u32 s16, s15, 32768')
    a('v_lshrrev_b32 v2, 4, v1')
    a('v_and_b32 v3, 15, v1')
    a('v_lshlrev_b32 v5, 5, v3')
    a('v_lshl_add_u32 v5, v2, 3, v5')
    a('s_lshl_b32 s17, s3, 3')
    a('s_add_u32 s17, s17, s14')
    a('s_waitcnt lgkmcnt(0)')
    srd(a, 8, 4, SZ_Y1, WS_Y1)
    a('buffer_load_dwordx4 v[8:11], v4, s[8:11], s14 offen')
    a('buffer_load_dwordx4 v[12:15], v4, s[8:11], s14 offen offset:16')
    srd(a, 20, 6, 2048 * 1024)
    XR = 16
    for j in range(2):
        for t in range(2):
            a('buffer_load_dwordx2 %s, v5, s[20:23], s%d offen offset:%d' % (vr(XR + (j * 2 + t) * 2, 2), 15 + j, t * 512))
    a('s_add_u32 s24, s4, 0x%x' % WS_Y1)
    a('s_addc_u32 s25, s5, 0')
    a('s_add_u32 s24, s24, s17')
    a('s_addc_u32 s25, s25, 0')
    a('s_load_dwordx2 s[26:27], s[24:25], 0')
    a('s_add_u32 s42, s24, 0x%x' % (256 * 8320))
    a('s_addc_u32 s43, s25, 0')
    a('s_load_dwordx2 s[28:29], s[42:43], 0')
    srd(a, 32, 4, SZ_H, WS_H)
    srd(a, 36, 4, SZ_L2, WS_L2)
    T = 96
    FG, FN = 6, 7
    a('v_cvt_f32_u32 v%d, v2' % FG)
    a('v_cvt_f32_u32 v%d, v3' % FN)
    B1 = 24
    a('v_mul_f32 v%d, %s, v%d' % (T, fl(-1.0 / 16), FN))
    a('v_add_f32 v%d, v%d, v%d' % (T + 1, FG, FG))
    a('v_add_f32 v%d, 1.0, v%d' % (T + 2, T + 1))
    a('v_mul_f32 v%d, v%d, v%d' % (T + 3, T, T + 1))
    a('v_mul_f32 v%d, v%d, v%d' % (T + 4, T, T + 2))
    a('v_add_f32 v%d, %s, v%d' % (T + 5, fl(0.25), T + 3))
    a('v_add_f32 v%d, %s, v%d' % (T + 6, fl(0.25), T + 4))
    for q in range(4):
        a('v_cos_f32 v%d, v%d' % (T + 8 + q, T + 3 + q))
        a('v_sin_f32 v%d, v%d' % (T + 12 + q, T + 3 + q))
    for q in range(4):
        a('v_cvt_pk_bf16_f32 v%d, v%d, v%d' % (B1 + q, T + 8 + q, T + 12 + q))
    TC, TS = 28, 36
    a('v_mul_f32 v%d, %s, v%d' % (T, fl(1.0 / 512), FN))
    a('v_mul_f32 v%d, 4.0, v%d' % (T + 1, FG))
    for hf in range(2):
        for r in range(4):
            q = hf * 4 + r
            a('v_add_f32 v%d, %s, v%d' % (T + 2, fl(float(16 * hf + r)), T + 1))
            a('v_mul_f32 v%d, v%d, v%d' % (T + 2, T + 2, T))
            a('v_cos_f32 v%d, v%d' % (TC + q, T + 2))
            a('v_sin_f32 v%d, v%d' % (TS + q, T + 2))
    B3 = 44
    a('v_mul_f32 v%d, %s, v%d' % (T, fl(1.0 / 32), FN))
    for rr in range(4):
        a('v_add_f32 v%d, %s, v%d' % (T + 2, fl(float(rr)), T + 1))
        a('v_mul_f32 v%d, v%d, v%d' % (T + 2, T + 2, T))
        a('v_cos_f32 v%d, v%d' % (T + 3, T + 2))
        a('v_sin_f32 v%d, v%d' % (T + 4, T + 2))
        a('v_cvt_pk_bf16_f32 v%d, v%d, -v%d' % (B3 + rr, T + 3, T + 4))
    a('v_and_b32 v%d, 1, v1' % (T + 5))
    a('v_mul_u32_u24 v%d, 0x8000, v%d' % (T + 5, T + 5))
    a('v_lshl_or_b32 v%d, v%d, 16, v%d' % (T + 5, T + 5, T + 5))
    for rr in range(4):
        a('v_xor_b32 v%d, v%d, v%d' % (B3 + 4 + rr, B3 + rr, T + 5))
    for hf in range(2):
        for rr in range(4):
            src, dst = B3 + hf * 4 + rr, B3 + 8 + hf * 4 + rr
            if rr & 1:
                a('v_xor_b32 v%d, 0x80008000, v%d' % (dst, src))
            else:
                a('v_mov_b32 v%d, v%d' % (dst, src))
    a('v_lshrrev_b32 v60, 6, v0')
    a('v_mul_u32_u24 v60, 80, v60')
    a('v_add_u32 v60, v60, v1')
    a('v_lshlrev_b32 v60, 2, v60')
    a('v_mul_u32_u24 v61, 80, v2')
    a('v_add_u32 v61, v61, v3')
    a('v_lshlrev_b32 v61, 2, v61')
    a('s_mul_i32 s18, s3, 2560')
    a('v_add_u32 v61, s18, v61')
    R2 = 10240
    a('s_mul_i32 s19, s3, 2176')
    a('s_add_u32 s19, s19, %d' % R2)
    a('v_add_u32 v62, s19, v5')
    a('v_lshrrev_b32 v63, 2, v3')
    a('v_mul_u32_u24 v63, 1088, v63')
    a('v_lshl_add_u32 v63, v2, 5, v63')
    a('v_and_b32 v%d, 3, v1' % T)
    a('v_lshl_add_u32 v63, v%d, 3, v63' % T)
    a('s_lshl_b32 s30, s3, 8')
    a('s_add_u32 s30, s30, %d' % R2)
    a('v_add_u32 v63, s30, v63')
    a('s_waitcnt vmcnt(4)')
    for q in range(4):
        a('ds_write2st64_b32 v60, v%d, v%d offset0:%d offset1:%d' % (8 + 2 * q, 9 + 2 * q, 10 * q, 10 * q + 5))
    a('s_waitcnt lgkmcnt(0)')
    a('s_barrier')
    AF = 64
    for j in range(2):
        for hf in range(2):
            a('ds_read2_b32 %s, v61 offset0:%d offset1:%d' % (vr(AF + (j * 2 + hf) * 2, 2), 16 * hf, 16 * hf + 32) if j == 0 else
              'ds_read2_b32 %s, v%d offset0:%d offset1:%d' % (vr(AF + (j * 2 + hf) * 2, 2), T + 1, 16 * hf, 16 * hf + 32))
        if j == 0:
            a('v_add_u32 v%d, 1280, v61' % (T + 1))
    for j in range(2):
        a('s_lshl_b32 s%d, s%d, 16' % (26 + j, 26 + j))
        a('s_lshl_b32 s%d, s%d, 16' % (28 + j, 28 + j))
    CE, CO = 8, 10
    for j in range(2):
        a('v_mov_b32 v%d, s%d' % (T + 2 + j, 28 + j))
    for j in range(2):
        a('v_subrev_f32 v%d, s%d, v%d' % (CE + j, 26 + j, T + 2 + j))
        a('v_sub_f32 v%d, -v%d, s%d' .replace('v_sub_f32', 'v_sub_f32_e64') % (CO + j, T + 2 + j, 26 + j))
    for j in range(2):
        a('v_mul_f32 v%d, %s, v%d' % (CE + j, fl(2.0 ** -20), CE + j))
        a('v_mul_f32 v%d, %s, v%d' % (CO + j, fl(2.0 ** -20), CO + j))
    D1 = 72
    for j in range(2):
        a('s_waitcnt lgkmcnt(%d)' % (2 - 2 * j))
        for hf in range(2):
            for ro in range(2):
                d = D1 + ((j * 2 + hf) * 2 + ro) * 4
                a('v_mfma_f32_16x16x16_bf16 %s, %s, %s, 0' % (vr(d, 4), vr(AF + (j * 2 + hf) * 2, 2), vr(B1 + ro * 2, 2)))
    P = 104
    T2 = 120
    for j in range(2):
        for hf in range(2):
            dre = D1 + ((j * 2 + hf) * 2) * 4
            dim = dre + 4
            for r in range(4):
                cmul_tw(a, dre + r, dim + r, TC + hf * 4 + r, TS + hf * 4 + r, T2 + 2 * r, T2 + 2 * r + 1, +1)
            for r in range(4):
                a('v_cvt_pk_bf16_f32 v%d, v%d, v%d' % (P + (j * 2 + hf) * 4 + r, T2 + 2 * r, T2 + 2 * r + 1))
    D3 = 72
    for hf in range(2):
        for j in range(2):
            for t in range(2):
                d = D3 + (j * 2 + t) * 4
                c = '0' if hf == 0 else vr(d, 4)
                a('v_mfma_f32_16x16x32_bf16 %s, %s, %s, %s' % (vr(d, 4), vr(P + (j * 2 + hf) * 4, 4), vr(B3 + t * 8 + hf * 4, 4), c))
    X = [[D3 + j * 8 + k for k in range(8)] for j in range(2)]
    a('v_mov_b32 v12, %s' % fl(2.0 ** -19))
    for j in range(2):
        for k in range(8):
            a('v_fma_f32 v%d, v%d, v12, v%d' % (X[j][k], X[j][k], (CE if k % 2 == 0 else CO) + j))
    a('s_waitcnt vmcnt(0)')
    HP = [[88 + j * 4 + q for q in range(4)] for j in range(2)]
    for j in range(2):
        for q in range(4):
            k = 2 * q
            a('v_cvt_pk_bf16_f32 v%d, v%d, v%d' % (T2, X[j][k], X[j][k + 1]))
            xv = XR + j * 4 + q
            a('v_lshlrev_b32 v%d, 16, v%d' % (T2 + 1, T2))
            a('v_and_b32 v%d, 0xffff0000, v%d' % (T2 + 2, T2))
            a('v_lshlrev_b32 v%d, 16, v%d' % (T2 + 3, xv))
            a('v_and_b32 v%d, 0xffff0000, v%d' % (T2 + 4, xv))
            a('v_add_f32 v%d, v%d, v%d' % (T2 + 1, T2 + 1, T2 + 3))
            a('v_add_f32 v%d, v%d, v%d' % (T2 + 2, T2 + 2, T2 + 4))
            a('v_cvt_pk_bf16_f32 v%d, v%d, v%d' % (HP[j][q], T2 + 1, T2 + 2))
            a('v_lshlrev_b32 v%d, 16, v%d' % (X[j][k], HP[j][q]))
            a('v_and_b32 v%d, 0xffff0000, v%d' % (X[j][k + 1], HP[j][q]))
    for j in range(2):
        for t in range(2):
            a('buffer_store_dwordx2 %s, v5, s[32:35], s%d offen offset:%d' % (vr(HP[j][2 * t], 2), 15 + j, t * 512))
    PK = [[104 + j * 4 + q for q in range(4)] for j in range(2)]
    ln_rows(a, X, 112, 40, 2, out_pk=PK, keep_f32=True)
    ln_rows(a, X, 112, 40, 2, out_pk=PK)
    for j in range(2):
        for t in range(2):
            a('ds_write_b64 v62, %s offset:%d' % (vr(PK[j][2 * t], 2), j * 1088 + t * 512))
    a('s_waitcnt lgkmcnt(0)')
    a('s_barrier')
    O = 72
    for half in range(2):
        for q in range(2):
            a('ds_read_b64_tr_b16 %s, v63 offset:%d' % (vr(O + half * 4 + q * 2, 2), q * 4 * 1088 + half * 128))
    a('s_lshl_b32 s30, s12, 3')
    a('s_add_u32 s30, s30, s13')
    a('s_lshl_b32 s30, s30, 13')
    a('s_lshl_b32 s31, s3, 11')
    a('s_add_u32 s30, s30, s31')
    a('v_lshlrev_b32 v4, 4, v1')
    for half in range(2):
        a('s_waitcnt lgkmcnt(%d)' % (2 - 2 * half))
        a('buffer_store_dwordx4 %s, v4, s[36:39], s30 offen offset:%d' % (vr(O + half * 4, 4), half * 1024))
    a.label('K3_END')
    a('s_endpgm')
    return dict(name=L, asm=a, grid=256, lds=10240 + 8 * 1088, vgpr=128, sgpr=44)

class VM:
    def __init__(self, a):
        self.a = a
        self.q = []
        self.last = None

    def issue(self, text, tag):
        self.a(text)
        self.q.append(tag)
        assert len(self.q) <= 63 or True

    def wait(self, tags):
        idx = max([i for i, t in enumerate(self.q) if t in tags], default=-1)
        if idx < 0:
            return
        n = len(self.q) - 1 - idx
        assert n <= 63, n
        self.a('s_waitcnt vmcnt(%d)' % n)
        self.q = self.q[idx + 1:]


def gen_k4(DEPTH=8):
    a = Asm()
    L = 'k4_kernel'
    a.label(L)
    a('s_cmp_ge_u32 s2, 232')
    a('s_cbranch_scc1 K4_END')
    a('s_load_dwordx4 s[4:7], s[0:1], 32')
    a('s_load_dwordx2 s[12:13], s[0:1], 80')
    a('v_and_b32 v1, 63, v0')
    a('v_lshrrev_b32 v2, 6, v0')
    a('s_and_b32 s14, s2, 7')
    a('s_lshr_b32 s15, s2, 3')
    a('v_readfirstlane_b32 s3, v2')
    a('s_lshr_b32 s16, s14, 1')
    a('s_mul_i32 s16, s16, 29')
    a('s_add_u32 s16, s16, s15')
    a('s_and_b32 s14, s14, 1')
    a('s_lshl_b32 s14, s14, 2')
    a('s_and_b32 s15, s16, 3')
    a('s_add_u32 s14, s14, s15')
    a('s_lshr_b32 s15, s16, 2')
    a('v_lshrrev_b32 v2, 4, v1')
    a('v_and_b32 v3, 15, v1')
    for m in range(3):
        a('v_add_u32 v10, %d, v1' % (64 * m))
        a('v_mul_u32_u24 v11, 171, v10')
        a('v_lshrrev_b32 v11, 10, v11')
        a('v_mul_u32_u24 v12, 6, v11')
        a('v_sub_u32 v12, v10, v12')
        a('v_bfe_u32 v13, v11, 2, 2')
        a('v_lshlrev_b32 v13, 8, v13')
        a('v_lshrrev_b32 v14, 4, v11')
        a('v_lshl_add_u32 v13, v14, 7, v13')
        a('v_and_b32 v14, 3, v11')
        a('v_lshl_add_u32 v13, v14, 5, v13')
        a('v_mul_u32_u24 v13, 2752, v13')
        a('v_lshl_add_u32 v%d, v12, 4, v13' % (4 + m))
        if m:
            a('v_subrev_u32 v%d, %d, v%d' % (4 + m, 1024 * m, 4 + m))
    a('v_lshlrev_b32 v7, 13, v2')
    a('v_lshl_add_u32 v7, v3, 4, v7')
    a('v_lshrrev_b32 v10, 2, v3')
    a('v_lshl_add_u32 v10, v2, 2, v10')
    a('v_mul_u32_u24 v10, 96, v10')
    a('v_and_b32 v11, 3, v1')
    a('v_lshl_add_u32 v8, v11, 3, v10')
    a('s_mul_i32 s17, s3, %d' % (DEPTH * 3072))
    a('v_add_u32 v8, s17, v8')
    a('s_mul_i32 s18, s3, %d' % (8 * 2752))
    a('s_mul_i32 s19, s15, 96')
    a('s_add_u32 s18, s18, s19')
    a('s_lshl_b32 s19, s3, 19')
    a('s_lshl_b32 s20, s14, 10')
    a('s_add_u32 s19, s19, s20')
    a('s_mul_i32 s21, s15, 96')
    a('v_lshlrev_b32 v9, 3, v2')
    a('s_waitcnt lgkmcnt(0)')
    srd(a, 8, 4, 2048 * 2752)
    srd(a, 24, 12, SZ_L2, WS_L2)
    srd(a, 28, 6, 2752)
    srd(a, 32, 12, SZ_U, WS_U)
    vm = VM(a)
    BI = 10
    ACC = 16
    AF = 64
    BR = 88

    def stage(k):
        slot = k % DEPTH
        a('s_add_u32 m0, s17, %d' % (slot * 3072))
        a('s_add_u32 s22, s18, %d' % (((k & 1) * 1024 + (k >> 1)) * 2752))
        a('s_add_u32 s23, s19, %d' % (k * 32768))
        for m in range(3):
            vm.issue('buffer_load_dwordx4 v%d, s[8:11], s22 offen offset:%d lds' % (4 + m, 1024 * m), ('A', k))
        for nt in range(4):
            vm.issue('buffer_load_dwordx4 %s, v7, s[24:27], s23 offen offset:%d' % (vr(BR + slot * 16 + nt * 4, 4), nt * 256), ('B', k))

    def aread(k):
        slot = k % DEPTH
        for mt in range(3):
            for q in range(2):
                a('ds_read_b64_tr_b16 %s, v8 offset:%d' % (vr(AF + (k & 1) * 12 + mt * 4 + q * 2, 2), slot * 3072 + q * 16 * 96 + mt * 32))

    for k in range(DEPTH):
        stage(k)
    for mt in range(3):
        vm.issue('buffer_load_dwordx2 %s, v9, s[28:31], s21 offen offset:%d' % (vr(BI + 2 * mt, 2), 32 * mt), ('bias',))
    NK = 16
    vm.wait({('A', 0)})
    aread(0)
    for k in range(NK):
        if k + 1 < NK:
            vm.wait({('A', k + 1), ('B', k)})
            aread(k + 1)
            a('s_waitcnt lgkmcnt(6)')
        else:
            vm.wait({('B', k)})
            a('s_waitcnt lgkmcnt(0)')
        slot = k % DEPTH
        for mt in range(3):
            for nt in range(4):
                d = ACC + (mt * 4 + nt) * 4
                c = '0' if k == 0 else vr(d, 4)
                a('v_mfma_f32_16x16x32_bf16 %s, %s, %s, %s' % (vr(d, 4), vr(AF + (k & 1) * 12 + mt * 4, 4), vr(BR + slot * 16 + nt * 4, 4), c))
        if k + DEPTH < NK:
            stage(k + DEPTH)
    a('s_barrier')
    a('v_lshlrev_b32 v4, 4, v1')
    a('s_mul_i32 s22, s3, 3072')
    a('v_add_u32 v5, s22, v4')
    for nt in range(4):
        for mt in range(3):
            a('ds_write_b128 v5, %s offset:%d' % (vr(ACC + (mt * 4 + nt) * 4, 4), nt * 12288 + mt * 1024))
    a('s_mul_i32 s22, s3, 12288')
    a('v_add_u32 v6, s22, v4')
    a('s_waitcnt lgkmcnt(0)')
    a('s_barrier')
    R = 88
    for src in range(4):
        for mt in range(3):
            a('ds_read_b128 %s, v6 offset:%d' % (vr(R + (src * 3 + mt) * 4, 4), src * 3072 + mt * 1024))
    a('s_lshl_b32 s22, s14, 2')
    a('s_add_u32 s22, s22, s3')
    a('s_mul_i32 s22, s22, %d' % (43 * 1024))
    a('s_mul_i32 s23, s15, 3')
    for mt in range(3):
        a('s_add_u32 s36, s23, %d' % mt)
        a('s_lshr_b32 s37, s36, 1')
        a('s_lshl_b32 s37, s37, 10')
        a('s_and_b32 s36, s36, 1')
        a('s_lshl_b32 s36, s36, 3')
        a('s_add_u32 s37, s37, s36')
        a('s_add_u32 s%d, s37, s22' % (38 + mt))
    a('s_waitcnt lgkmcnt(0)')
    vm.wait({('bias',)})
    S = 16
    for mt in range(3):
        for r in range(4):
            x0, x1, x2, x3 = [R + (src * 3 + mt) * 4 + r for src in range(4)]
            a('v_add_f32 v%d, v%d, v%d' % (x0, x0, x1))
            a('v_add_f32 v%d, v%d, v%d' % (x2, x2, x3))
            a('v_add_f32 v%d, v%d, v%d' % (S + mt * 4 + r, x0, x2))
    T = 40
    C1 = -2.0 * 1.4426950408889634 * 0.7978845608028654
    C2 = C1 * 0.044715
    a('v_mov_b32 v60, %s' % fl(C1))
    for mt in range(3):
        u = [S + mt * 4 + r for r in range(4)]
        a('v_cvt_pk_bf16_f32 v%d, v%d, v%d' % (T, u[0], u[1]))
        a('v_cvt_pk_bf16_f32 v%d, v%d, v%d' % (T + 1, u[2], u[3]))
        for h in range(2):
            a('v_lshlrev_b32 v%d, 16, v%d' % (u[2 * h], T + h))
            a('v_and_b32 v%d, 0xffff0000, v%d' % (u[2 * h + 1], T + h))
            a('v_lshlrev_b32 v%d, 16, v%d' % (T + 2, BI + 2 * mt + h))
            a('v_and_b32 v%d, 0xffff0000, v%d' % (T + 3, BI + 2 * mt + h))
            a('v_add_f32 v%d, v%d, v%d' % (u[2 * h], u[2 * h], T + 2))
            a('v_add_f32 v%d, v%d, v%d' % (u[2 * h + 1], u[2 * h + 1], T + 3))
        a('v_cvt_pk_bf16_f32 v%d, v%d, v%d' % (T, u[0], u[1]))
        a('v_cvt_pk_bf16_f32 v%d, v%d, v%d' % (T + 1, u[2], u[3]))
        for h in range(2):
            a('v_lshlrev_b32 v%d, 16, v%d' % (u[2 * h], T + h))
            a('v_and_b32 v%d, 0xffff0000, v%d' % (u[2 * h + 1], T + h))
        for r in range(4):
            a('v_mul_f32 v%d, v%d, v%d' % (T + 4 + r, u[r], u[r]))
        for r in range(4):
            a('v_fmamk_f32 v%d, v%d, %s, v60' % (T + 4 + r, T + 4 + r, fl(C2)))
        for r in range(4):
            a('v_mul_f32 v%d, v%d, v%d' % (T + 4 + r, T + 4 + r, u[r]))
        for r in range(4):
            a('v_exp_f32 v%d, v%d' % (T + 4 + r, T + 4 + r))
        for r in range(4):
            a('v_add_f32 v%d, 1.0, v%d' % (T + 4 + r, T + 4 + r))
        for r in range(4):
            a('v_rcp_f32 v%d, v%d' % (T + 4 + r, T + 4 + r))
        for r in range(4):
            a('v_mul_f32 v%d, v%d, v%d' % (u[r], u[r], T + 4 + r))
        o = 48 + 2 * mt
        a('v_cvt_pk_bf16_f32 v%d, v%d, v%d' % (o, u[0], u[1]))
        a('v_cvt_pk_bf16_f32 v%d, v%d, v%d' % (o + 1, u[2], u[3]))
        if mt == 2:
            a('s_cmp_eq_u32 s15, 28')
            a('s_cbranch_scc1 K4_END')
        a('buffer_store_dwordx2 %s, v4, s[32:35], s%d offen' % (vr(o, 2), 38 + mt))
    a.label('K4_END')
    a('s_endpgm')
    return dict(name=L, asm=a, grid=232, lds=4 * DEPTH * 3072, vgpr=88 + DEPTH * 16, sgpr=44)


def gen_k5(DEPTH=7):
    a = Asm()
    L = NAME + '_kernel'
    a.label(L)
    a('s_cmp_ge_u32 s2, 256')
    a('s_cbranch_scc1 K5_END')
    a('s_load_dwordx4 s[4:7], s[0:1], 48')
    a('s_load_dwordx2 s[12:13], s[0:1], 80')
    a('s_load_dwordx2 s[40:41], s[0:1], 64')
    a('v_and_b32 v1, 63, v0')
    a('v_lshrrev_b32 v2, 6, v0')
    a('s_and_b32 s14, s2, 7')
    a('s_lshr_b32 s15, s2, 3')
    a('v_readfirstlane_b32 s3, v2')
    a('s_and_b32 s16, s14, 1')
    a('s_lshl_b32 s16, s16, 2')
    a('s_and_b32 s17, s15, 3')
    a('s_add_u32 s16, s16, s17')
    a('s_lshr_b32 s14, s14, 1')
    a('s_lshl_b32 s14, s14, 3')
    a('s_lshr_b32 s15, s15, 2')
    a('s_add_u32 s15, s15, s14')
    a('v_lshrrev_b32 v2, 4, v1')
    a('v_and_b32 v3, 15, v1')
    a('v_lshrrev_b32 v10, 3, v1')
    a('v_bfe_u32 v11, v10, 1, 2')
    a('v_lshlrev_b32 v11, 1, v11')
    a('v_and_b32 v12, 7, v1')
    a('v_xor_b32 v11, v11, v12')
    a('v_lshlrev_b32 v11, 4, v11')
    a('v_lshl_add_u32 v4, v10, 12, v11')
    for m in range(1, 4):
        a('v_add_u32 v%d, %d, v4' % (4 + m, m * (32768 - 1024)))
    a('v_lshlrev_b32 v8, 4, v1')
    a('v_lshrrev_b32 v10, 2, v3')
    a('v_lshl_add_u32 v11, v2, 2, v10')
    a('v_bfe_u32 v9, v11, 1, 2')
    a('v_lshlrev_b32 v11, 7, v11')
    a('v_lshl_add_u32 v11, v9, 5, v11')
    a('v_and_b32 v10, 3, v1')
    a('v_lshl_add_u32 v11, v10, 3, v11')
    a('s_mul_i32 s18, s3, %d' % (DEPTH * 4096))
    a('v_add_u32 v12, s18, v11')
    for nt in range(1, 4):
        a('v_xor_b32 v%d, %d, v12' % (12 + nt, nt * 32))
    a('s_mul_i32 s19, s3, %d' % (11 * 32 * 4096))
    a('s_lshl_b32 s20, s15, 7')
    a('s_add_u32 s19, s19, s20')
    a('s_mul_i32 s20, s16, %d' % (4 * 43 * 1024))
    a('s_mul_i32 s21, s3, %d' % (11 * 1024))
    a('s_add_u32 s20, s20, s21')
    a('v_lshlrev_b32 v9, 10, v3')
    a('v_lshl_add_u32 v9, v2, 5, v9')
    a('s_lshl_b32 s21, s15, 6')
    a('s_lshl_b32 s22, s3, 4')
    a('s_add_u32 s21, s21, s22')
    a('s_lshl_b32 s22, s21, 10')
    a('s_lshl_b32 s23, s16, 7')
    a('s_add_u32 s22, s22, s23')
    a('s_lshl_b32 s21, s21, 1')
    a('v_lshlrev_b32 v10, 1, v3')
    a('s_waitcnt lgkmcnt(0)')
    srd(a, 8, 4, 1376 * 4096)
    srd(a, 24, 12, SZ_U, WS_U)
    srd(a, 28, 6, 4096)
    srd(a, 32, 12, SZ_H, WS_H)
    srd(a, 36, 40, 2048 * 1024)
    vm = VM(a)
    ACC = 24
    BF = 88
    AR = 120
    HR = 16
    NK = 11

    def stage(k):
        slot = k % DEPTH
        a('s_add_u32 m0, s18, %d' % (slot * 4096))
        a('s_add_u32 s23, s19, %d' % (k * 32 * 4096))
        a('s_add_u32 s42, s20, %d' % (k * 1024))
        if k == 10:
            a('s_cmp_eq_u32 s3, 3')
            a('s_cselect_b32 s42, 0x7000000, s42')
        for m in range(4):
            vm.issue('buffer_load_dwordx4 v%d, s[8:11], s23 offen offset:%d lds' % (4 + m, 1024 * m), ('B', k))
        for mt in range(4):
            if mt:
                a('s_add_u32 s42, s42, %d' % (43 * 1024))
            vm.issue('buffer_load_dwordx4 %s, v8, s[24:27], s42 offen' % vr(AR + slot * 16 + mt * 4, 4), ('A', k))

    def bread(k):
        slot = k % DEPTH
        for nt in range(4):
            for q in range(2):
                a('ds_read_b64_tr_b16 %s, v%d offset:%d' % (vr(BF + (k & 1) * 16 + nt * 4 + q * 2, 2), 12 + nt, slot * 4096 + q * 2048))

    for k in range(DEPTH):
        stage(k)
    vm.issue('buffer_load_dwordx4 %s, v9, s[32:35], s22 offen' % vr(HR, 4), ('h',))
    vm.issue('buffer_load_dwordx4 %s, v9, s[32:35], s22 offen offset:16' % vr(HR + 4, 4), ('h',))
    vm.issue('buffer_load_ushort v11, v10, s[28:31], s21 offen', ('h',))
    vm.wait({('B', 0)})
    bread(0)
    for k in range(NK):
        if k + 1 < NK:
            vm.wait({('B', k + 1), ('A', k)})
            bread(k + 1)
            a('s_waitcnt lgkmcnt(8)')
        else:
            vm.wait({('A', k)})
            a('s_waitcnt lgkmcnt(0)')
        slot = k % DEPTH
        for mt in range(4):
            for nt in range(4):
                d = ACC + (mt * 4 + nt) * 4
                c = '0' if k == 0 else vr(d, 4)
                a('v_mfma_f32_16x16x32_bf16 %s, %s, %s, %s' % (vr(d, 4), vr(AR + slot * 16 + mt * 4, 4), vr(BF + (k & 1) * 16 + nt * 4, 4), c))
        if k + DEPTH < NK:
            stage(k + DEPTH)
    a('s_barrier')
    a('s_lshl_b32 s23, s3, 14')
    a('v_add_u32 v5, s23, v8')
    for mt in range(4):
        for nt in range(4):
            a('ds_write_b128 v5, %s offset:%d' % (vr(ACC + (mt * 4 + nt) * 4, 4), (mt * 4 + nt) * 1024))
    a('v_lshlrev_b32 v6, 12, v2')
    a('v_lshl_add_u32 v6, v3, 4, v6')
    a('s_lshl_b32 s23, s3, 10')
    a('v_add_u32 v6, s23, v6')
    a('s_waitcnt lgkmcnt(0)')
    a('s_barrier')
    R = 88
    for src in range(4):
        for gg in range(4):
            a('ds_read_b128 %s, v6 offset:%d' % (vr(R + (src * 4 + gg) * 4, 4), src * 16384 + gg * 256))
    a('s_waitcnt lgkmcnt(0)')
    vm.wait({('h',)})
    S = 24
    for q in range(16):
        x0, x1, x2, x3 = [R + src * 16 + q for src in range(4)]
        a('v_add_f32 v%d, v%d, v%d' % (x0, x0, x1))
        a('v_add_f32 v%d, v%d, v%d' % (x2, x2, x3))
        a('v_add_f32 v%d, v%d, v%d' % (S + q, x0, x2))
    a('v_lshlrev_b32 v11, 16, v11')
    T = 48
    O = 40
    for p in range(8):
        u0, u1 = S + 2 * p, S + 2 * p + 1
        a('v_cvt_pk_bf16_f32 v%d, v%d, v%d' % (T, u0, u1))
        a('v_lshlrev_b32 v%d, 16, v%d' % (u0, T))
        a('v_and_b32 v%d, 0xffff0000, v%d' % (u1, T))
        a('v_add_f32 v%d, v%d, v11' % (u0, u0))
        a('v_add_f32 v%d, v%d, v11' % (u1, u1))
        a('v_cvt_pk_bf16_f32 v%d, v%d, v%d' % (T, u0, u1))
        a('v_lshlrev_b32 v%d, 16, v%d' % (u0, T))
        a('v_and_b32 v%d, 0xffff0000, v%d' % (u1, T))
        a('v_lshlrev_b32 v%d, 16, v%d' % (T + 1, HR + p))
        a('v_and_b32 v%d, 0xffff0000, v%d' % (T + 2, HR + p))
        a('v_add_f32 v%d, v%d, v%d' % (u0, u0, T + 1))
        a('v_add_f32 v%d, v%d, v%d' % (u1, u1, T + 2))
        a('v_cvt_pk_bf16_f32 v%d, v%d, v%d' % (O + p, u0, u1))
    a('buffer_store_dwordx4 %s, v9, s[36:39], s22 offen' % vr(O, 4))
    a('buffer_store_dwordx4 %s, v9, s[36:39], s22 offen offset:16' % vr(O + 4, 4))
    a.label('K5_END')
    a('s_endpgm')
    return dict(name=L, asm=a, grid=256, lds=max(4 * DEPTH * 4096, 65536), vgpr=120 + DEPTH * 16, sgpr=44)


def emit(kernels, path):
    out = []
    for k in kernels:
        out.append('; @launch kernel=%s grid=(%d,1,1) block=(256,1,1) lds=%d' % (k['name'], k['grid'], k['lds']))
    out.append('.amdgcn_target "amdgcn-amd-amdhsa--gfx950"')
    out.append('.text')
    done = set()
    for k in kernels:
        if k['name'] in done:
            continue
        done.add(k['name'])
        a = k['asm']
        n = a.fix_hazards()
        errs = a.check_waits(k['name'])
        for e in errs:
            print('WAITCHK', e)
        print('%s: %d instrs, %d auto wait states' % (k['name'], len(a.ins), n))
        out.append('.globl %s' % k['name'])
        out.append('.p2align 8')
        out.append('.type %s,@function' % k['name'])
        out.append(a.text())
    out.append('.section .rodata,"a"')
    done = set()
    for k in kernels:
        if k['name'] in done:
            continue
        done.add(k['name'])
        acc = (k['vgpr'] + 3) // 4 * 4
        out.append('.p2align 6')
        out.append('.amdhsa_kernel %s' % k['name'])
        out.append('  .amdhsa_next_free_vgpr %d' % (k.get('total_vgpr', k['vgpr'])))
        out.append('  .amdhsa_next_free_sgpr %d' % k['sgpr'])
        out.append('  .amdhsa_accum_offset %d' % acc)
        out.append('  .amdhsa_group_segment_fixed_size 0')
        out.append('  .amdhsa_kernarg_size 88')
        out.append('  .amdhsa_user_sgpr_count 2')
        out.append('  .amdhsa_user_sgpr_kernarg_segment_ptr 1')
        out.append('  .amdhsa_system_sgpr_workgroup_id_x 1')
        out.append('.end_amdhsa_kernel')
    open(path, 'w').write('\n'.join(out) + '\n')


if __name__ == '__main__':
    which = sys.argv[1] if len(sys.argv) > 1 else 'all'
    path = sys.argv[2] if len(sys.argv) > 2 else 'out.s'
    ks = [gen_k1(), gen_k2(), gen_k3(), gen_k4(), gen_k5()]
    emit(ks, path)
```

```python
import sys, struct
sys.path.insert(0, 'work')
from asmgen import Asm

NAME = 'sequential_preLN__spectral_gfnet__mixer_token_mlp__prompt'

WS_X1 = 0x000000; SZ_X1 = 256 * 8320
WS_WT = 0x300000; SZ_WT = 257 * 8192
WS_Y1 = 0x600000; SZ_Y1 = 257 * 8320
WS_H = 0x900000; SZ_H = 2048 * 1024
WS_L2 = 0xC00000; SZ_L2 = 2048 * 1024
WS_U = 0xF00000; SZ_U = 32 * 43 * 1024


def f2u(x):
    return struct.unpack('<I', struct.pack('<f', x))[0]


def fl(x):
    return '0x%08x' % f2u(x)


def vr(a, n=1):
    return 'v%d' % a if n == 1 else 'v[%d:%d]' % (a, a + n - 1)


def sr(a, n=1):
    return 's%d' % a if n == 1 else 's[%d:%d]' % (a, a + n - 1)


def srd(a, R, lo, size, off=0):
    if off:
        a('s_add_u32 s%d, s%d, 0x%x' % (R, lo, off))
        a('s_addc_u32 s%d, s%d, 0' % (R + 1, lo + 1))
        a('s_and_b32 s%d, s%d, 0xffff' % (R + 1, R + 1))
    else:
        a('s_mov_b32 s%d, s%d' % (R, lo))
        a('s_and_b32 s%d, s%d, 0xffff' % (R + 1, lo + 1))
    a('s_mov_b32 s%d, 0x%x' % (R + 2, size))
    a('s_mov_b32 s%d, 0x20000' % (R + 3))


STAMPS = False
WS_DBG = 0x2000000
STAMP_S = 64


class Stamper:
    def __init__(self, a, kid):
        self.a = a
        self.n = 0
        self.kid = kid

    def __call__(self):
        if not STAMPS:
            return
        a = self.a
        a('s_memtime s[%d:%d]' % (STAMP_S + 2 * self.n, STAMP_S + 2 * self.n + 1))
        a('s_waitcnt lgkmcnt(0)')
        self.n += 1

    def flush(self, wave_s='s3', vtmp=250):
        if not STAMPS:
            return
        a = self.a
        a('s_waitcnt vmcnt(0)')
        self()
        a('s_load_dwordx2 s[96:97], s[0:1], 80')
        a('s_waitcnt lgkmcnt(0)')
        srd(a, 60, 96, 0x40000, WS_DBG + self.kid * 0x40000)
        a('s_lshl_b32 s98, s2, 2')
        a('s_add_u32 s98, s98, %s' % wave_s)
        a('s_lshl_b32 s98, s98, 6')
        a('v_mov_b32 v%d, 0x40000000' % (vtmp + 1))
        for i in range(self.n):
            a('v_mov_b32 v%d, s%d' % (vtmp, STAMP_S + 2 * i))
            a('s_add_u32 s99, s98, %d' % (4 * i))
            a('v_writelane_b32 v%d, 0, 0' % (vtmp + 1))
            a('s_nop 1')
            a('buffer_store_dword v%d, v%d, s[60:63], s99 offen' % (vtmp, vtmp + 1))
            a('s_waitcnt vmcnt(0)')


def wave_sum(a, regs):
    steps = ['quad_perm:[1,0,3,2] row_mask:0xf', 'quad_perm:[2,3,0,1] row_mask:0xf', 'row_half_mirror row_mask:0xf',
             'row_mirror row_mask:0xf', 'row_bcast:15 row_mask:0xa', 'row_bcast:31 row_mask:0xc']
    for st in steps:
        for r in regs:
            a('v_add_f32_dpp v%d, v%d, v%d %s bank_mask:0xf' % (r, r, r, st))


def ln_rows(a, X, T, S, nrows, out_pk=None, keep_f32=False):
    n = nrows
    sm = [T + j for j in range(n)]
    mean = [T + n + j for j in range(n)]
    mb = [T + 2 * n + j for j in range(n)]
    sq = [T + 3 * n + j for j in range(n)]
    t1 = [T + 4 * n + j for j in range(n)]
    t2 = [T + 5 * n + j for j in range(n)]
    for j in range(n):
        a('v_add_f32 v%d, v%d, v%d' % (sm[j], X[j][0], X[j][1]))
        a('v_add_f32 v%d, v%d, v%d' % (t1[j], X[j][2], X[j][3]))
        a('v_add_f32 v%d, v%d, v%d' % (t2[j], X[j][4], X[j][5]))
        a('v_add_f32 v%d, v%d, v%d' % (sq[j], X[j][6], X[j][7]))
    for j in range(n):
        a('v_add_f32 v%d, v%d, v%d' % (sm[j], sm[j], t1[j]))
        a('v_add_f32 v%d, v%d, v%d' % (t2[j], t2[j], sq[j]))
    for j in range(n):
        a('v_add_f32 v%d, v%d, v%d' % (sm[j], sm[j], t2[j]))
    wave_sum(a, sm)
    for j in range(n):
        a('v_readlane_b32 s%d, v%d, 63' % (S + j, sm[j]))
    for j in range(n):
        a('v_mov_b32 v%d, s%d' % (mean[j], S + j))
    for j in range(n):
        a('v_mul_f32 v%d, %s, v%d' % (mean[j], fl(1.0 / 512), mean[j]))
    for j in range(n):
        a('v_cvt_pk_bf16_f32 v%d, v%d, v%d' % (mb[j], mean[j], mean[j]))
    for j in range(n):
        a('v_and_b32 v%d, 0xffff0000, v%d' % (mb[j], mb[j]))
    for k in range(8):
        for j in range(n):
            a('v_sub_f32 v%d, v%d, v%d' % (X[j][k], X[j][k], mb[j]))
    for j in range(n):
        a('v_mul_f32 v%d, v%d, v%d' % (sq[j], X[j][0], X[j][0]))
        a('v_mul_f32 v%d, v%d, v%d' % (t1[j], X[j][1], X[j][1]))
    for k in range(2, 8, 2):
        for j in range(n):
            a('v_fmac_f32 v%d, v%d, v%d' % (sq[j], X[j][k], X[j][k]))
            a('v_fmac_f32 v%d, v%d, v%d' % (t1[j], X[j][k + 1], X[j][k + 1]))
    for j in range(n):
        a('v_add_f32 v%d, v%d, v%d' % (sq[j], sq[j], t1[j]))
    wave_sum(a, sq)
    for j in range(n):
        for k in range(0, 8, 2):
            a('v_cvt_pk_bf16_f32 v%d, v%d, v%d' % (X[j][k + 1], X[j][k], X[j][k + 1]))
    for j in range(n):
        a('v_readlane_b32 s%d, v%d, 63' % (S + j, sq[j]))
    for j in range(n):
        for k in range(0, 8, 2):
            a('v_lshlrev_b32 v%d, 16, v%d' % (X[j][k], X[j][k + 1]))
            a('v_and_b32 v%d, 0xffff0000, v%d' % (X[j][k + 1], X[j][k + 1]))
    for j in range(n):
        a('v_sub_f32 v%d, v%d, v%d' % (t1[j], mean[j], mb[j]))
        a('v_mov_b32 v%d, s%d' % (sq[j], S + j))
    for j in range(n):
        a('v_mul_f32 v%d, v%d, v%d' % (t1[j], t1[j], t1[j]))
        a('v_mul_f32 v%d, %s, v%d' % (sq[j], fl(1.0 / 512), sq[j]))
    for j in range(n):
        a('v_sub_f32 v%d, v%d, v%d' % (sq[j], sq[j], t1[j]))
    for j in range(n):
        a('v_max_f32 v%d, 0, v%d' % (sq[j], sq[j]))
    for j in range(n):
        a('v_cvt_pk_bf16_f32 v%d, v%d, v%d' % (sq[j], sq[j], sq[j]))
    for j in range(n):
        a('v_and_b32 v%d, 0xffff0000, v%d' % (sq[j], sq[j]))
    for j in range(n):
        a('v_add_f32 v%d, %s, v%d' % (sq[j], fl(1e-5), sq[j]))
    for j in range(n):
        a('v_cvt_pk_bf16_f32 v%d, v%d, v%d' % (sq[j], sq[j], sq[j]))
    for j in range(n):
        a('v_and_b32 v%d, 0xffff0000, v%d' % (sq[j], sq[j]))
    for j in range(n):
        a('v_sqrt_f32 v%d, v%d' % (sq[j], sq[j]))
    for j in range(n):
        a('v_cvt_pk_bf16_f32 v%d, v%d, v%d' % (sq[j], sq[j], sq[j]))
    for j in range(n):
        a('v_and_b32 v%d, 0xffff0000, v%d' % (sq[j], sq[j]))
    for j in range(n):
        a('v_rcp_f32 v%d, v%d' % (sq[j], sq[j]))
    for k in range(8):
        for j in range(n):
            a('v_mul_f32 v%d, v%d, v%d' % (X[j][k], X[j][k], sq[j]))
    for j in range(n):
        for k in range(0, 8, 2):
            a('v_cvt_pk_bf16_f32 v%d, v%d, v%d' % (out_pk[j][k // 2], X[j][k], X[j][k + 1]))
    if keep_f32:
        for j in range(n):
            for k in range(0, 8, 2):
                a('v_lshlrev_b32 v%d, 16, v%d' % (X[j][k], out_pk[j][k // 2]))
                a('v_and_b32 v%d, 0xffff0000, v%d' % (X[j][k + 1], out_pk[j][k // 2]))


def cmul_tw(a, re, im, c, s, ore, oim, sign):
    a('v_mul_f32 v%d, v%d, v%d' % (ore, re, c))
    a('v_mul_f32 v%d, v%d, v%d' % (oim, im, c))
    if sign < 0:
        a('v_fmac_f32 v%d, v%d, v%d' % (ore, im, s))
        a('v_fma_f32 v%d, -v%d, v%d, v%d' % (oim, re, s, oim))
    else:
        a('v_fma_f32 v%d, -v%d, v%d, v%d' % (ore, im, s, ore))
        a('v_fmac_f32 v%d, v%d, v%d' % (oim, re, s))


def gen_k1():
    a = Asm()
    L = 'k1_kernel'
    a.label(L)
    a('s_cmp_ge_u32 s2, 256')
    a('s_cbranch_scc1 K1_TR')
    st = Stamper(a, 1)
    st()
    a('s_load_dwordx2 s[4:5], s[0:1], 0')
    a('s_load_dwordx2 s[6:7], s[0:1], 80')
    a('v_and_b32 v1, 63, v0')
    a('v_lshrrev_b32 v2, 6, v0')
    a('s_lshr_b32 s12, s2, 3')
    a('v_readfirstlane_b32 s3, v2')
    a('s_and_b32 s13, s2, 7')
    a('s_lshl_b32 s13, s13, 8')
    a('s_add_u32 s13, s13, s12')
    a('v_lshlrev_b32 v3, 4, v1')
    a('s_lshl_b32 s14, s3, 6')
    a('s_add_u32 s13, s13, s14')
    a('s_lshl_b32 s13, s13, 10')
    a('s_add_u32 s14, s13, 32768')
    a('s_waitcnt lgkmcnt(0)')
    srd(a, 8, 4, 2048 * 1024)
    a('buffer_load_dwordx4 v[4:7], v3, s[8:11], s13 offen')
    a('buffer_load_dwordx4 v[8:11], v3, s[8:11], s14 offen')
    st()
    srd(a, 16, 6, SZ_X1, WS_X1)
    a('s_mul_i32 s15, s2, 8320')
    G, N, FG, FN = 12, 13, 14, 15
    a('v_lshrrev_b32 v%d, 4, v1' % G)
    a('v_and_b32 v%d, 15, v1' % N)
    a('v_cvt_f32_u32 v%d, v%d' % (FG, G))
    a('v_cvt_f32_u32 v%d, v%d' % (FN, N))
    B1 = 16
    T = 96
    a('v_mul_f32 v%d, v%d, v%d' % (T, FN, FG))
    a('v_mul_f32 v%d, 0.125*1, v%d'.replace('0.125*1', fl(0.125)) % (T, T))
    for o in range(1, 4):
        a('v_fmamk_f32 v%d, v%d, %s, v%d' % (T + o, FN, fl(o / 32.0), T))
    for o in range(4):
        a('v_cos_f32 v%d, v%d' % (T + 4 + o, T + o))
        a('v_sin_f32 v%d, v%d' % (T + 8 + o, T + o))
    a('v_and_b32 v%d, 1, v1' % (T + 12))
    a('v_mul_u32_u24 v%d, 0x8000, v%d' % (T + 12, T + 12))
    a('v_lshl_or_b32 v%d, v%d, 16, v%d' % (T + 12, T + 12, T + 12))
    a('v_cvt_pk_bf16_f32 v%d, v%d, v%d' % (B1 + 0, T + 4, T + 5))
    a('v_cvt_pk_bf16_f32 v%d, v%d, v%d' % (B1 + 1, T + 6, T + 7))
    a('v_cvt_pk_bf16_f32 v%d, -v%d, -v%d' % (B1 + 4, T + 8, T + 9))
    a('v_cvt_pk_bf16_f32 v%d, -v%d, -v%d' % (B1 + 5, T + 10, T + 11))
    for cs in range(2):
        for rr in range(2):
            a('v_xor_b32 v%d, v%d, v%d' % (B1 + cs * 4 + 2 + rr, B1 + cs * 4 + rr, T + 12))
    for q in range(8):
        a('v_xor_b32 v%d, 0x80000000, v%d' % (B1 + 8 + q, B1 + q))
    TC, TS = 32, 40
    a('v_mul_f32 v%d, %s, v%d' % (T, fl(1.0 / 512), FN))
    a('v_add_f32 v%d, %s, v%d' % (T + 1, fl(16.0 / 512), T))
    a('v_mul_f32 v%d, 4.0, v%d' % (T + 2, FG))
    for r in range(1, 4):
        a('v_add_f32 v%d, %s, v%d' % (T + 2 + r, fl(float(r)), T + 2))
    for hf in range(2):
        for r in range(4):
            a('v_mul_f32 v%d, v%d, v%d' % (T + 6 + hf * 4 + r, T + hf, T + 2 + r))
    for q in range(8):
        a('v_cos_f32 v%d, v%d' % (TC + q, T + 6 + q))
        a('v_sin_f32 v%d, v%d' % (TS + q, T + 6 + q))
    A3 = 48
    a('v_lshrrev_b32 v%d, 1, v%d' % (T, N))
    a('v_cvt_f32_u32 v%d, v%d' % (T, T))
    a('v_mul_f32 v%d, %s, v%d' % (T, fl(1.0 / 16), T))
    a('v_and_b32 v%d, 1, v%d' % (T + 1, N))
    a('v_cvt_f32_u32 v%d, v%d' % (T + 1, T + 1))
    a('v_mul_f32 v%d, %s, v%d' % (T + 1, fl(0.25), T + 1))
    for rr in range(4):
        a('v_fma_f32 v%d, v%d, v%d, v%d' % (T + 6 + rr, T, T + 2 + rr, T + 1))
    for rr in range(4):
        a('v_cos_f32 v%d, v%d' % (T + 10 + rr, T + 6 + rr))
        a('v_sin_f32 v%d, v%d' % (T + 14 + rr, T + 6 + rr))
    for rr in range(4):
        a('v_cvt_pk_bf16_f32 v%d, v%d, v%d' % (A3 + rr, T + 10 + rr, T + 14 + rr))
    G8 = 52
    for rr in range(4):
        a('v_mov_b32 v%d, 0x%x' % (G8 + rr, 0x3F80 if rr % 2 == 0 else 0xBF80))
    a('s_lshl_b32 s20, s3, 3')
    a('v_lshlrev_b32 v56, 5, v%d' % N)
    a('v_lshl_add_u32 v56, v%d, 11, v56' % G)
    a('v_add_u32 v56, s20, v56')
    a('s_add_u32 s21, s20, 8192')
    a('v_mov_b32 v57, 0x40000000')
    a('v_writelane_b32 v57, s21, 0')
    a('s_lshl_b32 s22, s3, 11')
    a('v_add_u32 v58, s22, v3')
    a('v_lshlrev_b32 v59, 3, v1')
    a('v_add_u32 v59, s22, v59')
    st()
    a('s_waitcnt vmcnt(0)')
    st()
    X = [[64 + k for k in range(8)], [72 + k for k in range(8)]]
    for j in range(2):
        for k in range(4):
            a('v_lshlrev_b32 v%d, 16, v%d' % (X[j][2 * k], 4 + 4 * j + k))
            a('v_and_b32 v%d, 0xffff0000, v%d' % (X[j][2 * k + 1], 4 + 4 * j + k))
    ln_rows(a, X, T, 24, 2, out_pk=[[4, 5, 6, 7], [8, 9, 10, 11]])
    st()
    a('ds_write_b128 v58, v[4:7]')
    a('ds_write_b128 v58, v[8:11] offset:1024')
    a('ds_read_b64_tr_b16 v[60:61], v59')
    a('ds_read_b64_tr_b16 v[62:63], v59 offset:512')
    a('ds_read_b64_tr_b16 v[64:65], v59 offset:1024')
    a('ds_read_b64_tr_b16 v[66:67], v59 offset:1536')
    D1 = 68
    A = [60, 64]
    for j in range(2):
        a('s_waitcnt lgkmcnt(%d)' % (2 - 2 * j))
        for hf in range(2):
            for cs in range(2):
                d = D1 + ((j * 2 + hf) * 2 + cs) * 4
                a('v_mfma_f32_16x16x32_bf16 %s, %s, %s, 0' % (vr(d, 4), vr(A[j], 4), vr(B1 + hf * 8 + cs * 4, 4)))
    P = 100
    for j in range(2):
        for hf in range(2):
            dre = D1 + ((j * 2 + hf) * 2 + 0) * 4
            dim = dre + 4
            for r in range(4):
                cmul_tw(a, dre + r, dim + r, TC + hf * 4 + r, TS + hf * 4 + r, 116 + 2 * r, 117 + 2 * r, -1)
            for r in range(4):
                a('v_cvt_pk_bf16_f32 v%d, v%d, v%d' % (P + (j * 2 + hf) * 4 + r, 116 + 2 * r, 117 + 2 * r))
    D3 = 68
    for j in range(2):
        for hf in range(2):
            a('v_mfma_f32_16x16x32_bf16 %s, %s, %s, 0' % (vr(D3 + (j * 2 + hf) * 4, 4), vr(A3, 4), vr(P + (j * 2 + hf) * 4, 4)))
    for j in range(2):
        a('v_mfma_f32_16x16x32_bf16 %s, %s, %s, 0' % (vr(D3 + 16 + j * 4, 4), vr(G8, 4), vr(P + (j * 2) * 4, 4)))
    st()
    O = 4
    for hf in range(2):
        for p in range(2):
            o = O + (hf * 2 + p) * 2
            for j in range(2):
                d = D3 + (j * 2 + hf) * 4 + 2 * p
                a('v_cvt_pk_bf16_f32 v%d, v%d, v%d' % (o + j, d, d + 1))
            a('buffer_store_dwordx2 %s, v56, s[16:19], s15 offen offset:%d' % (vr(o, 2), hf * 512 + p * 1024))
    for j in range(2):
        a('v_cvt_pk_bf16_f32 v%d, v%d, 0' % (60 + j, D3 + 16 + j * 4))
    a('buffer_store_dwordx2 v[60:61], v57, s[16:19], s15 offen')
    st()
    st.flush()
    a('s_endpgm')
    a.label('K1_TR')
    a('s_cmp_ge_u32 s2, 320')
    a('s_cbranch_scc1 K1_END')
    a('s_load_dwordx4 s[4:7], s[0:1], 8')
    a('s_load_dwordx2 s[12:13], s[0:1], 80')
    a('s_sub_u32 s3, s2, 256')
    a('s_and_b32 s14, s3, 7')
    a('s_lshr_b32 s15, s3, 3')
    a('s_lshl_b32 s20, s14, 3')
    a('s_lshl_b32 s21, s15, 8')
    a('s_add_u32 s20, s20, s21')
    a('s_mul_i32 s20, s20, 514')
    for r in range(1, 4):
        a('s_add_u32 s%d, s20, %d' % (20 + r, r * 64 * 514))
    a('v_lshlrev_b32 v1, 4, v0')
    a('v_and_b32 v2, 3, v0')
    a('v_mul_u32_u24 v2, %d, v2' % (64 * 514))
    a('v_add_u32 v2, 4096, v2')
    a('s_waitcnt lgkmcnt(0)')
    srd(a, 8, 4, 2048 * 514)
    srd(a, 16, 6, 2048 * 514)
    srd(a, 24, 12, SZ_WT, WS_WT)
    for r in range(4):
        a('buffer_load_dwordx4 %s, v1, s[8:11], s%d offen' % (vr(4 + 4 * r, 4), 20 + r))
    for r in range(4):
        a('buffer_load_dwordx4 %s, v1, s[16:19], s%d offen' % (vr(20 + 4 * r, 4), 20 + r))
    a('buffer_load_dwordx4 v[36:39], v2, s[8:11], s20 offen')
    a('buffer_load_dwordx4 v[40:43], v2, s[16:19], s20 offen')
    RUN = 4112
    a('v_and_b32 v3, 3, v0')
    a('v_mul_u32_u24 v3, %d, v3' % RUN)
    a('v_add_u32 v3, 4096, v3')
    a('v_and_b32 v45, 7, v0')
    a('v_bfe_u32 v46, v0, 3, 3')
    a('v_lshrrev_b32 v47, 6, v0')
    a('v_lshrrev_b32 v48, 1, v47')
    a('v_lshlrev_b32 v48, 7, v48')
    a('v_lshl_add_u32 v48, v46, 4, v48')
    a('v_and_b32 v47, 1, v47')
    a('v_lshl_add_u32 v48, v47, 3, v48')
    a('v_mul_u32_u24 v49, 514, v45')
    a('v_lshl_add_u32 v49, v48, 1, v49')
    a('v_lshlrev_b32 v50, 13, v48')
    a('v_lshl_add_u32 v50, v45, 4, v50')
    a('s_lshr_b32 s28, s14, 1')
    a('s_lshl_b32 s28, s28, 11')
    a('s_lshr_b32 s29, s15, 2')
    a('s_lshl_b32 s29, s29, 10')
    a('s_add_u32 s28, s28, s29')
    a('s_and_b32 s29, s15, 3')
    a('s_lshl_b32 s29, s29, 8')
    a('s_add_u32 s28, s28, s29')
    a('s_and_b32 s29, s14, 1')
    a('s_lshl_b32 s29, s29, 7')
    a('s_add_u32 s28, s28, s29')
    for r in range(8):
        a('s_waitcnt vmcnt(%d)' % (9 - r))
        a('ds_write_b128 v1, %s offset:%d' % (vr(4 + 4 * r, 4), r * RUN))
    a('s_waitcnt vmcnt(0)')
    a('v_cmp_gt_u32 vcc, 4, v0')
    a('s_and_saveexec_b64 s[30:31], vcc')
    a('s_cbranch_execz K1_TR2')
    a('ds_write_b128 v3, v[36:39]')
    a('ds_write_b128 v3, v[40:43] offset:%d' % (4 * RUN))
    a.label('K1_TR2')
    a('s_mov_b64 exec, s[30:31]')
    a('s_waitcnt lgkmcnt(0)')
    a('s_barrier')
    for it in range(9):
        koff = it if it < 8 else None
        if it == 8:
            a('v_add_u32 v49, 512, v49')
            a('v_add_u32 v50, 0x%x, v50' % (256 * 8192))
            koff = 0
        base = 4 + (it % 2) * 12
        for r in range(4):
            a('ds_read_u16 v%d, v49 offset:%d' % (base + 2 * r, r * RUN + koff * 2))
            a('ds_read_u16 v%d, v49 offset:%d' % (base + 2 * r + 1, (4 + r) * RUN + koff * 2))
        a('s_waitcnt lgkmcnt(0)')
        o = 28 + (it % 2) * 4
        for r in range(4):
            a('v_lshl_or_b32 v%d, v%d, 16, v%d' % (o + r, base + 2 * r + 1, base + 2 * r))
        if it < 8:
            a('s_add_u32 s29, s28, %d' % (it * 8192))
        else:
            a('s_mov_b32 s29, s28')
        a('buffer_store_dwordx4 %s, v50, s[24:27], s29 offen' % vr(o, 4))
    a.label('K1_END')
    a('s_endpgm')
    return dict(name=L, asm=a, grid=320, lds=8 * 4112 + 1024, vgpr=124, sgpr=34)

def gen_k2():
    a = Asm()
    L = 'k2_kernel'
    a.label(L)
    a('s_cmp_ge_u32 s2, 257')
    a('s_cbranch_scc1 K2_END')
    st = Stamper(a, 2)
    st()
    a('s_load_dwordx2 s[4:5], s[0:1], 80')
    a('v_and_b32 v1, 63, v0')
    a('v_lshrrev_b32 v2, 6, v0')
    a('s_and_b32 s12, s2, 7')
    a('s_lshl_b32 s12, s12, 5')
    a('v_readfirstlane_b32 s3, v2')
    a('s_lshr_b32 s13, s2, 3')
    a('s_add_u32 s12, s12, s13')
    a('s_cmp_eq_u32 s2, 256')
    a('s_cselect_b32 s12, 256, s12')
    G, N = 2, 3
    a('v_lshrrev_b32 v2, 4, v1')
    a('v_and_b32 v3, 15, v1')
    a('v_lshlrev_b32 v4, 3, v3')
    a('v_lshrrev_b32 v5, 1, v2')
    a('v_add_u32 v4, v4, v5')
    a('v_mul_u32_u24 v4, 8320, v4')
    a('v_and_b32 v5, 1, v2')
    a('v_lshl_add_u32 v4, v5, 4, v4')
    a('s_lshl_b32 s14, s3, 1')
    a('s_mul_i32 s14, s14, 8320')
    a('s_lshl_b32 s15, s12, 5')
    a('s_add_u32 s14, s14, s15')
    a('s_add_u32 s15, s14, %d' % (128 * 8320))
    a('s_lshl_b32 s16, s3, 11')
    a('v_lshlrev_b32 v5, 4, v1')
    a('s_lshl_b32 s17, s12, 13')
    a('s_add_u32 s17, s17, s16')
    a('s_waitcnt lgkmcnt(0)')
    srd(a, 8, 4, SZ_X1, WS_X1)
    a('s_mov_b32 m0, s16')
    srd(a, 20, 4, SZ_WT, WS_WT)
    a('buffer_load_dwordx4 v4, s[8:11], s14 offen lds')
    a('s_add_u32 m0, s16, 1024')
    srd(a, 24, 4, SZ_Y1, WS_Y1)
    a('buffer_load_dwordx4 v4, s[8:11], s15 offen lds')
    W = 112
    a('buffer_load_dwordx4 %s, v5, s[20:23], s17 offen' % vr(W, 4))
    a('buffer_load_dwordx4 %s, v5, s[20:23], s17 offen offset:1024' % vr(W + 4, 4))
    st()
    TAB = 16384
    T = 176
    a('v_cvt_f32_u32 v%d, v1' % T)
    a('v_mul_f32 v%d, %s, v%d' % (T, fl(1.0 / 64), T))
    a('v_cos_f32 v%d, v%d' % (T + 1, T))
    a('v_sin_f32 v%d, v%d' % (T + 2, T))
    a('s_lshl_b32 s18, s3, 9')
    a('s_add_u32 s18, s18, %d' % TAB)
    a('v_mov_b32 v6, s18')
    a('v_cvt_pk_bf16_f32 v%d, v%d, v%d' % (T + 1, T + 1, T + 2))
    a('v_lshl_add_u32 v%d, v1, 2, v6' % (T + 2))
    a('ds_write2st64_b32 v%d, v%d, v%d offset0:0 offset1:1' % (T + 2, T + 1, T + 1))
    F64, F32 = 16, 48
    a('s_mov_b32 s19, 0xff')
    a('s_lshl_b32 s28, s3, 4')
    a('v_add_u32 v7, s28, v3')
    a('v_lshlrev_b32 v8, 2, v7')
    a('v_lshlrev_b32 v9, 2, v2')
    a('v_mul_u32_u24 v10, v9, v8')
    for ks in range(2):
        for rr in range(4):
            t = T + 4 + ks * 4 + rr
            a('v_mad_u32_u24 v%d, v8, %d, v10' % (t, 16 * ks + rr))
            a('v_and_or_b32 v%d, v%d, s19, v6' % (t, t))
    a('v_lshlrev_b32 v11, 3, v3')
    a('v_mul_u32_u24 v12, v9, v11')
    for rr in range(4):
        t = T + 12 + rr
        a('v_mad_u32_u24 v%d, v11, %d, v12' % (t, rr))
        a('v_and_or_b32 v%d, v%d, s19, v6' % (t, t))
    for ks in range(2):
        for rr in range(4):
            t = T + 4 + ks * 4 + rr
            a('ds_read_b32 v%d, v%d' % (F64 + ks * 8 + rr, t))
            a('ds_read_b32 v%d, v%d offset:64' % (F64 + ks * 8 + 4 + rr, t))
    for rr in range(4):
        t = T + 12 + rr
        a('ds_read_b32 v%d, v%d' % (F32 + rr, t))
        a('ds_read_b32 v%d, v%d offset:64' % (F32 + 4 + rr, t))
    T1C, T1S, T2C, T2S = 80, 88, 96, 104
    a('v_cvt_f32_u32 v%d, v7' % T)
    a('v_mul_f32 v%d, %s, v%d' % (T, fl(1.0 / 2048), T))
    a('v_cvt_f32_u32 v%d, v9' % (T + 1))
    for mt in range(2):
        for r in range(4):
            q = mt * 4 + r
            a('v_add_f32 v%d, %s, v%d' % (T + 2, fl(float(16 * mt + r)), T + 1))
            a('v_mul_f32 v%d, v%d, v%d' % (T + 2, T + 2, T))
            a('v_cos_f32 v%d, v%d' % (T1C + q, T + 2))
            a('v_sin_f32 v%d, v%d' % (T1S + q, T + 2))
    a('v_add_u32 v13, s28, v9')
    a('v_cvt_f32_u32 v%d, v13' % (T + 1))
    a('v_cvt_f32_u32 v%d, v3' % T)
    a('v_mul_f32 v%d, %s, v%d' % (T, fl(1.0 / 2048), T))
    a('v_add_f32 v%d, %s, v%d' % (T + 3, fl(16.0 / 2048), T))
    for bt in range(2):
        for r in range(4):
            q = bt * 4 + r
            a('v_add_f32 v%d, %s, v%d' % (T + 2, fl(float(r)), T + 1))
            a('v_mul_f32 v%d, v%d, v%d' % (T + 2, T + 2, T + 3 * bt))
            a('v_cos_f32 v%d, v%d' % (T2C + q, T + 2))
            a('v_sin_f32 v%d, v%d' % (T2S + q, T + 2))
    a('v_and_b32 v14, 1, v1')
    a('v_mul_u32_u24 v14, 0x8000, v14')
    a('v_lshl_or_b32 v14, v14, 16, v14')
    a('s_waitcnt lgkmcnt(0)')
    for q in range(16):
        a('v_xor_b32 v%d, v%d, v14' % (F64 + 16 + q, F64 + q))
    for q in range(8):
        a('v_xor_b32 v%d, v%d, v14' % (F32 + 8 + q, F32 + q))
    for K in range(2):
        for q in range(8):
            src = F32 + K * 8 + q
            dst = F32 + 16 + K * 8 + q
            if (q & 1):
                a('v_xor_b32 v%d, 0x80008000, v%d' % (dst, src))
            else:
                a('v_mov_b32 v%d, v%d' % (dst, src))
    a('v_lshlrev_b32 v15, 8, v3')
    a('v_lshl_add_u32 v15, v2, 4, v15')
    a('s_mul_i32 s29, s12, 8320')
    a('s_lshl_b32 s30, s3, 6')
    a('s_add_u32 s29, s29, s30')
    a('s_add_u32 s30, s29, 4096')
    FR = 120
    D = 152
    P = 168
    st()
    a('s_waitcnt vmcnt(2)')
    st()
    a('s_barrier')
    st()
    for ks in range(4):
        for mt in range(2):
            a('ds_read_b128 %s, v5 offset:%d' % (vr(FR + (ks * 2 + mt) * 4, 4), (ks * 2 + mt) * 1024))
    for ks in range(4):
        a('s_waitcnt lgkmcnt(%d)' % (6 - 2 * ks))
        for mt in range(2):
            for ro in range(2):
                d = D + (mt * 2 + ro) * 4
                c = '0' if ks == 0 else vr(d, 4)
                a('v_mfma_f32_16x16x32_bf16 %s, %s, %s, %s' % (vr(d, 4), vr(FR + (ks * 2 + mt) * 4, 4), vr(F64 + ks * 8 + ro * 4, 4), c))

    def twpack(TC, TS):
        for mt in range(2):
            dre = D + (mt * 2) * 4
            dim = dre + 4
            for r in range(4):
                cmul_tw(a, dre + r, dim + r, TC + mt * 4 + r, TS + mt * 4 + r, T + 2 * r, T + 2 * r + 1, -1)
            for r in range(4):
                a('v_cvt_pk_bf16_f32 v%d, v%d, v%d' % (P + mt * 4 + r, T + 2 * r, T + 2 * r + 1))
    twpack(T1C, T1S)
    for mt in range(2):
        for et in range(2):
            for ro in range(2):
                d = D + (et * 2 + ro) * 4
                c = '0' if mt == 0 else vr(d, 4)
                a('v_mfma_f32_16x16x32_bf16 %s, %s, %s, %s' % (vr(d, 4), vr(F32 + (et * 2 + mt) * 8 + ro * 4, 4), vr(P + mt * 4, 4), c))
    st()
    a('s_waitcnt vmcnt(0)')
    st()
    for t in range(2):
        for r in range(4):
            wv = W + t * 4 + r
            xr, xi = D + (t * 2) * 4 + r, D + (t * 2 + 1) * 4 + r
            a('v_lshlrev_b32 v%d, 16, v%d' % (T + 8, wv))
            a('v_and_b32 v%d, 0xffff0000, v%d' % (T + 9, wv))
            cmul_tw(a, xr, xi, T + 8, T + 9, T + 10, T + 11, +1)
            a('v_cvt_pk_bf16_f32 v%d, v%d, -v%d' % (P + t * 4 + r, T + 10, T + 11))
    for t in range(2):
        for bt in range(2):
            for ro in range(2):
                d = D + (bt * 2 + ro) * 4
                c = '0' if t == 0 else vr(d, 4)
                a('v_mfma_f32_16x16x32_bf16 %s, %s, %s, %s' % (vr(d, 4), vr(P + t * 4, 4), vr(F32 + (bt * 2 + t) * 8 + ro * 4, 4), c))
    twpack(T2C, T2S)
    EX = 8192
    a('s_add_u32 s31, s16, %d' % EX)
    a('v_add_u32 v4, s31, v5')
    a('ds_write_b128 v4, %s' % vr(P, 4))
    a('ds_write_b128 v4, %s offset:1024' % vr(P + 4, 4))
    a('s_waitcnt lgkmcnt(0)')
    st()
    a('s_barrier')
    st()
    for ks in range(4):
        for nt in range(2):
            a('ds_read_b128 %s, v5 offset:%d' % (vr(FR + (ks * 2 + nt) * 4, 4), EX + (ks * 2 + nt) * 1024))
    for ks in range(4):
        a('s_waitcnt lgkmcnt(%d)' % (6 - 2 * ks))
        for nt in range(2):
            for ro in range(2):
                d = D + (nt * 2 + ro) * 4
                c = '0' if ks == 0 else vr(d, 4)
                a('v_mfma_f32_16x16x32_bf16 %s, %s, %s, %s' % (vr(d, 4), vr(F64 + ks * 8 + ro * 4, 4), vr(FR + (ks * 2 + nt) * 4, 4), c))
    for nt in range(2):
        dre = D + nt * 8
        for r in range(4):
            a('v_cvt_pk_bf16_f32 v%d, v%d, -v%d' % (P + nt * 4 + r, dre + r, dre + 4 + r))
        a('buffer_store_dwordx4 %s, v15, s[24:27], s%d offen' % (vr(P + nt * 4, 4), 29 + nt))
    st()
    st.flush()
    a.label('K2_END')
    a('s_endpgm')
    return dict(name=L, asm=a, grid=257, lds=16384 + 2048, vgpr=192, sgpr=34)

def gen_k3():
    a = Asm()
    L = 'k3_kernel'
    a.label(L)
    a('s_cmp_ge_u32 s2, 256')
    a('s_cbranch_scc1 K3_END')
    st = Stamper(a, 3)
    st()
    a('s_load_dwordx2 s[4:5], s[0:1], 80')
    a('s_load_dwordx2 s[6:7], s[0:1], 0')
    a('v_and_b32 v1, 63, v0')
    a('v_lshrrev_b32 v2, 6, v0')
    a('s_and_b32 s12, s2, 7')
    a('s_lshr_b32 s13, s2, 3')
    a('v_readfirstlane_b32 s3, v2')
    a('s_lshl_b32 s12, s12, 2')
    a('s_lshr_b32 s14, s13, 3')
    a('s_add_u32 s12, s12, s14')
    a('s_and_b32 s13, s13, 7')
    a('s_lshl_b32 s14, s12, 8')
    a('s_lshl_b32 s15, s13, 5')
    a('s_add_u32 s14, s14, s15')
    a('v_mul_u32_u24 v4, 8320, v0')
    a('s_lshl_b32 s15, s13, 8')
    a('s_lshl_b32 s16, s3, 6')
    a('s_add_u32 s15, s15, s16')
    a('s_add_u32 s15, s15, s12')
    a('s_lshl_b32 s15, s15, 10')
    a('s_add_u32 s16, s15, 32768')
    a('v_lshrrev_b32 v2, 4, v1')
    a('v_and_b32 v3, 15, v1')
    a('v_lshlrev_b32 v5, 5, v3')
    a('v_lshl_add_u32 v5, v2, 3, v5')
    a('s_lshl_b32 s17, s3, 3')
    a('s_add_u32 s17, s17, s14')
    a('s_waitcnt lgkmcnt(0)')
    srd(a, 8, 4, SZ_Y1, WS_Y1)
    a('buffer_load_dwordx4 v[8:11], v4, s[8:11], s14 offen')
    a('buffer_load_dwordx4 v[12:15], v4, s[8:11], s14 offen offset:16')
    srd(a, 20, 6, 2048 * 1024)
    XR = 16
    for j in range(2):
        for t in range(2):
            a('buffer_load_dwordx2 %s, v5, s[20:23], s%d offen offset:%d' % (vr(XR + (j * 2 + t) * 2, 2), 15 + j, t * 512))
    a('s_add_u32 s24, s4, 0x%x' % WS_Y1)
    a('s_addc_u32 s25, s5, 0')
    a('s_add_u32 s24, s24, s17')
    a('s_addc_u32 s25, s25, 0')
    a('s_load_dwordx2 s[26:27], s[24:25], 0')
    a('s_add_u32 s42, s24, 0x%x' % (256 * 8320))
    a('s_addc_u32 s43, s25, 0')
    a('s_load_dwordx2 s[28:29], s[42:43], 0')
    srd(a, 32, 4, SZ_H, WS_H)
    srd(a, 36, 4, SZ_L2, WS_L2)
    st()
    T = 96
    FG, FN = 6, 7
    a('v_cvt_f32_u32 v%d, v2' % FG)
    a('v_cvt_f32_u32 v%d, v3' % FN)
    B1 = 24
    a('v_mul_f32 v%d, %s, v%d' % (T, fl(-1.0 / 16), FN))
    a('v_add_f32 v%d, v%d, v%d' % (T + 1, FG, FG))
    a('v_add_f32 v%d, 1.0, v%d' % (T + 2, T + 1))
    a('v_mul_f32 v%d, v%d, v%d' % (T + 3, T, T + 1))
    a('v_mul_f32 v%d, v%d, v%d' % (T + 4, T, T + 2))
    a('v_add_f32 v%d, %s, v%d' % (T + 5, fl(0.25), T + 3))
    a('v_add_f32 v%d, %s, v%d' % (T + 6, fl(0.25), T + 4))
    for q in range(4):
        a('v_cos_f32 v%d, v%d' % (T + 8 + q, T + 3 + q))
        a('v_sin_f32 v%d, v%d' % (T + 12 + q, T + 3 + q))
    for q in range(4):
        a('v_cvt_pk_bf16_f32 v%d, v%d, v%d' % (B1 + q, T + 8 + q, T + 12 + q))
    TC, TS = 28, 36
    a('v_mul_f32 v%d, %s, v%d' % (T, fl(1.0 / 512), FN))
    a('v_mul_f32 v%d, 4.0, v%d' % (T + 1, FG))
    for hf in range(2):
        for r in range(4):
            q = hf * 4 + r
            a('v_add_f32 v%d, %s, v%d' % (T + 2, fl(float(16 * hf + r)), T + 1))
            a('v_mul_f32 v%d, v%d, v%d' % (T + 2, T + 2, T))
            a('v_cos_f32 v%d, v%d' % (TC + q, T + 2))
            a('v_sin_f32 v%d, v%d' % (TS + q, T + 2))
    B3 = 44
    a('v_mul_f32 v%d, %s, v%d' % (T, fl(1.0 / 32), FN))
    for rr in range(4):
        a('v_add_f32 v%d, %s, v%d' % (T + 2, fl(float(rr)), T + 1))
        a('v_mul_f32 v%d, v%d, v%d' % (T + 2, T + 2, T))
        a('v_cos_f32 v%d, v%d' % (T + 3, T + 2))
        a('v_sin_f32 v%d, v%d' % (T + 4, T + 2))
        a('v_cvt_pk_bf16_f32 v%d, v%d, -v%d' % (B3 + rr, T + 3, T + 4))
    a('v_and_b32 v%d, 1, v1' % (T + 5))
    a('v_mul_u32_u24 v%d, 0x8000, v%d' % (T + 5, T + 5))
    a('v_lshl_or_b32 v%d, v%d, 16, v%d' % (T + 5, T + 5, T + 5))
    for rr in range(4):
        a('v_xor_b32 v%d, v%d, v%d' % (B3 + 4 + rr, B3 + rr, T + 5))
    for hf in range(2):
        for rr in range(4):
            src, dst = B3 + hf * 4 + rr, B3 + 8 + hf * 4 + rr
            if rr & 1:
                a('v_xor_b32 v%d, 0x80008000, v%d' % (dst, src))
            else:
                a('v_mov_b32 v%d, v%d' % (dst, src))
    a('v_lshrrev_b32 v60, 6, v0')
    a('v_mul_u32_u24 v60, 80, v60')
    a('v_add_u32 v60, v60, v1')
    a('v_lshlrev_b32 v60, 2, v60')
    a('v_mul_u32_u24 v61, 80, v2')
    a('v_add_u32 v61, v61, v3')
    a('v_lshlrev_b32 v61, 2, v61')
    a('s_mul_i32 s18, s3, 2560')
    a('v_add_u32 v61, s18, v61')
    R2 = 10240
    a('s_mul_i32 s19, s3, 2176')
    a('s_add_u32 s19, s19, %d' % R2)
    a('v_add_u32 v62, s19, v5')
    a('v_lshrrev_b32 v63, 2, v3')
    a('v_mul_u32_u24 v63, 1088, v63')
    a('v_lshl_add_u32 v63, v2, 5, v63')
    a('v_and_b32 v%d, 3, v1' % T)
    a('v_lshl_add_u32 v63, v%d, 3, v63' % T)
    a('s_lshl_b32 s30, s3, 8')
    a('s_add_u32 s30, s30, %d' % R2)
    a('v_add_u32 v63, s30, v63')
    st()
    a('s_waitcnt vmcnt(4)')
    st()
    for q in range(4):
        a('ds_write2st64_b32 v60, v%d, v%d offset0:%d offset1:%d' % (8 + 2 * q, 9 + 2 * q, 10 * q, 10 * q + 5))
    a('s_waitcnt lgkmcnt(0)')
    a('s_barrier')
    st()
    AF = 64
    for j in range(2):
        for hf in range(2):
            a('ds_read2_b32 %s, v61 offset0:%d offset1:%d' % (vr(AF + (j * 2 + hf) * 2, 2), 16 * hf, 16 * hf + 32) if j == 0 else
              'ds_read2_b32 %s, v%d offset0:%d offset1:%d' % (vr(AF + (j * 2 + hf) * 2, 2), T + 1, 16 * hf, 16 * hf + 32))
        if j == 0:
            a('v_add_u32 v%d, 1280, v61' % (T + 1))
    for j in range(2):
        a('s_lshl_b32 s%d, s%d, 16' % (26 + j, 26 + j))
        a('s_lshl_b32 s%d, s%d, 16' % (28 + j, 28 + j))
    CE, CO = 8, 10
    for j in range(2):
        a('v_mov_b32 v%d, s%d' % (T + 2 + j, 28 + j))
    for j in range(2):
        a('v_subrev_f32 v%d, s%d, v%d' % (CE + j, 26 + j, T + 2 + j))
        a('v_sub_f32 v%d, -v%d, s%d' .replace('v_sub_f32', 'v_sub_f32_e64') % (CO + j, T + 2 + j, 26 + j))
    for j in range(2):
        a('v_mul_f32 v%d, %s, v%d' % (CE + j, fl(2.0 ** -20), CE + j))
        a('v_mul_f32 v%d, %s, v%d' % (CO + j, fl(2.0 ** -20), CO + j))
    D1 = 72
    for j in range(2):
        a('s_waitcnt lgkmcnt(%d)' % (2 - 2 * j))
        for hf in range(2):
            for ro in range(2):
                d = D1 + ((j * 2 + hf) * 2 + ro) * 4
                a('v_mfma_f32_16x16x16_bf16 %s, %s, %s, 0' % (vr(d, 4), vr(AF + (j * 2 + hf) * 2, 2), vr(B1 + ro * 2, 2)))
    P = 104
    T2 = 120
    for j in range(2):
        for hf in range(2):
            dre = D1 + ((j * 2 + hf) * 2) * 4
            dim = dre + 4
            for r in range(4):
                cmul_tw(a, dre + r, dim + r, TC + hf * 4 + r, TS + hf * 4 + r, T2 + 2 * r, T2 + 2 * r + 1, +1)
            for r in range(4):
                a('v_cvt_pk_bf16_f32 v%d, v%d, v%d' % (P + (j * 2 + hf) * 4 + r, T2 + 2 * r, T2 + 2 * r + 1))
    D3 = 72
    for hf in range(2):
        for j in range(2):
            for t in range(2):
                d = D3 + (j * 2 + t) * 4
                c = '0' if hf == 0 else vr(d, 4)
                a('v_mfma_f32_16x16x32_bf16 %s, %s, %s, %s' % (vr(d, 4), vr(P + (j * 2 + hf) * 4, 4), vr(B3 + t * 8 + hf * 4, 4), c))
    X = [[D3 + j * 8 + k for k in range(8)] for j in range(2)]
    a('v_mov_b32 v12, %s' % fl(2.0 ** -19))
    for j in range(2):
        for k in range(8):
            a('v_fma_f32 v%d, v%d, v12, v%d' % (X[j][k], X[j][k], (CE if k % 2 == 0 else CO) + j))
    st()
    a('s_waitcnt vmcnt(0)')
    st()
    HP = [[88 + j * 4 + q for q in range(4)] for j in range(2)]
    for j in range(2):
        for q in range(4):
            k = 2 * q
            a('v_cvt_pk_bf16_f32 v%d, v%d, v%d' % (T2, X[j][k], X[j][k + 1]))
            xv = XR + j * 4 + q
            a('v_lshlrev_b32 v%d, 16, v%d' % (T2 + 1, T2))
            a('v_and_b32 v%d, 0xffff0000, v%d' % (T2 + 2, T2))
            a('v_lshlrev_b32 v%d, 16, v%d' % (T2 + 3, xv))
            a('v_and_b32 v%d, 0xffff0000, v%d' % (T2 + 4, xv))
            a('v_add_f32 v%d, v%d, v%d' % (T2 + 1, T2 + 1, T2 + 3))
            a('v_add_f32 v%d, v%d, v%d' % (T2 + 2, T2 + 2, T2 + 4))
            a('v_cvt_pk_bf16_f32 v%d, v%d, v%d' % (HP[j][q], T2 + 1, T2 + 2))
            a('v_lshlrev_b32 v%d, 16, v%d' % (X[j][k], HP[j][q]))
            a('v_and_b32 v%d, 0xffff0000, v%d' % (X[j][k + 1], HP[j][q]))
    for j in range(2):
        for t in range(2):
            a('buffer_store_dwordx2 %s, v5, s[32:35], s%d offen offset:%d' % (vr(HP[j][2 * t], 2), 15 + j, t * 512))
    PK = [[104 + j * 4 + q for q in range(4)] for j in range(2)]
    ln_rows(a, X, 112, 40, 2, out_pk=PK, keep_f32=True)
    ln_rows(a, X, 112, 40, 2, out_pk=PK)
    st()
    for j in range(2):
        for t in range(2):
            a('ds_write_b64 v62, %s offset:%d' % (vr(PK[j][2 * t], 2), j * 1088 + t * 512))
    a('s_waitcnt lgkmcnt(0)')
    a('s_barrier')
    O = 72
    for half in range(2):
        for q in range(2):
            a('ds_read_b64_tr_b16 %s, v63 offset:%d' % (vr(O + half * 4 + q * 2, 2), q * 4 * 1088 + half * 128))
    a('s_lshl_b32 s30, s12, 3')
    a('s_add_u32 s30, s30, s13')
    a('s_lshl_b32 s30, s30, 13')
    a('s_lshl_b32 s31, s3, 11')
    a('s_add_u32 s30, s30, s31')
    a('v_lshlrev_b32 v4, 4, v1')
    for half in range(2):
        a('s_waitcnt lgkmcnt(%d)' % (2 - 2 * half))
        a('buffer_store_dwordx4 %s, v4, s[36:39], s30 offen offset:%d' % (vr(O + half * 4, 4), half * 1024))
    st()
    st.flush()
    a.label('K3_END')
    a('s_endpgm')
    return dict(name=L, asm=a, grid=256, lds=10240 + 8 * 1088, vgpr=128, sgpr=44)

class VM:
    def __init__(self, a):
        self.a = a
        self.q = []
        self.last = None

    def issue(self, text, tag):
        self.a(text)
        self.q.append(tag)
        assert len(self.q) <= 63 or True

    def wait(self, tags):
        idx = max([i for i, t in enumerate(self.q) if t in tags], default=-1)
        if idx < 0:
            return
        n = len(self.q) - 1 - idx
        assert n <= 63, n
        self.a('s_waitcnt vmcnt(%d)' % n)
        self.q = self.q[idx + 1:]


def gen_k4(DEPTH=8):
    a = Asm()
    L = 'k4_kernel'
    a.label(L)
    a('s_cmp_ge_u32 s2, 232')
    a('s_cbranch_scc1 K4_END')
    st = Stamper(a, 4)
    st()
    a('s_load_dwordx4 s[4:7], s[0:1], 32')
    a('s_load_dwordx2 s[12:13], s[0:1], 80')
    a('v_and_b32 v1, 63, v0')
    a('v_lshrrev_b32 v2, 6, v0')
    a('s_and_b32 s14, s2, 7')
    a('s_lshr_b32 s15, s2, 3')
    a('v_readfirstlane_b32 s3, v2')
    a('s_lshr_b32 s16, s14, 1')
    a('s_mul_i32 s16, s16, 29')
    a('s_add_u32 s16, s16, s15')
    a('s_and_b32 s14, s14, 1')
    a('s_lshl_b32 s14, s14, 2')
    a('s_and_b32 s15, s16, 3')
    a('s_add_u32 s14, s14, s15')
    a('s_lshr_b32 s15, s16, 2')
    a('v_lshrrev_b32 v2, 4, v1')
    a('v_and_b32 v3, 15, v1')
    for m in range(3):
        a('v_add_u32 v10, %d, v1' % (64 * m))
        a('v_mul_u32_u24 v11, 171, v10')
        a('v_lshrrev_b32 v11, 10, v11')
        a('v_mul_u32_u24 v12, 6, v11')
        a('v_sub_u32 v12, v10, v12')
        a('v_bfe_u32 v13, v11, 2, 2')
        a('v_lshlrev_b32 v13, 8, v13')
        a('v_lshrrev_b32 v14, 4, v11')
        a('v_lshl_add_u32 v13, v14, 7, v13')
        a('v_and_b32 v14, 3, v11')
        a('v_lshl_add_u32 v13, v14, 5, v13')
        a('v_mul_u32_u24 v13, 2752, v13')
        a('v_lshl_add_u32 v%d, v12, 4, v13' % (4 + m))
        if m:
            a('v_subrev_u32 v%d, %d, v%d' % (4 + m, 1024 * m, 4 + m))
    a('v_lshlrev_b32 v7, 13, v2')
    a('v_lshl_add_u32 v7, v3, 4, v7')
    a('v_lshrrev_b32 v10, 2, v3')
    a('v_lshl_add_u32 v10, v2, 2, v10')
    a('v_mul_u32_u24 v10, 96, v10')
    a('v_and_b32 v11, 3, v1')
    a('v_lshl_add_u32 v8, v11, 3, v10')
    a('s_mul_i32 s17, s3, %d' % (DEPTH * 3072))
    a('v_add_u32 v8, s17, v8')
    a('s_mul_i32 s18, s3, %d' % (8 * 2752))
    a('s_mul_i32 s19, s15, 96')
    a('s_add_u32 s18, s18, s19')
    a('s_lshl_b32 s19, s3, 19')
    a('s_lshl_b32 s20, s14, 10')
    a('s_add_u32 s19, s19, s20')
    a('s_mul_i32 s21, s15, 96')
    a('v_lshlrev_b32 v9, 3, v2')
    a('s_waitcnt lgkmcnt(0)')
    srd(a, 8, 4, 2048 * 2752)
    srd(a, 24, 12, SZ_L2, WS_L2)
    srd(a, 28, 6, 2752)
    srd(a, 32, 12, SZ_U, WS_U)
    st()
    vm = VM(a)
    BI = 10
    ACC = 16
    AF = 64
    BR = 88

    def stage(k):
        slot = k % DEPTH
        a('s_add_u32 m0, s17, %d' % (slot * 3072))
        a('s_add_u32 s22, s18, %d' % (((k & 1) * 1024 + (k >> 1)) * 2752))
        a('s_add_u32 s23, s19, %d' % (k * 32768))
        for m in range(3):
            vm.issue('buffer_load_dwordx4 v%d, s[8:11], s22 offen offset:%d lds' % (4 + m, 1024 * m), ('A', k))
        for nt in range(4):
            vm.issue('buffer_load_dwordx4 %s, v7, s[24:27], s23 offen offset:%d' % (vr(BR + slot * 16 + nt * 4, 4), nt * 256), ('B', k))

    def aread(k):
        slot = k % DEPTH
        for mt in range(3):
            for q in range(2):
                a('ds_read_b64_tr_b16 %s, v8 offset:%d' % (vr(AF + (k & 1) * 12 + mt * 4 + q * 2, 2), slot * 3072 + q * 16 * 96 + mt * 32))

    for k in range(DEPTH):
        stage(k)
    for mt in range(3):
        vm.issue('buffer_load_dwordx2 %s, v9, s[28:31], s21 offen offset:%d' % (vr(BI + 2 * mt, 2), 32 * mt), ('bias',))
    NK = 16
    st()
    vm.wait({('A', 0)})
    st()
    aread(0)
    for k in range(NK):
        if k + 1 < NK:
            vm.wait({('A', k + 1), ('B', k)})
            aread(k + 1)
            a('s_waitcnt lgkmcnt(6)')
        else:
            vm.wait({('B', k)})
            a('s_waitcnt lgkmcnt(0)')
        slot = k % DEPTH
        for mt in range(3):
            for nt in range(4):
                d = ACC + (mt * 4 + nt) * 4
                c = '0' if k == 0 else vr(d, 4)
                a('v_mfma_f32_16x16x32_bf16 %s, %s, %s, %s' % (vr(d, 4), vr(AF + (k & 1) * 12 + mt * 4, 4), vr(BR + slot * 16 + nt * 4, 4), c))
        if k + DEPTH < NK:
            stage(k + DEPTH)
        if k in (0, 3, 7, 11, 15):
            st()
    a('s_barrier')
    a('v_lshlrev_b32 v4, 4, v1')
    a('s_mul_i32 s22, s3, 3072')
    a('v_add_u32 v5, s22, v4')
    for nt in range(4):
        for mt in range(3):
            a('ds_write_b128 v5, %s offset:%d' % (vr(ACC + (mt * 4 + nt) * 4, 4), nt * 12288 + mt * 1024))
    a('s_mul_i32 s22, s3, 12288')
    a('v_add_u32 v6, s22, v4')
    a('s_waitcnt lgkmcnt(0)')
    a('s_barrier')
    st()
    R = 88
    for src in range(4):
        for mt in range(3):
            a('ds_read_b128 %s, v6 offset:%d' % (vr(R + (src * 3 + mt) * 4, 4), src * 3072 + mt * 1024))
    a('s_lshl_b32 s22, s14, 2')
    a('s_add_u32 s22, s22, s3')
    a('s_mul_i32 s22, s22, %d' % (43 * 1024))
    a('s_mul_i32 s23, s15, 3')
    for mt in range(3):
        a('s_add_u32 s36, s23, %d' % mt)
        a('s_lshr_b32 s37, s36, 1')
        a('s_lshl_b32 s37, s37, 10')
        a('s_and_b32 s36, s36, 1')
        a('s_lshl_b32 s36, s36, 3')
        a('s_add_u32 s37, s37, s36')
        a('s_add_u32 s%d, s37, s22' % (38 + mt))
    a('s_waitcnt lgkmcnt(0)')
    vm.wait({('bias',)})
    S = 16
    for mt in range(3):
        for r in range(4):
            x0, x1, x2, x3 = [R + (src * 3 + mt) * 4 + r for src in range(4)]
            a('v_add_f32 v%d, v%d, v%d' % (x0, x0, x1))
            a('v_add_f32 v%d, v%d, v%d' % (x2, x2, x3))
            a('v_add_f32 v%d, v%d, v%d' % (S + mt * 4 + r, x0, x2))
    T = 40
    C1 = -2.0 * 1.4426950408889634 * 0.7978845608028654
    C2 = C1 * 0.044715
    a('v_mov_b32 v60, %s' % fl(C1))
    for mt in range(3):
        u = [S + mt * 4 + r for r in range(4)]
        a('v_cvt_pk_bf16_f32 v%d, v%d, v%d' % (T, u[0], u[1]))
        a('v_cvt_pk_bf16_f32 v%d, v%d, v%d' % (T + 1, u[2], u[3]))
        for h in range(2):
            a('v_lshlrev_b32 v%d, 16, v%d' % (u[2 * h], T + h))
            a('v_and_b32 v%d, 0xffff0000, v%d' % (u[2 * h + 1], T + h))
            a('v_lshlrev_b32 v%d, 16, v%d' % (T + 2, BI + 2 * mt + h))
            a('v_and_b32 v%d, 0xffff0000, v%d' % (T + 3, BI + 2 * mt + h))
            a('v_add_f32 v%d, v%d, v%d' % (u[2 * h], u[2 * h], T + 2))
            a('v_add_f32 v%d, v%d, v%d' % (u[2 * h + 1], u[2 * h + 1], T + 3))
        a('v_cvt_pk_bf16_f32 v%d, v%d, v%d' % (T, u[0], u[1]))
        a('v_cvt_pk_bf16_f32 v%d, v%d, v%d' % (T + 1, u[2], u[3]))
        for h in range(2):
            a('v_lshlrev_b32 v%d, 16, v%d' % (u[2 * h], T + h))
            a('v_and_b32 v%d, 0xffff0000, v%d' % (u[2 * h + 1], T + h))
        for r in range(4):
            a('v_mul_f32 v%d, v%d, v%d' % (T + 4 + r, u[r], u[r]))
        for r in range(4):
            a('v_fmamk_f32 v%d, v%d, %s, v60' % (T + 4 + r, T + 4 + r, fl(C2)))
        for r in range(4):
            a('v_mul_f32 v%d, v%d, v%d' % (T + 4 + r, T + 4 + r, u[r]))
        for r in range(4):
            a('v_exp_f32 v%d, v%d' % (T + 4 + r, T + 4 + r))
        for r in range(4):
            a('v_add_f32 v%d, 1.0, v%d' % (T + 4 + r, T + 4 + r))
        for r in range(4):
            a('v_rcp_f32 v%d, v%d' % (T + 4 + r, T + 4 + r))
        for r in range(4):
            a('v_mul_f32 v%d, v%d, v%d' % (u[r], u[r], T + 4 + r))
        o = 48 + 2 * mt
        a('v_cvt_pk_bf16_f32 v%d, v%d, v%d' % (o, u[0], u[1]))
        a('v_cvt_pk_bf16_f32 v%d, v%d, v%d' % (o + 1, u[2], u[3]))
        if mt == 2:
            a('s_cmp_eq_u32 s15, 28')
            a('s_cbranch_scc1 K4_FL')
        a('buffer_store_dwordx2 %s, v4, s[32:35], s%d offen' % (vr(o, 2), 38 + mt))
    a.label('K4_FL')
    st.flush()
    a.label('K4_END')
    a('s_endpgm')
    return dict(name=L, asm=a, grid=232, lds=4 * DEPTH * 3072, vgpr=88 + DEPTH * 16, sgpr=44)


def gen_k5(DEPTH=7):
    a = Asm()
    L = NAME + '_kernel'
    a.label(L)
    a('s_cmp_ge_u32 s2, 256')
    a('s_cbranch_scc1 K5_END')
    st = Stamper(a, 5)
    st()
    a('s_load_dwordx4 s[4:7], s[0:1], 48')
    a('s_load_dwordx2 s[12:13], s[0:1], 80')
    a('s_load_dwordx2 s[40:41], s[0:1], 64')
    a('v_and_b32 v1, 63, v0')
    a('v_lshrrev_b32 v2, 6, v0')
    a('s_and_b32 s14, s2, 7')
    a('s_lshr_b32 s15, s2, 3')
    a('v_readfirstlane_b32 s3, v2')
    a('s_and_b32 s16, s14, 1')
    a('s_lshl_b32 s16, s16, 2')
    a('s_and_b32 s17, s15, 3')
    a('s_add_u32 s16, s16, s17')
    a('s_lshr_b32 s14, s14, 1')
    a('s_lshl_b32 s14, s14, 3')
    a('s_lshr_b32 s15, s15, 2')
    a('s_add_u32 s15, s15, s14')
    a('v_lshrrev_b32 v2, 4, v1')
    a('v_and_b32 v3, 15, v1')
    a('v_lshrrev_b32 v10, 3, v1')
    a('v_bfe_u32 v11, v10, 1, 2')
    a('v_lshlrev_b32 v11, 1, v11')
    a('v_and_b32 v12, 7, v1')
    a('v_xor_b32 v11, v11, v12')
    a('v_lshlrev_b32 v11, 4, v11')
    a('v_lshl_add_u32 v4, v10, 12, v11')
    for m in range(1, 4):
        a('v_add_u32 v%d, %d, v4' % (4 + m, m * (32768 - 1024)))
    a('v_lshlrev_b32 v8, 4, v1')
    a('v_lshrrev_b32 v10, 2, v3')
    a('v_lshl_add_u32 v11, v2, 2, v10')
    a('v_bfe_u32 v9, v11, 1, 2')
    a('v_lshlrev_b32 v11, 7, v11')
    a('v_lshl_add_u32 v11, v9, 5, v11')
    a('v_and_b32 v10, 3, v1')
    a('v_lshl_add_u32 v11, v10, 3, v11')
    a('s_mul_i32 s18, s3, %d' % (DEPTH * 4096))
    a('v_add_u32 v12, s18, v11')
    for nt in range(1, 4):
        a('v_xor_b32 v%d, %d, v12' % (12 + nt, nt * 32))
    a('s_mul_i32 s19, s3, %d' % (11 * 32 * 4096))
    a('s_lshl_b32 s20, s15, 7')
    a('s_add_u32 s19, s19, s20')
    a('s_mul_i32 s20, s16, %d' % (4 * 43 * 1024))
    a('s_mul_i32 s21, s3, %d' % (11 * 1024))
    a('s_add_u32 s20, s20, s21')
    a('v_lshlrev_b32 v9, 10, v3')
    a('v_lshl_add_u32 v9, v2, 5, v9')
    a('s_lshl_b32 s21, s15, 6')
    a('s_lshl_b32 s22, s3, 4')
    a('s_add_u32 s21, s21, s22')
    a('s_lshl_b32 s22, s21, 10')
    a('s_lshl_b32 s23, s16, 7')
    a('s_add_u32 s22, s22, s23')
    a('s_lshl_b32 s21, s21, 1')
    a('v_lshlrev_b32 v10, 1, v3')
    a('s_waitcnt lgkmcnt(0)')
    srd(a, 8, 4, 1376 * 4096)
    srd(a, 24, 12, SZ_U, WS_U)
    srd(a, 28, 6, 4096)
    srd(a, 32, 12, SZ_H, WS_H)
    srd(a, 36, 40, 2048 * 1024)
    st()
    vm = VM(a)
    ACC = 24
    BF = 88
    AR = 120
    HR = 16
    NK = 11

    def stage(k):
        slot = k % DEPTH
        a('s_add_u32 m0, s18, %d' % (slot * 4096))
        a('s_add_u32 s23, s19, %d' % (k * 32 * 4096))
        a('s_add_u32 s42, s20, %d' % (k * 1024))
        if k == 10:
            a('s_cmp_eq_u32 s3, 3')
            a('s_cselect_b32 s42, 0x7000000, s42')
        for m in range(4):
            vm.issue('buffer_load_dwordx4 v%d, s[8:11], s23 offen offset:%d lds' % (4 + m, 1024 * m), ('B', k))
        for mt in range(4):
            if mt:
                a('s_add_u32 s42, s42, %d' % (43 * 1024))
            vm.issue('buffer_load_dwordx4 %s, v8, s[24:27], s42 offen' % vr(AR + slot * 16 + mt * 4, 4), ('A', k))

    def bread(k):
        slot = k % DEPTH
        for nt in range(4):
            for q in range(2):
                a('ds_read_b64_tr_b16 %s, v%d offset:%d' % (vr(BF + (k & 1) * 16 + nt * 4 + q * 2, 2), 12 + nt, slot * 4096 + q * 2048))

    for k in range(DEPTH):
        stage(k)
    vm.issue('buffer_load_dwordx4 %s, v9, s[32:35], s22 offen' % vr(HR, 4), ('h',))
    vm.issue('buffer_load_dwordx4 %s, v9, s[32:35], s22 offen offset:16' % vr(HR + 4, 4), ('h',))
    vm.issue('buffer_load_ushort v11, v10, s[28:31], s21 offen', ('h',))
    st()
    vm.wait({('B', 0)})
    st()
    bread(0)
    for k in range(NK):
        if k + 1 < NK:
            vm.wait({('B', k + 1), ('A', k)})
            bread(k + 1)
            a('s_waitcnt lgkmcnt(8)')
        else:
            vm.wait({('A', k)})
            a('s_waitcnt lgkmcnt(0)')
        slot = k % DEPTH
        for mt in range(4):
            for nt in range(4):
                d = ACC + (mt * 4 + nt) * 4
                c = '0' if k == 0 else vr(d, 4)
                a('v_mfma_f32_16x16x32_bf16 %s, %s, %s, %s' % (vr(d, 4), vr(AR + slot * 16 + mt * 4, 4), vr(BF + (k & 1) * 16 + nt * 4, 4), c))
        if k + DEPTH < NK:
            stage(k + DEPTH)
        if k in (0, 3, 7, 10):
            st()
    a('s_barrier')
    a('s_lshl_b32 s23, s3, 14')
    a('v_add_u32 v5, s23, v8')
    for mt in range(4):
        for nt in range(4):
            a('ds_write_b128 v5, %s offset:%d' % (vr(ACC + (mt * 4 + nt) * 4, 4), (mt * 4 + nt) * 1024))
    a('v_lshlrev_b32 v6, 12, v2')
    a('v_lshl_add_u32 v6, v3, 4, v6')
    a('s_lshl_b32 s23, s3, 10')
    a('v_add_u32 v6, s23, v6')
    a('s_waitcnt lgkmcnt(0)')
    a('s_barrier')
    st()
    R = 88
    for src in range(4):
        for gg in range(4):
            a('ds_read_b128 %s, v6 offset:%d' % (vr(R + (src * 4 + gg) * 4, 4), src * 16384 + gg * 256))
    a('s_waitcnt lgkmcnt(0)')
    vm.wait({('h',)})
    S = 24
    for q in range(16):
        x0, x1, x2, x3 = [R + src * 16 + q for src in range(4)]
        a('v_add_f32 v%d, v%d, v%d' % (x0, x0, x1))
        a('v_add_f32 v%d, v%d, v%d' % (x2, x2, x3))
        a('v_add_f32 v%d, v%d, v%d' % (S + q, x0, x2))
    a('v_lshlrev_b32 v11, 16, v11')
    T = 48
    O = 40
    for p in range(8):
        u0, u1 = S + 2 * p, S + 2 * p + 1
        a('v_cvt_pk_bf16_f32 v%d, v%d, v%d' % (T, u0, u1))
        a('v_lshlrev_b32 v%d, 16, v%d' % (u0, T))
        a('v_and_b32 v%d, 0xffff0000, v%d' % (u1, T))
        a('v_add_f32 v%d, v%d, v11' % (u0, u0))
        a('v_add_f32 v%d, v%d, v11' % (u1, u1))
        a('v_cvt_pk_bf16_f32 v%d, v%d, v%d' % (T, u0, u1))
        a('v_lshlrev_b32 v%d, 16, v%d' % (u0, T))
        a('v_and_b32 v%d, 0xffff0000, v%d' % (u1, T))
        a('v_lshlrev_b32 v%d, 16, v%d' % (T + 1, HR + p))
        a('v_and_b32 v%d, 0xffff0000, v%d' % (T + 2, HR + p))
        a('v_add_f32 v%d, v%d, v%d' % (u0, u0, T + 1))
        a('v_add_f32 v%d, v%d, v%d' % (u1, u1, T + 2))
        a('v_cvt_pk_bf16_f32 v%d, v%d, v%d' % (O + p, u0, u1))
    a('buffer_store_dwordx4 %s, v9, s[36:39], s22 offen' % vr(O, 4))
    a('buffer_store_dwordx4 %s, v9, s[36:39], s22 offen offset:16' % vr(O + 4, 4))
    st.flush()
    a.label('K5_END')
    a('s_endpgm')
    return dict(name=L, asm=a, grid=256, lds=max(4 * DEPTH * 4096, 65536), vgpr=120 + DEPTH * 16, sgpr=44)


def emit(kernels, path):
    out = []
    for k in kernels:
        out.append('; @launch kernel=%s grid=(%d,1,1) block=(256,1,1) lds=%d' % (k['name'], k['grid'], k['lds']))
    out.append('.amdgcn_target "amdgcn-amd-amdhsa--gfx950"')
    out.append('.text')
    done = set()
    for k in kernels:
        if k['name'] in done:
            continue
        done.add(k['name'])
        a = k['asm']
        n = a.fix_hazards()
        errs = a.check_waits(k['name'])
        for e in errs:
            print('WAITCHK', e)
        print('%s: %d instrs, %d auto wait states' % (k['name'], len(a.ins), n))
        out.append('.globl %s' % k['name'])
        out.append('.p2align 8')
        out.append('.type %s,@function' % k['name'])
        out.append(a.text())
    out.append('.section .rodata,"a"')
    done = set()
    for k in kernels:
        if k['name'] in done:
            continue
        done.add(k['name'])
        if STAMPS:
            k['vgpr'] = 256; k['sgpr'] = 102
        acc = (k['vgpr'] + 3) // 4 * 4
        out.append('.p2align 6')
        out.append('.amdhsa_kernel %s' % k['name'])
        out.append('  .amdhsa_next_free_vgpr %d' % (k.get('total_vgpr', k['vgpr'])))
        out.append('  .amdhsa_next_free_sgpr %d' % k['sgpr'])
        out.append('  .amdhsa_accum_offset %d' % acc)
        out.append('  .amdhsa_group_segment_fixed_size 0')
        out.append('  .amdhsa_kernarg_size 88')
        out.append('  .amdhsa_user_sgpr_count 2')
        out.append('  .amdhsa_user_sgpr_kernarg_segment_ptr 1')
        out.append('  .amdhsa_system_sgpr_workgroup_id_x 1')
        out.append('.end_amdhsa_kernel')
    open(path, 'w').write('\n'.join(out) + '\n')


def gen_dummy(i):
    a = Asm()
    L = 'dummy%d_kernel' % i
    a.label(L)
    a('s_endpgm')
    return dict(name=L, asm=a, grid=256, lds=0, vgpr=8, sgpr=16)


if __name__ == '__main__':
    import os
    which = sys.argv[1] if len(sys.argv) > 1 else 'all'
    STAMPS = (which == 'stamp')
    path = sys.argv[2] if len(sys.argv) > 2 else 'out.s'
    ks = [gen_k1(), gen_k2(), gen_k3(), gen_k4(), gen_k5()]
    nd = int(os.environ.get('DUMMY', '0'))
    for i in range(nd):
        ks.insert(2 + 2 * i, gen_dummy(0))
    emit(ks, path)
```

```python
import sys, struct
sys.path.insert(0, 'work')
from asmgen import Asm

NAME = 'sequential_preLN__spectral_gfnet__mixer_token_mlp__prompt'

WS_X1 = 0x000000; SZ_X1 = 256 * 8320
WS_WT = 0x300000; SZ_WT = 257 * 8192
WS_Y1 = 0x600000; SZ_Y1 = 257 * 8320
WS_H = 0x900000; SZ_H = 2048 * 1024
WS_L2 = 0xC00000; SZ_L2 = 2048 * 1024
WS_U = 0xF00000; SZ_U = 32 * 43 * 1024


def f2u(x):
    return struct.unpack('<I', struct.pack('<f', x))[0]


def fl(x):
    return '0x%08x' % f2u(x)


def vr(a, n=1):
    return 'v%d' % a if n == 1 else 'v[%d:%d]' % (a, a + n - 1)


def sr(a, n=1):
    return 's%d' % a if n == 1 else 's[%d:%d]' % (a, a + n - 1)


def srd(a, R, lo, size, off=0):
    if off:
        a('s_add_u32 s%d, s%d, 0x%x' % (R, lo, off))
        a('s_addc_u32 s%d, s%d, 0' % (R + 1, lo + 1))
        a('s_and_b32 s%d, s%d, 0xffff' % (R + 1, R + 1))
    else:
        a('s_mov_b32 s%d, s%d' % (R, lo))
        a('s_and_b32 s%d, s%d, 0xffff' % (R + 1, lo + 1))
    a('s_mov_b32 s%d, 0x%x' % (R + 2, size))
    a('s_mov_b32 s%d, 0x20000' % (R + 3))


STAMPS = False
RT_ONLY = False
STAMP_OP = 's_memtime'
WS_DBG = 0x2000000
STAMP_S = 64


class Stamper:
    def __init__(self, a, kid):
        self.a = a
        self.n = 0
        self.kid = kid

    def __call__(self):
        if not STAMPS:
            return
        if RT_ONLY and self.n >= 1 and not getattr(self, 'final', False):
            return
        a = self.a
        a(STAMP_OP + ' s[%d:%d]' % (STAMP_S + 2 * self.n, STAMP_S + 2 * self.n + 1))
        a('s_waitcnt lgkmcnt(0)')
        self.n += 1

    def flush(self, wave_s='s3', vtmp=250):
        if not STAMPS:
            return
        a = self.a
        if not RT_ONLY:
            a('s_waitcnt vmcnt(0)')
        self.final = True
        self()
        if RT_ONLY:
            a('s_getreg_b32 s%d, hwreg(20, 0, 4)' % (STAMP_S + 2 * self.n))
            a('s_add_u32 s%d, s%d, 0x100' % (STAMP_S + 2 * self.n, STAMP_S + 2 * self.n))
            self.n += 1
        a('s_load_dwordx2 s[96:97], s[0:1], 80')
        a('s_waitcnt lgkmcnt(0)')
        srd(a, 60, 96, 0x40000, WS_DBG + self.kid * 0x40000)
        a('s_lshl_b32 s98, s2, 2')
        a('s_add_u32 s98, s98, %s' % wave_s)
        a('s_lshl_b32 s98, s98, 6')
        a('v_mov_b32 v%d, 0x40000000' % (vtmp + 1))
        for i in range(self.n):
            vt = vtmp - (i if RT_ONLY else 0)
            a('v_mov_b32 v%d, s%d' % (vt, STAMP_S + 2 * i))
            a('s_add_u32 s99, s98, %d' % (4 * i))
            a('v_writelane_b32 v%d, 0, 0' % (vtmp + 1))
            a('s_nop 1')
            a('buffer_store_dword v%d, v%d, s[60:63], s99 offen' % (vt, vtmp + 1))
            if not RT_ONLY:
                a('s_waitcnt vmcnt(0)')


import os
PF = os.environ.get('PF', '')


def prefetch(a, which, sptr, sR, sT, vlane, vtmp, vdst, swave='s3', issue=None, nwaves=128):
    issue = issue or (lambda t: a(t))
    stride = 2752 if which == 'a' else 4096
    rows = 2048 if which == 'a' else 1376
    pstep = 672 if which == 'a' else 1024
    srd(a, sR, sptr, rows * stride)
    a('v_lshrrev_b32 v%d, 3, v%d' % (vtmp, vlane))
    a('v_mul_u32_u24 v%d, %d, v%d' % (vtmp, stride, vtmp))
    a('v_and_b32 v%d, 7, v%d' % (vdst, vlane))
    a('v_lshl_add_u32 v%d, v%d, 7, v%d' % (vtmp, vdst, vtmp))
    if which == 'a':
        a('v_cmp_eq_u32 vcc, 7, v%d' % vdst)
        a('v_mov_b32 v%d, 0x40000000' % vdst)
        a('v_cndmask_b32 v%d, v%d, v%d, vcc' % (vtmp, vtmp, vdst))
    a('s_lshr_b32 s%d, s2, 3' % sT)
    a('s_lshl_b32 s%d, s%d, 2' % (sT, sT))
    a('s_add_u32 s%d, s%d, %s' % (sT, sT, swave))
    a('s_mul_i32 s%d, s%d, %d' % (sT, sT, 8 * stride))
    a('s_bfe_u32 s%d, s2, 0x20001' % (sT + 1))
    a('s_mul_i32 s%d, s%d, %d' % (sT + 1, sT + 1, pstep))
    a('s_add_u32 s%d, s%d, s%d' % (sT, sT, sT + 1))
    a('s_add_u32 s%d, s%d, %d' % (sT + 1, sT, 8 * nwaves * stride))
    issue('buffer_load_dword v%d, v%d, s[%d:%d], s%d offen' % (vdst, vtmp, sR, sR + 3, sT))
    issue('buffer_load_dword v%d, v%d, s[%d:%d], s%d offen' % (vdst, vtmp, sR, sR + 3, sT + 1))
    return 2


def pf_for(kid):
    return [t[1] for t in PF.split(',') if t and t[0] == str(kid)]


def wave_sum(a, regs):
    steps = ['quad_perm:[1,0,3,2] row_mask:0xf', 'quad_perm:[2,3,0,1] row_mask:0xf', 'row_half_mirror row_mask:0xf',
             'row_mirror row_mask:0xf', 'row_bcast:15 row_mask:0xa', 'row_bcast:31 row_mask:0xc']
    for st in steps:
        for r in regs:
            a('v_add_f32_dpp v%d, v%d, v%d %s bank_mask:0xf' % (r, r, r, st))


def ln_rows(a, X, T, S, nrows, out_pk=None, keep_f32=False):
    n = nrows
    sm = [T + j for j in range(n)]
    mean = [T + n + j for j in range(n)]
    mb = [T + 2 * n + j for j in range(n)]
    sq = [T + 3 * n + j for j in range(n)]
    t1 = [T + 4 * n + j for j in range(n)]
    t2 = [T + 5 * n + j for j in range(n)]
    for j in range(n):
        a('v_add_f32 v%d, v%d, v%d' % (sm[j], X[j][0], X[j][1]))
        a('v_add_f32 v%d, v%d, v%d' % (t1[j], X[j][2], X[j][3]))
        a('v_add_f32 v%d, v%d, v%d' % (t2[j], X[j][4], X[j][5]))
        a('v_add_f32 v%d, v%d, v%d' % (sq[j], X[j][6], X[j][7]))
    for j in range(n):
        a('v_add_f32 v%d, v%d, v%d' % (sm[j], sm[j], t1[j]))
        a('v_add_f32 v%d, v%d, v%d' % (t2[j], t2[j], sq[j]))
    for j in range(n):
        a('v_add_f32 v%d, v%d, v%d' % (sm[j], sm[j], t2[j]))
    wave_sum(a, sm)
    for j in range(n):
        a('v_readlane_b32 s%d, v%d, 63' % (S + j, sm[j]))
    for j in range(n):
        a('v_mov_b32 v%d, s%d' % (mean[j], S + j))
    for j in range(n):
        a('v_mul_f32 v%d, %s, v%d' % (mean[j], fl(1.0 / 512), mean[j]))
    for j in range(n):
        a('v_cvt_pk_bf16_f32 v%d, v%d, v%d' % (mb[j], mean[j], mean[j]))
    for j in range(n):
        a('v_and_b32 v%d, 0xffff0000, v%d' % (mb[j], mb[j]))
    for k in range(8):
        for j in range(n):
            a('v_sub_f32 v%d, v%d, v%d' % (X[j][k], X[j][k], mb[j]))
    for j in range(n):
        a('v_mul_f32 v%d, v%d, v%d' % (sq[j], X[j][0], X[j][0]))
        a('v_mul_f32 v%d, v%d, v%d' % (t1[j], X[j][1], X[j][1]))
    for k in range(2, 8, 2):
        for j in range(n):
            a('v_fmac_f32 v%d, v%d, v%d' % (sq[j], X[j][k], X[j][k]))
            a('v_fmac_f32 v%d, v%d, v%d' % (t1[j], X[j][k + 1], X[j][k + 1]))
    for j in range(n):
        a('v_add_f32 v%d, v%d, v%d' % (sq[j], sq[j], t1[j]))
    wave_sum(a, sq)
    for j in range(n):
        for k in range(0, 8, 2):
            a('v_cvt_pk_bf16_f32 v%d, v%d, v%d' % (X[j][k + 1], X[j][k], X[j][k + 1]))
    for j in range(n):
        a('v_readlane_b32 s%d, v%d, 63' % (S + j, sq[j]))
    for j in range(n):
        for k in range(0, 8, 2):
            a('v_lshlrev_b32 v%d, 16, v%d' % (X[j][k], X[j][k + 1]))
            a('v_and_b32 v%d, 0xffff0000, v%d' % (X[j][k + 1], X[j][k + 1]))
    for j in range(n):
        a('v_sub_f32 v%d, v%d, v%d' % (t1[j], mean[j], mb[j]))
        a('v_mov_b32 v%d, s%d' % (sq[j], S + j))
    for j in range(n):
        a('v_mul_f32 v%d, v%d, v%d' % (t1[j], t1[j], t1[j]))
        a('v_mul_f32 v%d, %s, v%d' % (sq[j], fl(1.0 / 512), sq[j]))
    for j in range(n):
        a('v_sub_f32 v%d, v%d, v%d' % (sq[j], sq[j], t1[j]))
    for j in range(n):
        a('v_max_f32 v%d, 0, v%d' % (sq[j], sq[j]))
    for j in range(n):
        a('v_cvt_pk_bf16_f32 v%d, v%d, v%d' % (sq[j], sq[j], sq[j]))
    for j in range(n):
        a('v_and_b32 v%d, 0xffff0000, v%d' % (sq[j], sq[j]))
    for j in range(n):
        a('v_add_f32 v%d, %s, v%d' % (sq[j], fl(1e-5), sq[j]))
    for j in range(n):
        a('v_cvt_pk_bf16_f32 v%d, v%d, v%d' % (sq[j], sq[j], sq[j]))
    for j in range(n):
        a('v_and_b32 v%d, 0xffff0000, v%d' % (sq[j], sq[j]))
    for j in range(n):
        a('v_sqrt_f32 v%d, v%d' % (sq[j], sq[j]))
    for j in range(n):
        a('v_cvt_pk_bf16_f32 v%d, v%d, v%d' % (sq[j], sq[j], sq[j]))
    for j in range(n):
        a('v_and_b32 v%d, 0xffff0000, v%d' % (sq[j], sq[j]))
    for j in range(n):
        a('v_rcp_f32 v%d, v%d' % (sq[j], sq[j]))
    for k in range(8):
        for j in range(n):
            a('v_mul_f32 v%d, v%d, v%d' % (X[j][k], X[j][k], sq[j]))
    for j in range(n):
        for k in range(0, 8, 2):
            a('v_cvt_pk_bf16_f32 v%d, v%d, v%d' % (out_pk[j][k // 2], X[j][k], X[j][k + 1]))
    if keep_f32:
        for j in range(n):
            for k in range(0, 8, 2):
                a('v_lshlrev_b32 v%d, 16, v%d' % (X[j][k], out_pk[j][k // 2]))
                a('v_and_b32 v%d, 0xffff0000, v%d' % (X[j][k + 1], out_pk[j][k // 2]))


def cmul_tw(a, re, im, c, s, ore, oim, sign):
    a('v_mul_f32 v%d, v%d, v%d' % (ore, re, c))
    a('v_mul_f32 v%d, v%d, v%d' % (oim, im, c))
    if sign < 0:
        a('v_fmac_f32 v%d, v%d, v%d' % (ore, im, s))
        a('v_fma_f32 v%d, -v%d, v%d, v%d' % (oim, re, s, oim))
    else:
        a('v_fma_f32 v%d, -v%d, v%d, v%d' % (ore, im, s, ore))
        a('v_fmac_f32 v%d, v%d, v%d' % (oim, re, s))


def gen_k1():
    a = Asm()
    L = 'k1_kernel'
    a.label(L)
    a('s_cmp_ge_u32 s2, 256')
    a('s_cbranch_scc1 K1_TR')
    st = Stamper(a, 1)
    st()
    a('s_load_dwordx2 s[4:5], s[0:1], 0')
    a('s_load_dwordx2 s[6:7], s[0:1], 80')
    for t in pf_for(1):
        a('s_load_dwordx2 s[%d:%d], s[0:1], %d' % ((44, 45, 32) if t == 'a' else (46, 47, 48)))
    a('v_and_b32 v1, 63, v0')
    a('v_lshrrev_b32 v2, 6, v0')
    a('s_lshr_b32 s12, s2, 3')
    a('v_readfirstlane_b32 s3, v2')
    a('s_and_b32 s13, s2, 7')
    a('s_lshl_b32 s13, s13, 8')
    a('s_add_u32 s13, s13, s12')
    a('v_lshlrev_b32 v3, 4, v1')
    a('s_lshl_b32 s14, s3, 6')
    a('s_add_u32 s13, s13, s14')
    a('s_lshl_b32 s13, s13, 10')
    a('s_add_u32 s14, s13, 32768')
    a('s_waitcnt lgkmcnt(0)')
    srd(a, 8, 4, 2048 * 1024)
    a('buffer_load_dwordx4 v[4:7], v3, s[8:11], s13 offen')
    a('buffer_load_dwordx4 v[8:11], v3, s[8:11], s14 offen')
    npf = 0
    for t in pf_for(1):
        npf += prefetch(a, t, 44 if t == 'a' else 46, 48, 52, 1, 125, 124)
    st()
    srd(a, 16, 6, SZ_X1, WS_X1)
    a('s_mul_i32 s15, s2, 8320')
    G, N, FG, FN = 12, 13, 14, 15
    a('v_lshrrev_b32 v%d, 4, v1' % G)
    a('v_and_b32 v%d, 15, v1' % N)
    a('v_cvt_f32_u32 v%d, v%d' % (FG, G))
    a('v_cvt_f32_u32 v%d, v%d' % (FN, N))
    B1 = 16
    T = 96
    a('v_mul_f32 v%d, v%d, v%d' % (T, FN, FG))
    a('v_mul_f32 v%d, 0.125*1, v%d'.replace('0.125*1', fl(0.125)) % (T, T))
    for o in range(1, 4):
        a('v_fmamk_f32 v%d, v%d, %s, v%d' % (T + o, FN, fl(o / 32.0), T))
    for o in range(4):
        a('v_cos_f32 v%d, v%d' % (T + 4 + o, T + o))
        a('v_sin_f32 v%d, v%d' % (T + 8 + o, T + o))
    a('v_and_b32 v%d, 1, v1' % (T + 12))
    a('v_mul_u32_u24 v%d, 0x8000, v%d' % (T + 12, T + 12))
    a('v_lshl_or_b32 v%d, v%d, 16, v%d' % (T + 12, T + 12, T + 12))
    a('v_cvt_pk_bf16_f32 v%d, v%d, v%d' % (B1 + 0, T + 4, T + 5))
    a('v_cvt_pk_bf16_f32 v%d, v%d, v%d' % (B1 + 1, T + 6, T + 7))
    a('v_cvt_pk_bf16_f32 v%d, -v%d, -v%d' % (B1 + 4, T + 8, T + 9))
    a('v_cvt_pk_bf16_f32 v%d, -v%d, -v%d' % (B1 + 5, T + 10, T + 11))
    for cs in range(2):
        for rr in range(2):
            a('v_xor_b32 v%d, v%d, v%d' % (B1 + cs * 4 + 2 + rr, B1 + cs * 4 + rr, T + 12))
    for q in range(8):
        a('v_xor_b32 v%d, 0x80000000, v%d' % (B1 + 8 + q, B1 + q))
    TC, TS = 32, 40
    a('v_mul_f32 v%d, %s, v%d' % (T, fl(1.0 / 512), FN))
    a('v_add_f32 v%d, %s, v%d' % (T + 1, fl(16.0 / 512), T))
    a('v_mul_f32 v%d, 4.0, v%d' % (T + 2, FG))
    for r in range(1, 4):
        a('v_add_f32 v%d, %s, v%d' % (T + 2 + r, fl(float(r)), T + 2))
    for hf in range(2):
        for r in range(4):
            a('v_mul_f32 v%d, v%d, v%d' % (T + 6 + hf * 4 + r, T + hf, T + 2 + r))
    for q in range(8):
        a('v_cos_f32 v%d, v%d' % (TC + q, T + 6 + q))
        a('v_sin_f32 v%d, v%d' % (TS + q, T + 6 + q))
    A3 = 48
    a('v_lshrrev_b32 v%d, 1, v%d' % (T, N))
    a('v_cvt_f32_u32 v%d, v%d' % (T, T))
    a('v_mul_f32 v%d, %s, v%d' % (T, fl(1.0 / 16), T))
    a('v_and_b32 v%d, 1, v%d' % (T + 1, N))
    a('v_cvt_f32_u32 v%d, v%d' % (T + 1, T + 1))
    a('v_mul_f32 v%d, %s, v%d' % (T + 1, fl(0.25), T + 1))
    for rr in range(4):
        a('v_fma_f32 v%d, v%d, v%d, v%d' % (T + 6 + rr, T, T + 2 + rr, T + 1))
    for rr in range(4):
        a('v_cos_f32 v%d, v%d' % (T + 10 + rr, T + 6 + rr))
        a('v_sin_f32 v%d, v%d' % (T + 14 + rr, T + 6 + rr))
    for rr in range(4):
        a('v_cvt_pk_bf16_f32 v%d, v%d, v%d' % (A3 + rr, T + 10 + rr, T + 14 + rr))
    G8 = 52
    for rr in range(4):
        a('v_mov_b32 v%d, 0x%x' % (G8 + rr, 0x3F80 if rr % 2 == 0 else 0xBF80))
    a('s_lshl_b32 s20, s3, 3')
    a('v_lshlrev_b32 v56, 5, v%d' % N)
    a('v_lshl_add_u32 v56, v%d, 11, v56' % G)
    a('v_add_u32 v56, s20, v56')
    a('s_add_u32 s21, s20, 8192')
    a('v_mov_b32 v57, 0x40000000')
    a('v_writelane_b32 v57, s21, 0')
    a('s_lshl_b32 s22, s3, 11')
    a('v_add_u32 v58, s22, v3')
    a('v_lshlrev_b32 v59, 3, v1')
    a('v_add_u32 v59, s22, v59')
    st()
    a('s_waitcnt vmcnt(%d)' % npf)
    st()
    X = [[64 + k for k in range(8)], [72 + k for k in range(8)]]
    for j in range(2):
        for k in range(4):
            a('v_lshlrev_b32 v%d, 16, v%d' % (X[j][2 * k], 4 + 4 * j + k))
            a('v_and_b32 v%d, 0xffff0000, v%d' % (X[j][2 * k + 1], 4 + 4 * j + k))
    ln_rows(a, X, T, 24, 2, out_pk=[[4, 5, 6, 7], [8, 9, 10, 11]])
    st()
    a('ds_write_b128 v58, v[4:7]')
    a('ds_write_b128 v58, v[8:11] offset:1024')
    a('ds_read_b64_tr_b16 v[60:61], v59')
    a('ds_read_b64_tr_b16 v[62:63], v59 offset:512')
    a('ds_read_b64_tr_b16 v[64:65], v59 offset:1024')
    a('ds_read_b64_tr_b16 v[66:67], v59 offset:1536')
    D1 = 68
    A = [60, 64]
    for j in range(2):
        a('s_waitcnt lgkmcnt(%d)' % (2 - 2 * j))
        for hf in range(2):
            for cs in range(2):
                d = D1 + ((j * 2 + hf) * 2 + cs) * 4
                a('v_mfma_f32_16x16x32_bf16 %s, %s, %s, 0' % (vr(d, 4), vr(A[j], 4), vr(B1 + hf * 8 + cs * 4, 4)))
    P = 100
    for j in range(2):
        for hf in range(2):
            dre = D1 + ((j * 2 + hf) * 2 + 0) * 4
            dim = dre + 4
            for r in range(4):
                cmul_tw(a, dre + r, dim + r, TC + hf * 4 + r, TS + hf * 4 + r, 116 + 2 * r, 117 + 2 * r, -1)
            for r in range(4):
                a('v_cvt_pk_bf16_f32 v%d, v%d, v%d' % (P + (j * 2 + hf) * 4 + r, 116 + 2 * r, 117 + 2 * r))
    D3 = 68
    for j in range(2):
        for hf in range(2):
            a('v_mfma_f32_16x16x32_bf16 %s, %s, %s, 0' % (vr(D3 + (j * 2 + hf) * 4, 4), vr(A3, 4), vr(P + (j * 2 + hf) * 4, 4)))
    for j in range(2):
        a('v_mfma_f32_16x16x32_bf16 %s, %s, %s, 0' % (vr(D3 + 16 + j * 4, 4), vr(G8, 4), vr(P + (j * 2) * 4, 4)))
    st()
    O = 4
    for hf in range(2):
        for p in range(2):
            o = O + (hf * 2 + p) * 2
            for j in range(2):
                d = D3 + (j * 2 + hf) * 4 + 2 * p
                a('v_cvt_pk_bf16_f32 v%d, v%d, v%d' % (o + j, d, d + 1))
            a('buffer_store_dwordx2 %s, v56, s[16:19], s15 offen offset:%d' % (vr(o, 2), hf * 512 + p * 1024))
    for j in range(2):
        a('v_cvt_pk_bf16_f32 v%d, v%d, 0' % (60 + j, D3 + 16 + j * 4))
    a('buffer_store_dwordx2 v[60:61], v57, s[16:19], s15 offen')
    st()
    st.flush()
    a('s_endpgm')
    a.label('K1_TR')
    a('s_cmp_ge_u32 s2, 320')
    a('s_cbranch_scc1 K1_END')
    a('s_load_dwordx4 s[4:7], s[0:1], 8')
    a('s_load_dwordx2 s[12:13], s[0:1], 80')
    a('s_sub_u32 s3, s2, 256')
    a('s_and_b32 s14, s3, 7')
    a('s_lshr_b32 s15, s3, 3')
    a('s_lshl_b32 s20, s14, 3')
    a('s_lshl_b32 s21, s15, 8')
    a('s_add_u32 s20, s20, s21')
    a('s_mul_i32 s20, s20, 514')
    for r in range(1, 4):
        a('s_add_u32 s%d, s20, %d' % (20 + r, r * 64 * 514))
    a('v_lshlrev_b32 v1, 4, v0')
    a('v_and_b32 v2, 3, v0')
    a('v_mul_u32_u24 v2, %d, v2' % (64 * 514))
    a('v_add_u32 v2, 4096, v2')
    a('s_waitcnt lgkmcnt(0)')
    srd(a, 8, 4, 2048 * 514)
    srd(a, 16, 6, 2048 * 514)
    srd(a, 24, 12, SZ_WT, WS_WT)
    for r in range(4):
        a('buffer_load_dwordx4 %s, v1, s[8:11], s%d offen' % (vr(4 + 4 * r, 4), 20 + r))
    for r in range(4):
        a('buffer_load_dwordx4 %s, v1, s[16:19], s%d offen' % (vr(20 + 4 * r, 4), 20 + r))
    a('buffer_load_dwordx4 v[36:39], v2, s[8:11], s20 offen')
    a('buffer_load_dwordx4 v[40:43], v2, s[16:19], s20 offen')
    RUN = 4112
    a('v_and_b32 v3, 3, v0')
    a('v_mul_u32_u24 v3, %d, v3' % RUN)
    a('v_add_u32 v3, 4096, v3')
    a('v_and_b32 v45, 7, v0')
    a('v_bfe_u32 v46, v0, 3, 3')
    a('v_lshrrev_b32 v47, 6, v0')
    a('v_lshrrev_b32 v48, 1, v47')
    a('v_lshlrev_b32 v48, 7, v48')
    a('v_lshl_add_u32 v48, v46, 4, v48')
    a('v_and_b32 v47, 1, v47')
    a('v_lshl_add_u32 v48, v47, 3, v48')
    a('v_mul_u32_u24 v49, 514, v45')
    a('v_lshl_add_u32 v49, v48, 1, v49')
    a('v_lshlrev_b32 v50, 13, v48')
    a('v_lshl_add_u32 v50, v45, 4, v50')
    a('s_lshr_b32 s28, s14, 1')
    a('s_lshl_b32 s28, s28, 11')
    a('s_lshr_b32 s29, s15, 2')
    a('s_lshl_b32 s29, s29, 10')
    a('s_add_u32 s28, s28, s29')
    a('s_and_b32 s29, s15, 3')
    a('s_lshl_b32 s29, s29, 8')
    a('s_add_u32 s28, s28, s29')
    a('s_and_b32 s29, s14, 1')
    a('s_lshl_b32 s29, s29, 7')
    a('s_add_u32 s28, s28, s29')
    for r in range(8):
        a('s_waitcnt vmcnt(%d)' % (9 - r))
        a('ds_write_b128 v1, %s offset:%d' % (vr(4 + 4 * r, 4), r * RUN))
    a('s_waitcnt vmcnt(0)')
    a('v_cmp_gt_u32 vcc, 4, v0')
    a('s_and_saveexec_b64 s[30:31], vcc')
    a('s_cbranch_execz K1_TR2')
    a('ds_write_b128 v3, v[36:39]')
    a('ds_write_b128 v3, v[40:43] offset:%d' % (4 * RUN))
    a.label('K1_TR2')
    a('s_mov_b64 exec, s[30:31]')
    a('s_waitcnt lgkmcnt(0)')
    a('s_barrier')
    for it in range(9):
        koff = it if it < 8 else None
        if it == 8:
            a('v_add_u32 v49, 512, v49')
            a('v_add_u32 v50, 0x%x, v50' % (256 * 8192))
            koff = 0
        base = 4 + (it % 2) * 12
        for r in range(4):
            a('ds_read_u16 v%d, v49 offset:%d' % (base + 2 * r, r * RUN + koff * 2))
            a('ds_read_u16 v%d, v49 offset:%d' % (base + 2 * r + 1, (4 + r) * RUN + koff * 2))
        a('s_waitcnt lgkmcnt(0)')
        o = 28 + (it % 2) * 4
        for r in range(4):
            a('v_lshl_or_b32 v%d, v%d, 16, v%d' % (o + r, base + 2 * r + 1, base + 2 * r))
        if it < 8:
            a('s_add_u32 s29, s28, %d' % (it * 8192))
        else:
            a('s_mov_b32 s29, s28')
        a('buffer_store_dwordx4 %s, v50, s[24:27], s29 offen' % vr(o, 4))
    a.label('K1_END')
    a('s_endpgm')
    return dict(name=L, asm=a, grid=320, lds=8 * 4112 + 1024, vgpr=128, sgpr=56)

def gen_k2():
    a = Asm()
    L = 'k2_kernel'
    a.label(L)
    a('s_cmp_ge_u32 s2, 257')
    a('s_cbranch_scc1 K2_END')
    st = Stamper(a, 2)
    st()
    a('s_load_dwordx2 s[4:5], s[0:1], 80')
    for t in pf_for(2):
        a('s_load_dwordx2 s[%d:%d], s[0:1], %d' % ((44, 45, 32) if t == 'a' else (46, 47, 48)))
    a('v_and_b32 v1, 63, v0')
    a('v_lshrrev_b32 v2, 6, v0')
    a('s_and_b32 s12, s2, 7')
    a('s_lshl_b32 s12, s12, 5')
    a('v_readfirstlane_b32 s3, v2')
    a('s_lshr_b32 s13, s2, 3')
    a('s_add_u32 s12, s12, s13')
    a('s_cmp_eq_u32 s2, 256')
    a('s_cselect_b32 s12, 256, s12')
    G, N = 2, 3
    a('v_lshrrev_b32 v2, 4, v1')
    a('v_and_b32 v3, 15, v1')
    a('v_lshlrev_b32 v4, 3, v3')
    a('v_lshrrev_b32 v5, 1, v2')
    a('v_add_u32 v4, v4, v5')
    a('v_mul_u32_u24 v4, 8320, v4')
    a('v_and_b32 v5, 1, v2')
    a('v_lshl_add_u32 v4, v5, 4, v4')
    a('s_lshl_b32 s14, s3, 1')
    a('s_mul_i32 s14, s14, 8320')
    a('s_lshl_b32 s15, s12, 5')
    a('s_add_u32 s14, s14, s15')
    a('s_add_u32 s15, s14, %d' % (128 * 8320))
    a('s_lshl_b32 s16, s3, 11')
    a('v_lshlrev_b32 v5, 4, v1')
    a('s_lshl_b32 s17, s12, 13')
    a('s_add_u32 s17, s17, s16')
    a('s_waitcnt lgkmcnt(0)')
    srd(a, 8, 4, SZ_X1, WS_X1)
    a('s_mov_b32 m0, s16')
    srd(a, 20, 4, SZ_WT, WS_WT)
    a('buffer_load_dwordx4 v4, s[8:11], s14 offen lds')
    a('s_add_u32 m0, s16, 1024')
    srd(a, 24, 4, SZ_Y1, WS_Y1)
    a('buffer_load_dwordx4 v4, s[8:11], s15 offen lds')
    W = 112
    a('buffer_load_dwordx4 %s, v5, s[20:23], s17 offen' % vr(W, 4))
    a('buffer_load_dwordx4 %s, v5, s[20:23], s17 offen offset:1024' % vr(W + 4, 4))
    npf = 0
    for t in pf_for(2):
        npf += prefetch(a, t, 44 if t == 'a' else 46, 48, 52, 1, 193, 192)
    st()
    TAB = 16384
    T = 176
    a('v_cvt_f32_u32 v%d, v1' % T)
    a('v_mul_f32 v%d, %s, v%d' % (T, fl(1.0 / 64), T))
    a('v_cos_f32 v%d, v%d' % (T + 1, T))
    a('v_sin_f32 v%d, v%d' % (T + 2, T))
    a('s_lshl_b32 s18, s3, 9')
    a('s_add_u32 s18, s18, %d' % TAB)
    a('v_mov_b32 v6, s18')
    a('v_cvt_pk_bf16_f32 v%d, v%d, v%d' % (T + 1, T + 1, T + 2))
    a('v_lshl_add_u32 v%d, v1, 2, v6' % (T + 2))
    a('ds_write2st64_b32 v%d, v%d, v%d offset0:0 offset1:1' % (T + 2, T + 1, T + 1))
    F64, F32 = 16, 48
    a('s_mov_b32 s19, 0xff')
    a('s_lshl_b32 s28, s3, 4')
    a('v_add_u32 v7, s28, v3')
    a('v_lshlrev_b32 v8, 2, v7')
    a('v_lshlrev_b32 v9, 2, v2')
    a('v_mul_u32_u24 v10, v9, v8')
    for ks in range(2):
        for rr in range(4):
            t = T + 4 + ks * 4 + rr
            a('v_mad_u32_u24 v%d, v8, %d, v10' % (t, 16 * ks + rr))
            a('v_and_or_b32 v%d, v%d, s19, v6' % (t, t))
    a('v_lshlrev_b32 v11, 3, v3')
    a('v_mul_u32_u24 v12, v9, v11')
    for rr in range(4):
        t = T + 12 + rr
        a('v_mad_u32_u24 v%d, v11, %d, v12' % (t, rr))
        a('v_and_or_b32 v%d, v%d, s19, v6' % (t, t))
    for ks in range(2):
        for rr in range(4):
            t = T + 4 + ks * 4 + rr
            a('ds_read_b32 v%d, v%d' % (F64 + ks * 8 + rr, t))
            a('ds_read_b32 v%d, v%d offset:64' % (F64 + ks * 8 + 4 + rr, t))
    for rr in range(4):
        t = T + 12 + rr
        a('ds_read_b32 v%d, v%d' % (F32 + rr, t))
        a('ds_read_b32 v%d, v%d offset:64' % (F32 + 4 + rr, t))
    T1C, T1S, T2C, T2S = 80, 88, 96, 104
    a('v_cvt_f32_u32 v%d, v7' % T)
    a('v_mul_f32 v%d, %s, v%d' % (T, fl(1.0 / 2048), T))
    a('v_cvt_f32_u32 v%d, v9' % (T + 1))
    for mt in range(2):
        for r in range(4):
            q = mt * 4 + r
            a('v_add_f32 v%d, %s, v%d' % (T + 2, fl(float(16 * mt + r)), T + 1))
            a('v_mul_f32 v%d, v%d, v%d' % (T + 2, T + 2, T))
            a('v_cos_f32 v%d, v%d' % (T1C + q, T + 2))
            a('v_sin_f32 v%d, v%d' % (T1S + q, T + 2))
    a('v_add_u32 v13, s28, v9')
    a('v_cvt_f32_u32 v%d, v13' % (T + 1))
    a('v_cvt_f32_u32 v%d, v3' % T)
    a('v_mul_f32 v%d, %s, v%d' % (T, fl(1.0 / 2048), T))
    a('v_add_f32 v%d, %s, v%d' % (T + 3, fl(16.0 / 2048), T))
    for bt in range(2):
        for r in range(4):
            q = bt * 4 + r
            a('v_add_f32 v%d, %s, v%d' % (T + 2, fl(float(r)), T + 1))
            a('v_mul_f32 v%d, v%d, v%d' % (T + 2, T + 2, T + 3 * bt))
            a('v_cos_f32 v%d, v%d' % (T2C + q, T + 2))
            a('v_sin_f32 v%d, v%d' % (T2S + q, T + 2))
    a('v_and_b32 v14, 1, v1')
    a('v_mul_u32_u24 v14, 0x8000, v14')
    a('v_lshl_or_b32 v14, v14, 16, v14')
    a('s_waitcnt lgkmcnt(0)')
    for q in range(16):
        a('v_xor_b32 v%d, v%d, v14' % (F64 + 16 + q, F64 + q))
    for q in range(8):
        a('v_xor_b32 v%d, v%d, v14' % (F32 + 8 + q, F32 + q))
    for K in range(2):
        for q in range(8):
            src = F32 + K * 8 + q
            dst = F32 + 16 + K * 8 + q
            if (q & 1):
                a('v_xor_b32 v%d, 0x80008000, v%d' % (dst, src))
            else:
                a('v_mov_b32 v%d, v%d' % (dst, src))
    a('v_lshlrev_b32 v15, 8, v3')
    a('v_lshl_add_u32 v15, v2, 4, v15')
    a('s_mul_i32 s29, s12, 8320')
    a('s_lshl_b32 s30, s3, 6')
    a('s_add_u32 s29, s29, s30')
    a('s_add_u32 s30, s29, 4096')
    FR = 120
    D = 152
    P = 168
    st()
    a('s_waitcnt vmcnt(%d)' % (2 + npf))
    st()
    a('s_barrier')
    st()
    for ks in range(4):
        for mt in range(2):
            a('ds_read_b128 %s, v5 offset:%d' % (vr(FR + (ks * 2 + mt) * 4, 4), (ks * 2 + mt) * 1024))
    for ks in range(4):
        a('s_waitcnt lgkmcnt(%d)' % (6 - 2 * ks))
        for mt in range(2):
            for ro in range(2):
                d = D + (mt * 2 + ro) * 4
                c = '0' if ks == 0 else vr(d, 4)
                a('v_mfma_f32_16x16x32_bf16 %s, %s, %s, %s' % (vr(d, 4), vr(FR + (ks * 2 + mt) * 4, 4), vr(F64 + ks * 8 + ro * 4, 4), c))

    def twpack(TC, TS):
        for mt in range(2):
            dre = D + (mt * 2) * 4
            dim = dre + 4
            for r in range(4):
                cmul_tw(a, dre + r, dim + r, TC + mt * 4 + r, TS + mt * 4 + r, T + 2 * r, T + 2 * r + 1, -1)
            for r in range(4):
                a('v_cvt_pk_bf16_f32 v%d, v%d, v%d' % (P + mt * 4 + r, T + 2 * r, T + 2 * r + 1))
    twpack(T1C, T1S)
    for mt in range(2):
        for et in range(2):
            for ro in range(2):
                d = D + (et * 2 + ro) * 4
                c = '0' if mt == 0 else vr(d, 4)
                a('v_mfma_f32_16x16x32_bf16 %s, %s, %s, %s' % (vr(d, 4), vr(F32 + (et * 2 + mt) * 8 + ro * 4, 4), vr(P + mt * 4, 4), c))
    st()
    a('s_waitcnt vmcnt(%d)' % npf)
    st()
    for t in range(2):
        for r in range(4):
            wv = W + t * 4 + r
            xr, xi = D + (t * 2) * 4 + r, D + (t * 2 + 1) * 4 + r
            a('v_lshlrev_b32 v%d, 16, v%d' % (T + 8, wv))
            a('v_and_b32 v%d, 0xffff0000, v%d' % (T + 9, wv))
            cmul_tw(a, xr, xi, T + 8, T + 9, T + 10, T + 11, +1)
            a('v_cvt_pk_bf16_f32 v%d, v%d, -v%d' % (P + t * 4 + r, T + 10, T + 11))
    for t in range(2):
        for bt in range(2):
            for ro in range(2):
                d = D + (bt * 2 + ro) * 4
                c = '0' if t == 0 else vr(d, 4)
                a('v_mfma_f32_16x16x32_bf16 %s, %s, %s, %s' % (vr(d, 4), vr(P + t * 4, 4), vr(F32 + (bt * 2 + t) * 8 + ro * 4, 4), c))
    twpack(T2C, T2S)
    EX = 8192
    a('s_add_u32 s31, s16, %d' % EX)
    a('v_add_u32 v4, s31, v5')
    a('ds_write_b128 v4, %s' % vr(P, 4))
    a('ds_write_b128 v4, %s offset:1024' % vr(P + 4, 4))
    a('s_waitcnt lgkmcnt(0)')
    st()
    a('s_barrier')
    st()
    for ks in range(4):
        for nt in range(2):
            a('ds_read_b128 %s, v5 offset:%d' % (vr(FR + (ks * 2 + nt) * 4, 4), EX + (ks * 2 + nt) * 1024))
    for ks in range(4):
        a('s_waitcnt lgkmcnt(%d)' % (6 - 2 * ks))
        for nt in range(2):
            for ro in range(2):
                d = D + (nt * 2 + ro) * 4
                c = '0' if ks == 0 else vr(d, 4)
                a('v_mfma_f32_16x16x32_bf16 %s, %s, %s, %s' % (vr(d, 4), vr(F64 + ks * 8 + ro * 4, 4), vr(FR + (ks * 2 + nt) * 4, 4), c))
    for nt in range(2):
        dre = D + nt * 8
        for r in range(4):
            a('v_cvt_pk_bf16_f32 v%d, v%d, -v%d' % (P + nt * 4 + r, dre + r, dre + 4 + r))
        a('buffer_store_dwordx4 %s, v15, s[24:27], s%d offen' % (vr(P + nt * 4, 4), 29 + nt))
    st()
    st.flush()
    a.label('K2_END')
    a('s_endpgm')
    return dict(name=L, asm=a, grid=257, lds=16384 + 2048, vgpr=196, sgpr=56)

def gen_k3():
    a = Asm()
    L = 'k3_kernel'
    a.label(L)
    a('s_cmp_ge_u32 s2, 256')
    a('s_cbranch_scc1 K3_END')
    st = Stamper(a, 3)
    st()
    a('s_load_dwordx2 s[4:5], s[0:1], 80')
    a('s_load_dwordx2 s[6:7], s[0:1], 0')
    for t in pf_for(3):
        a('s_load_dwordx2 s[%d:%d], s[0:1], %d' % ((44, 45, 32) if t == 'a' else (46, 47, 48)))
    a('v_and_b32 v1, 63, v0')
    a('v_lshrrev_b32 v2, 6, v0')
    a('s_and_b32 s12, s2, 7')
    a('s_lshr_b32 s13, s2, 3')
    a('v_readfirstlane_b32 s3, v2')
    a('s_lshl_b32 s12, s12, 2')
    a('s_lshr_b32 s14, s13, 3')
    a('s_add_u32 s12, s12, s14')
    a('s_and_b32 s13, s13, 7')
    a('s_lshl_b32 s14, s12, 8')
    a('s_lshl_b32 s15, s13, 5')
    a('s_add_u32 s14, s14, s15')
    a('v_mul_u32_u24 v4, 8320, v0')
    a('s_lshl_b32 s15, s13, 8')
    a('s_lshl_b32 s16, s3, 6')
    a('s_add_u32 s15, s15, s16')
    a('s_add_u32 s15, s15, s12')
    a('s_lshl_b32 s15, s15, 10')
    a('s_add_u32 s16, s15, 32768')
    a('v_lshrrev_b32 v2, 4, v1')
    a('v_and_b32 v3, 15, v1')
    a('v_lshlrev_b32 v5, 5, v3')
    a('v_lshl_add_u32 v5, v2, 3, v5')
    a('s_lshl_b32 s17, s3, 3')
    a('s_add_u32 s17, s17, s14')
    a('s_waitcnt lgkmcnt(0)')
    srd(a, 8, 4, SZ_Y1, WS_Y1)
    a('buffer_load_dwordx4 v[8:11], v4, s[8:11], s14 offen')
    a('buffer_load_dwordx4 v[12:15], v4, s[8:11], s14 offen offset:16')
    srd(a, 20, 6, 2048 * 1024)
    XR = 16
    for j in range(2):
        for t in range(2):
            a('buffer_load_dwordx2 %s, v5, s[20:23], s%d offen offset:%d' % (vr(XR + (j * 2 + t) * 2, 2), 15 + j, t * 512))
    a('s_add_u32 s24, s4, 0x%x' % WS_Y1)
    a('s_addc_u32 s25, s5, 0')
    a('s_add_u32 s24, s24, s17')
    a('s_addc_u32 s25, s25, 0')
    a('s_load_dwordx2 s[26:27], s[24:25], 0')
    a('s_add_u32 s42, s24, 0x%x' % (256 * 8320))
    a('s_addc_u32 s43, s25, 0')
    a('s_load_dwordx2 s[28:29], s[42:43], 0')
    npf = 0
    for t in pf_for(3):
        npf += prefetch(a, t, 44 if t == 'a' else 46, 48, 52, 1, 129, 128)
    srd(a, 32, 4, SZ_H, WS_H)
    srd(a, 36, 4, SZ_L2, WS_L2)
    st()
    T = 96
    FG, FN = 6, 7
    a('v_cvt_f32_u32 v%d, v2' % FG)
    a('v_cvt_f32_u32 v%d, v3' % FN)
    B1 = 24
    a('v_mul_f32 v%d, %s, v%d' % (T, fl(-1.0 / 16), FN))
    a('v_add_f32 v%d, v%d, v%d' % (T + 1, FG, FG))
    a('v_add_f32 v%d, 1.0, v%d' % (T + 2, T + 1))
    a('v_mul_f32 v%d, v%d, v%d' % (T + 3, T, T + 1))
    a('v_mul_f32 v%d, v%d, v%d' % (T + 4, T, T + 2))
    a('v_add_f32 v%d, %s, v%d' % (T + 5, fl(0.25), T + 3))
    a('v_add_f32 v%d, %s, v%d' % (T + 6, fl(0.25), T + 4))
    for q in range(4):
        a('v_cos_f32 v%d, v%d' % (T + 8 + q, T + 3 + q))
        a('v_sin_f32 v%d, v%d' % (T + 12 + q, T + 3 + q))
    for q in range(4):
        a('v_cvt_pk_bf16_f32 v%d, v%d, v%d' % (B1 + q, T + 8 + q, T + 12 + q))
    TC, TS = 28, 36
    a('v_mul_f32 v%d, %s, v%d' % (T, fl(1.0 / 512), FN))
    a('v_mul_f32 v%d, 4.0, v%d' % (T + 1, FG))
    for hf in range(2):
        for r in range(4):
            q = hf * 4 + r
            a('v_add_f32 v%d, %s, v%d' % (T + 2, fl(float(16 * hf + r)), T + 1))
            a('v_mul_f32 v%d, v%d, v%d' % (T + 2, T + 2, T))
            a('v_cos_f32 v%d, v%d' % (TC + q, T + 2))
            a('v_sin_f32 v%d, v%d' % (TS + q, T + 2))
    B3 = 44
    a('v_mul_f32 v%d, %s, v%d' % (T, fl(1.0 / 32), FN))
    for rr in range(4):
        a('v_add_f32 v%d, %s, v%d' % (T + 2, fl(float(rr)), T + 1))
        a('v_mul_f32 v%d, v%d, v%d' % (T + 2, T + 2, T))
        a('v_cos_f32 v%d, v%d' % (T + 3, T + 2))
        a('v_sin_f32 v%d, v%d' % (T + 4, T + 2))
        a('v_cvt_pk_bf16_f32 v%d, v%d, -v%d' % (B3 + rr, T + 3, T + 4))
    a('v_and_b32 v%d, 1, v1' % (T + 5))
    a('v_mul_u32_u24 v%d, 0x8000, v%d' % (T + 5, T + 5))
    a('v_lshl_or_b32 v%d, v%d, 16, v%d' % (T + 5, T + 5, T + 5))
    for rr in range(4):
        a('v_xor_b32 v%d, v%d, v%d' % (B3 + 4 + rr, B3 + rr, T + 5))
    for hf in range(2):
        for rr in range(4):
            src, dst = B3 + hf * 4 + rr, B3 + 8 + hf * 4 + rr
            if rr & 1:
                a('v_xor_b32 v%d, 0x80008000, v%d' % (dst, src))
            else:
                a('v_mov_b32 v%d, v%d' % (dst, src))
    a('v_lshrrev_b32 v60, 6, v0')
    a('v_mul_u32_u24 v60, 80, v60')
    a('v_add_u32 v60, v60, v1')
    a('v_lshlrev_b32 v60, 2, v60')
    a('v_mul_u32_u24 v61, 80, v2')
    a('v_add_u32 v61, v61, v3')
    a('v_lshlrev_b32 v61, 2, v61')
    a('s_mul_i32 s18, s3, 2560')
    a('v_add_u32 v61, s18, v61')
    R2 = 10240
    a('s_mul_i32 s19, s3, 2176')
    a('s_add_u32 s19, s19, %d' % R2)
    a('v_add_u32 v62, s19, v5')
    a('v_lshrrev_b32 v63, 2, v3')
    a('v_mul_u32_u24 v63, 1088, v63')
    a('v_lshl_add_u32 v63, v2, 5, v63')
    a('v_and_b32 v%d, 3, v1' % T)
    a('v_lshl_add_u32 v63, v%d, 3, v63' % T)
    a('s_lshl_b32 s30, s3, 8')
    a('s_add_u32 s30, s30, %d' % R2)
    a('v_add_u32 v63, s30, v63')
    st()
    a('s_waitcnt vmcnt(%d)' % (4 + npf))
    st()
    for q in range(4):
        a('ds_write2st64_b32 v60, v%d, v%d offset0:%d offset1:%d' % (8 + 2 * q, 9 + 2 * q, 10 * q, 10 * q + 5))
    a('s_waitcnt lgkmcnt(0)')
    a('s_barrier')
    st()
    AF = 64
    for j in range(2):
        for hf in range(2):
            a('ds_read2_b32 %s, v61 offset0:%d offset1:%d' % (vr(AF + (j * 2 + hf) * 2, 2), 16 * hf, 16 * hf + 32) if j == 0 else
              'ds_read2_b32 %s, v%d offset0:%d offset1:%d' % (vr(AF + (j * 2 + hf) * 2, 2), T + 1, 16 * hf, 16 * hf + 32))
        if j == 0:
            a('v_add_u32 v%d, 1280, v61' % (T + 1))
    for j in range(2):
        a('s_lshl_b32 s%d, s%d, 16' % (26 + j, 26 + j))
        a('s_lshl_b32 s%d, s%d, 16' % (28 + j, 28 + j))
    CE, CO = 8, 10
    for j in range(2):
        a('v_mov_b32 v%d, s%d' % (T + 2 + j, 28 + j))
    for j in range(2):
        a('v_subrev_f32 v%d, s%d, v%d' % (CE + j, 26 + j, T + 2 + j))
        a('v_sub_f32 v%d, -v%d, s%d' .replace('v_sub_f32', 'v_sub_f32_e64') % (CO + j, T + 2 + j, 26 + j))
    for j in range(2):
        a('v_mul_f32 v%d, %s, v%d' % (CE + j, fl(2.0 ** -20), CE + j))
        a('v_mul_f32 v%d, %s, v%d' % (CO + j, fl(2.0 ** -20), CO + j))
    D1 = 72
    for j in range(2):
        a('s_waitcnt lgkmcnt(%d)' % (2 - 2 * j))
        for hf in range(2):
            for ro in range(2):
                d = D1 + ((j * 2 + hf) * 2 + ro) * 4
                a('v_mfma_f32_16x16x16_bf16 %s, %s, %s, 0' % (vr(d, 4), vr(AF + (j * 2 + hf) * 2, 2), vr(B1 + ro * 2, 2)))
    P = 104
    T2 = 120
    for j in range(2):
        for hf in range(2):
            dre = D1 + ((j * 2 + hf) * 2) * 4
            dim = dre + 4
            for r in range(4):
                cmul_tw(a, dre + r, dim + r, TC + hf * 4 + r, TS + hf * 4 + r, T2 + 2 * r, T2 + 2 * r + 1, +1)
            for r in range(4):
                a('v_cvt_pk_bf16_f32 v%d, v%d, v%d' % (P + (j * 2 + hf) * 4 + r, T2 + 2 * r, T2 + 2 * r + 1))
    D3 = 72
    for hf in range(2):
        for j in range(2):
            for t in range(2):
                d = D3 + (j * 2 + t) * 4
                c = '0' if hf == 0 else vr(d, 4)
                a('v_mfma_f32_16x16x32_bf16 %s, %s, %s, %s' % (vr(d, 4), vr(P + (j * 2 + hf) * 4, 4), vr(B3 + t * 8 + hf * 4, 4), c))
    X = [[D3 + j * 8 + k for k in range(8)] for j in range(2)]
    a('v_mov_b32 v12, %s' % fl(2.0 ** -19))
    for j in range(2):
        for k in range(8):
            a('v_fma_f32 v%d, v%d, v12, v%d' % (X[j][k], X[j][k], (CE if k % 2 == 0 else CO) + j))
    st()
    a('s_waitcnt vmcnt(%d)' % npf)
    st()
    HP = [[88 + j * 4 + q for q in range(4)] for j in range(2)]
    for j in range(2):
        for q in range(4):
            k = 2 * q
            a('v_cvt_pk_bf16_f32 v%d, v%d, v%d' % (T2, X[j][k], X[j][k + 1]))
            xv = XR + j * 4 + q
            a('v_lshlrev_b32 v%d, 16, v%d' % (T2 + 1, T2))
            a('v_and_b32 v%d, 0xffff0000, v%d' % (T2 + 2, T2))
            a('v_lshlrev_b32 v%d, 16, v%d' % (T2 + 3, xv))
            a('v_and_b32 v%d, 0xffff0000, v%d' % (T2 + 4, xv))
            a('v_add_f32 v%d, v%d, v%d' % (T2 + 1, T2 + 1, T2 + 3))
            a('v_add_f32 v%d, v%d, v%d' % (T2 + 2, T2 + 2, T2 + 4))
            a('v_cvt_pk_bf16_f32 v%d, v%d, v%d' % (HP[j][q], T2 + 1, T2 + 2))
            a('v_lshlrev_b32 v%d, 16, v%d' % (X[j][k], HP[j][q]))
            a('v_and_b32 v%d, 0xffff0000, v%d' % (X[j][k + 1], HP[j][q]))
    for j in range(2):
        for t in range(2):
            a('buffer_store_dwordx2 %s, v5, s[32:35], s%d offen offset:%d' % (vr(HP[j][2 * t], 2), 15 + j, t * 512))
    PK = [[104 + j * 4 + q for q in range(4)] for j in range(2)]
    ln_rows(a, X, 112, 40, 2, out_pk=PK, keep_f32=True)
    ln_rows(a, X, 112, 40, 2, out_pk=PK)
    st()
    for j in range(2):
        for t in range(2):
            a('ds_write_b64 v62, %s offset:%d' % (vr(PK[j][2 * t], 2), j * 1088 + t * 512))
    a('s_waitcnt lgkmcnt(0)')
    a('s_barrier')
    O = 72
    for half in range(2):
        for q in range(2):
            a('ds_read_b64_tr_b16 %s, v63 offset:%d' % (vr(O + half * 4 + q * 2, 2), q * 4 * 1088 + half * 128))
    a('s_lshl_b32 s30, s12, 3')
    a('s_add_u32 s30, s30, s13')
    a('s_lshl_b32 s30, s30, 13')
    a('s_lshl_b32 s31, s3, 11')
    a('s_add_u32 s30, s30, s31')
    a('v_lshlrev_b32 v4, 4, v1')
    for half in range(2):
        a('s_waitcnt lgkmcnt(%d)' % (2 - 2 * half))
        a('buffer_store_dwordx4 %s, v4, s[36:39], s30 offen offset:%d' % (vr(O + half * 4, 4), half * 1024))
    st()
    st.flush()
    a.label('K3_END')
    a('s_endpgm')
    return dict(name=L, asm=a, grid=256, lds=10240 + 8 * 1088, vgpr=132, sgpr=56)

class VM:
    def __init__(self, a):
        self.a = a
        self.q = []
        self.last = None

    def issue(self, text, tag):
        self.a(text)
        self.q.append(tag)
        assert len(self.q) <= 63 or True

    def wait(self, tags):
        idx = max([i for i, t in enumerate(self.q) if t in tags], default=-1)
        if idx < 0:
            return
        n = len(self.q) - 1 - idx
        assert n <= 63, n
        self.a('s_waitcnt vmcnt(%d)' % n)
        self.q = self.q[idx + 1:]


def gen_k4(DEPTH=8):
    a = Asm()
    L = 'k4_kernel'
    a.label(L)
    a('s_cmp_ge_u32 s2, 232')
    a('s_cbranch_scc1 K4_END')
    st = Stamper(a, 4)
    st()
    a('s_load_dwordx4 s[4:7], s[0:1], 32')
    a('s_load_dwordx2 s[12:13], s[0:1], 80')
    if pf_for(4):
        a('s_load_dwordx2 s[46:47], s[0:1], 48')
    a('v_and_b32 v1, 63, v0')
    a('v_lshrrev_b32 v2, 6, v0')
    a('s_and_b32 s14, s2, 7')
    a('s_lshr_b32 s15, s2, 3')
    a('v_readfirstlane_b32 s3, v2')
    a('s_lshr_b32 s16, s14, 1')
    a('s_mul_i32 s16, s16, 29')
    a('s_add_u32 s16, s16, s15')
    a('s_and_b32 s14, s14, 1')
    a('s_lshl_b32 s14, s14, 2')
    a('s_and_b32 s15, s16, 3')
    a('s_add_u32 s14, s14, s15')
    a('s_lshr_b32 s15, s16, 2')
    a('v_lshrrev_b32 v2, 4, v1')
    a('v_and_b32 v3, 15, v1')
    for m in range(3):
        a('v_add_u32 v10, %d, v1' % (64 * m))
        a('v_mul_u32_u24 v11, 171, v10')
        a('v_lshrrev_b32 v11, 10, v11')
        a('v_mul_u32_u24 v12, 6, v11')
        a('v_sub_u32 v12, v10, v12')
        a('v_bfe_u32 v13, v11, 2, 2')
        a('v_lshlrev_b32 v13, 8, v13')
        a('v_lshrrev_b32 v14, 4, v11')
        a('v_lshl_add_u32 v13, v14, 7, v13')
        a('v_and_b32 v14, 3, v11')
        a('v_lshl_add_u32 v13, v14, 5, v13')
        a('v_mul_u32_u24 v13, 2752, v13')
        a('v_lshl_add_u32 v%d, v12, 4, v13' % (4 + m))
        if m:
            a('v_subrev_u32 v%d, %d, v%d' % (4 + m, 1024 * m, 4 + m))
    a('v_lshlrev_b32 v7, 13, v2')
    a('v_lshl_add_u32 v7, v3, 4, v7')
    a('v_lshrrev_b32 v10, 2, v3')
    a('v_lshl_add_u32 v10, v2, 2, v10')
    a('v_mul_u32_u24 v10, 96, v10')
    a('v_and_b32 v11, 3, v1')
    a('v_lshl_add_u32 v8, v11, 3, v10')
    a('s_mul_i32 s17, s3, %d' % (DEPTH * 3072))
    a('v_add_u32 v8, s17, v8')
    a('s_mul_i32 s18, s3, %d' % (8 * 2752))
    a('s_mul_i32 s19, s15, 96')
    a('s_add_u32 s18, s18, s19')
    a('s_lshl_b32 s19, s3, 19')
    a('s_lshl_b32 s20, s14, 10')
    a('s_add_u32 s19, s19, s20')
    a('s_mul_i32 s21, s15, 96')
    a('v_lshlrev_b32 v9, 3, v2')
    a('s_waitcnt lgkmcnt(0)')
    srd(a, 8, 4, 2048 * 2752)
    srd(a, 24, 12, SZ_L2, WS_L2)
    srd(a, 28, 6, 2752)
    srd(a, 32, 12, SZ_U, WS_U)
    st()
    vm = VM(a)
    BI = 10
    ACC = 16
    AF = 64
    BR = 88

    ROT = os.environ.get('ROT', '1') == '1'
    if ROT:
        a('s_and_b32 s42, s15, 7')

    def stage(k):
        slot = k % DEPTH
        a('s_add_u32 m0, s17, %d' % (slot * 3072))
        if ROT:
            a('s_add_u32 s43, s42, %d' % (k >> 1))
            a('s_and_b32 s43, s43, 7')
            a('s_mul_i32 s22, s43, 2752')
            a('s_lshl_b32 s23, s43, 16')
            a('s_add_u32 s22, s22, s18')
            a('s_add_u32 s23, s23, s19')
            if k & 1:
                a('s_add_u32 s22, s22, %d' % (1024 * 2752))
                a('s_add_u32 s23, s23, 32768')
        else:
            a('s_add_u32 s22, s18, %d' % (((k & 1) * 1024 + (k >> 1)) * 2752))
            a('s_add_u32 s23, s19, %d' % (k * 32768))
        for m in range(3):
            vm.issue('buffer_load_dwordx4 v%d, s[8:11], s22 offen offset:%d lds' % (4 + m, 1024 * m), ('A', k))
        for nt in range(4):
            vm.issue('buffer_load_dwordx4 %s, v7, s[24:27], s23 offen offset:%d' % (vr(BR + slot * 16 + nt * 4, 4), nt * 256), ('B', k))

    def aread(k):
        slot = k % DEPTH
        for mt in range(3):
            for q in range(2):
                a('ds_read_b64_tr_b16 %s, v8 offset:%d' % (vr(AF + (k & 1) * 12 + mt * 4 + q * 2, 2), slot * 3072 + q * 16 * 96 + mt * 32))

    for k in range(DEPTH):
        stage(k)
    for mt in range(3):
        vm.issue('buffer_load_dwordx2 %s, v9, s[28:31], s21 offen offset:%d' % (vr(BI + 2 * mt, 2), 32 * mt), ('bias',))
    NK = 16
    st()
    vm.wait({('A', 0)})
    st()
    aread(0)
    for k in range(NK):
        if k + 1 < NK:
            vm.wait({('A', k + 1), ('B', k)})
            aread(k + 1)
            a('s_waitcnt lgkmcnt(6)')
        else:
            vm.wait({('B', k)})
            a('s_waitcnt lgkmcnt(0)')
        slot = k % DEPTH
        for mt in range(3):
            for nt in range(4):
                d = ACC + (mt * 4 + nt) * 4
                c = '0' if k == 0 else vr(d, 4)
                a('v_mfma_f32_16x16x32_bf16 %s, %s, %s, %s' % (vr(d, 4), vr(AF + (k & 1) * 12 + mt * 4, 4), vr(BR + slot * 16 + nt * 4, 4), c))
        if k + DEPTH < NK:
            stage(k + DEPTH)
        if k in (0, 3, 7, 11, 15):
            st()
    if pf_for(4):
        prefetch(a, 'b', 46, 48, 52, 1, 9, 8, issue=lambda t: vm.issue(t, ('pf',)), nwaves=116)
    a('s_barrier')
    a('v_lshlrev_b32 v4, 4, v1')
    a('s_mul_i32 s22, s3, 3072')
    a('v_add_u32 v5, s22, v4')
    for nt in range(4):
        for mt in range(3):
            a('ds_write_b128 v5, %s offset:%d' % (vr(ACC + (mt * 4 + nt) * 4, 4), nt * 12288 + mt * 1024))
    a('s_mul_i32 s22, s3, 12288')
    a('v_add_u32 v6, s22, v4')
    a('s_waitcnt lgkmcnt(0)')
    a('s_barrier')
    st()
    R = 88
    for src in range(4):
        for mt in range(3):
            a('ds_read_b128 %s, v6 offset:%d' % (vr(R + (src * 3 + mt) * 4, 4), src * 3072 + mt * 1024))
    a('s_lshl_b32 s22, s14, 2')
    a('s_add_u32 s22, s22, s3')
    a('s_mul_i32 s22, s22, %d' % (43 * 1024))
    a('s_mul_i32 s23, s15, 3')
    for mt in range(3):
        a('s_add_u32 s36, s23, %d' % mt)
        a('s_lshr_b32 s37, s36, 1')
        a('s_lshl_b32 s37, s37, 10')
        a('s_and_b32 s36, s36, 1')
        a('s_lshl_b32 s36, s36, 3')
        a('s_add_u32 s37, s37, s36')
        a('s_add_u32 s%d, s37, s22' % (38 + mt))
    a('s_waitcnt lgkmcnt(0)')
    vm.wait({('bias',)})
    S = 16
    for mt in range(3):
        for r in range(4):
            x0, x1, x2, x3 = [R + (src * 3 + mt) * 4 + r for src in range(4)]
            a('v_add_f32 v%d, v%d, v%d' % (x0, x0, x1))
            a('v_add_f32 v%d, v%d, v%d' % (x2, x2, x3))
            a('v_add_f32 v%d, v%d, v%d' % (S + mt * 4 + r, x0, x2))
    T = 40
    C1 = -2.0 * 1.4426950408889634 * 0.7978845608028654
    C2 = C1 * 0.044715
    a('v_mov_b32 v60, %s' % fl(C1))
    for mt in range(3):
        u = [S + mt * 4 + r for r in range(4)]
        a('v_cvt_pk_bf16_f32 v%d, v%d, v%d' % (T, u[0], u[1]))
        a('v_cvt_pk_bf16_f32 v%d, v%d, v%d' % (T + 1, u[2], u[3]))
        for h in range(2):
            a('v_lshlrev_b32 v%d, 16, v%d' % (u[2 * h], T + h))
            a('v_and_b32 v%d, 0xffff0000, v%d' % (u[2 * h + 1], T + h))
            a('v_lshlrev_b32 v%d, 16, v%d' % (T + 2, BI + 2 * mt + h))
            a('v_and_b32 v%d, 0xffff0000, v%d' % (T + 3, BI + 2 * mt + h))
            a('v_add_f32 v%d, v%d, v%d' % (u[2 * h], u[2 * h], T + 2))
            a('v_add_f32 v%d, v%d, v%d' % (u[2 * h + 1], u[2 * h + 1], T + 3))
        a('v_cvt_pk_bf16_f32 v%d, v%d, v%d' % (T, u[0], u[1]))
        a('v_cvt_pk_bf16_f32 v%d, v%d, v%d' % (T + 1, u[2], u[3]))
        for h in range(2):
            a('v_lshlrev_b32 v%d, 16, v%d' % (u[2 * h], T + h))
            a('v_and_b32 v%d, 0xffff0000, v%d' % (u[2 * h + 1], T + h))
        for r in range(4):
            a('v_mul_f32 v%d, v%d, v%d' % (T + 4 + r, u[r], u[r]))
        for r in range(4):
            a('v_fmamk_f32 v%d, v%d, %s, v60' % (T + 4 + r, T + 4 + r, fl(C2)))
        for r in range(4):
            a('v_mul_f32 v%d, v%d, v%d' % (T + 4 + r, T + 4 + r, u[r]))
        for r in range(4):
            a('v_exp_f32 v%d, v%d' % (T + 4 + r, T + 4 + r))
        for r in range(4):
            a('v_add_f32 v%d, 1.0, v%d' % (T + 4 + r, T + 4 + r))
        for r in range(4):
            a('v_rcp_f32 v%d, v%d' % (T + 4 + r, T + 4 + r))
        for r in range(4):
            a('v_mul_f32 v%d, v%d, v%d' % (u[r], u[r], T + 4 + r))
        o = 48 + 2 * mt
        a('v_cvt_pk_bf16_f32 v%d, v%d, v%d' % (o, u[0], u[1]))
        a('v_cvt_pk_bf16_f32 v%d, v%d, v%d' % (o + 1, u[2], u[3]))
        if mt == 2:
            a('s_cmp_eq_u32 s15, 28')
            a('s_cbranch_scc1 K4_FL')
        a('buffer_store_dwordx2 %s, v4, s[32:35], s%d offen' % (vr(o, 2), 38 + mt))
    a.label('K4_FL')
    st.flush()
    a.label('K4_END')
    a('s_endpgm')
    return dict(name=L, asm=a, grid=232, lds=4 * DEPTH * 3072, vgpr=88 + DEPTH * 16, sgpr=56)


def gen_k5(DEPTH=7):
    a = Asm()
    L = NAME + '_kernel'
    a.label(L)
    a('s_cmp_ge_u32 s2, 256')
    a('s_cbranch_scc1 K5_END')
    st = Stamper(a, 5)
    st()
    a('s_load_dwordx4 s[4:7], s[0:1], 48')
    a('s_load_dwordx2 s[12:13], s[0:1], 80')
    a('s_load_dwordx2 s[40:41], s[0:1], 64')
    a('v_and_b32 v1, 63, v0')
    a('v_lshrrev_b32 v2, 6, v0')
    a('s_and_b32 s14, s2, 7')
    a('s_lshr_b32 s15, s2, 3')
    a('v_readfirstlane_b32 s3, v2')
    a('s_and_b32 s16, s14, 1')
    a('s_lshl_b32 s16, s16, 2')
    a('s_and_b32 s17, s15, 3')
    a('s_add_u32 s16, s16, s17')
    a('s_lshr_b32 s14, s14, 1')
    a('s_lshl_b32 s14, s14, 3')
    a('s_lshr_b32 s15, s15, 2')
    a('s_add_u32 s15, s15, s14')
    a('v_lshrrev_b32 v2, 4, v1')
    a('v_and_b32 v3, 15, v1')
    a('v_lshrrev_b32 v10, 3, v1')
    a('v_bfe_u32 v11, v10, 1, 2')
    a('v_lshlrev_b32 v11, 1, v11')
    a('v_and_b32 v12, 7, v1')
    a('v_xor_b32 v11, v11, v12')
    a('v_lshlrev_b32 v11, 4, v11')
    a('v_lshl_add_u32 v4, v10, 12, v11')
    for m in range(1, 4):
        a('v_add_u32 v%d, %d, v4' % (4 + m, m * (32768 - 1024)))
    a('v_lshlrev_b32 v8, 4, v1')
    a('v_lshrrev_b32 v10, 2, v3')
    a('v_lshl_add_u32 v11, v2, 2, v10')
    a('v_bfe_u32 v9, v11, 1, 2')
    a('v_lshlrev_b32 v11, 7, v11')
    a('v_lshl_add_u32 v11, v9, 5, v11')
    a('v_and_b32 v10, 3, v1')
    a('v_lshl_add_u32 v11, v10, 3, v11')
    a('s_mul_i32 s18, s3, %d' % (DEPTH * 4096))
    a('v_add_u32 v12, s18, v11')
    for nt in range(1, 4):
        a('v_xor_b32 v%d, %d, v12' % (12 + nt, nt * 32))
    a('s_mul_i32 s19, s3, %d' % (11 * 32 * 4096))
    a('s_lshl_b32 s20, s15, 7')
    a('s_add_u32 s19, s19, s20')
    a('s_mul_i32 s20, s16, %d' % (4 * 43 * 1024))
    a('s_mul_i32 s21, s3, %d' % (11 * 1024))
    a('s_add_u32 s20, s20, s21')
    a('v_lshlrev_b32 v9, 10, v3')
    a('v_lshl_add_u32 v9, v2, 5, v9')
    a('s_lshl_b32 s21, s15, 6')
    a('s_lshl_b32 s22, s3, 4')
    a('s_add_u32 s21, s21, s22')
    a('s_lshl_b32 s22, s21, 10')
    a('s_lshl_b32 s23, s16, 7')
    a('s_add_u32 s22, s22, s23')
    a('s_lshl_b32 s21, s21, 1')
    a('v_lshlrev_b32 v10, 1, v3')
    a('s_waitcnt lgkmcnt(0)')
    srd(a, 8, 4, 1376 * 4096)
    srd(a, 24, 12, SZ_U, WS_U)
    srd(a, 28, 6, 4096)
    srd(a, 32, 12, SZ_H, WS_H)
    srd(a, 36, 40, 2048 * 1024)
    st()
    vm = VM(a)
    ACC = 24
    BF = 88
    AR = 120
    HR = 16
    NK = 11

    ROT = os.environ.get('ROT', '1') == '1'
    if ROT:
        a('s_and_b32 s43, s15, 7')
        a('s_mul_i32 s43, s43, 11')
        a('s_lshr_b32 s43, s43, 3')
        a('s_cmp_eq_u32 s3, 3')
        a('s_cselect_b32 s44, 10, 99')

    def stage(k):
        slot = k % DEPTH
        a('s_add_u32 m0, s18, %d' % (slot * 4096))
        if ROT:
            if k:
                a('s_add_u32 s43, s43, 1')
                a('s_cmp_eq_u32 s43, 11')
                a('s_cselect_b32 s43, 0, s43')
            a('s_lshl_b32 s23, s43, 17')
            a('s_add_u32 s23, s23, s19')
            a('s_lshl_b32 s42, s43, 10')
            a('s_add_u32 s42, s42, s20')
            a('s_cmp_eq_u32 s43, s44')
            a('s_cselect_b32 s42, 0x7000000, s42')
        else:
            a('s_add_u32 s23, s19, %d' % (k * 32 * 4096))
            a('s_add_u32 s42, s20, %d' % (k * 1024))
            if k == 10:
                a('s_cmp_eq_u32 s3, 3')
                a('s_cselect_b32 s42, 0x7000000, s42')
        for m in range(4):
            vm.issue('buffer_load_dwordx4 v%d, s[8:11], s23 offen offset:%d lds' % (4 + m, 1024 * m), ('B', k))
        for mt in range(4):
            if mt:
                a('s_add_u32 s42, s42, %d' % (43 * 1024))
            vm.issue('buffer_load_dwordx4 %s, v8, s[24:27], s42 offen' % vr(AR + slot * 16 + mt * 4, 4), ('A', k))

    def bread(k):
        slot = k % DEPTH
        for nt in range(4):
            for q in range(2):
                a('ds_read_b64_tr_b16 %s, v%d offset:%d' % (vr(BF + (k & 1) * 16 + nt * 4 + q * 2, 2), 12 + nt, slot * 4096 + q * 2048))

    for k in range(DEPTH):
        stage(k)
    vm.issue('buffer_load_dwordx4 %s, v9, s[32:35], s22 offen' % vr(HR, 4), ('h',))
    vm.issue('buffer_load_dwordx4 %s, v9, s[32:35], s22 offen offset:16' % vr(HR + 4, 4), ('h',))
    vm.issue('buffer_load_ushort v11, v10, s[28:31], s21 offen', ('h',))
    st()
    vm.wait({('B', 0)})
    st()
    bread(0)
    for k in range(NK):
        if k + 1 < NK:
            vm.wait({('B', k + 1), ('A', k)})
            bread(k + 1)
            a('s_waitcnt lgkmcnt(8)')
        else:
            vm.wait({('A', k)})
            a('s_waitcnt lgkmcnt(0)')
        slot = k % DEPTH
        for mt in range(4):
            for nt in range(4):
                d = ACC + (mt * 4 + nt) * 4
                c = '0' if k == 0 else vr(d, 4)
                a('v_mfma_f32_16x16x32_bf16 %s, %s, %s, %s' % (vr(d, 4), vr(AR + slot * 16 + mt * 4, 4), vr(BF + (k & 1) * 16 + nt * 4, 4), c))
        if k + DEPTH < NK:
            stage(k + DEPTH)
        if k in (0, 3, 7, 10):
            st()
    a('s_barrier')
    a('s_lshl_b32 s23, s3, 14')
    a('v_add_u32 v5, s23, v8')
    for mt in range(4):
        for nt in range(4):
            a('ds_write_b128 v5, %s offset:%d' % (vr(ACC + (mt * 4 + nt) * 4, 4), (mt * 4 + nt) * 1024))
    a('v_lshlrev_b32 v6, 12, v2')
    a('v_lshl_add_u32 v6, v3, 4, v6')
    a('s_lshl_b32 s23, s3, 10')
    a('v_add_u32 v6, s23, v6')
    a('s_waitcnt lgkmcnt(0)')
    a('s_barrier')
    st()
    R = 88
    for src in range(4):
        for gg in range(4):
            a('ds_read_b128 %s, v6 offset:%d' % (vr(R + (src * 4 + gg) * 4, 4), src * 16384 + gg * 256))
    a('s_waitcnt lgkmcnt(0)')
    vm.wait({('h',)})
    S = 24
    for q in range(16):
        x0, x1, x2, x3 = [R + src * 16 + q for src in range(4)]
        a('v_add_f32 v%d, v%d, v%d' % (x0, x0, x1))
        a('v_add_f32 v%d, v%d, v%d' % (x2, x2, x3))
        a('v_add_f32 v%d, v%d, v%d' % (S + q, x0, x2))
    a('v_lshlrev_b32 v11, 16, v11')
    T = 48
    O = 40
    for p in range(8):
        u0, u1 = S + 2 * p, S + 2 * p + 1
        a('v_cvt_pk_bf16_f32 v%d, v%d, v%d' % (T, u0, u1))
        a('v_lshlrev_b32 v%d, 16, v%d' % (u0, T))
        a('v_and_b32 v%d, 0xffff0000, v%d' % (u1, T))
        a('v_add_f32 v%d, v%d, v11' % (u0, u0))
        a('v_add_f32 v%d, v%d, v11' % (u1, u1))
        a('v_cvt_pk_bf16_f32 v%d, v%d, v%d' % (T, u0, u1))
        a('v_lshlrev_b32 v%d, 16, v%d' % (u0, T))
        a('v_and_b32 v%d, 0xffff0000, v%d' % (u1, T))
        a('v_lshlrev_b32 v%d, 16, v%d' % (T + 1, HR + p))
        a('v_and_b32 v%d, 0xffff0000, v%d' % (T + 2, HR + p))
        a('v_add_f32 v%d, v%d, v%d' % (u0, u0, T + 1))
        a('v_add_f32 v%d, v%d, v%d' % (u1, u1, T + 2))
        a('v_cvt_pk_bf16_f32 v%d, v%d, v%d' % (O + p, u0, u1))
    a('buffer_store_dwordx4 %s, v9, s[36:39], s22 offen' % vr(O, 4))
    a('buffer_store_dwordx4 %s, v9, s[36:39], s22 offen offset:16' % vr(O + 4, 4))
    st.flush()
    a.label('K5_END')
    a('s_endpgm')
    return dict(name=L, asm=a, grid=256, lds=max(4 * DEPTH * 4096, 65536), vgpr=120 + DEPTH * 16, sgpr=48)


def emit(kernels, path):
    out = []
    for k in kernels:
        out.append('; @launch kernel=%s grid=(%d,1,1) block=(256,1,1) lds=%d' % (k['name'], k['grid'], k['lds']))
    out.append('.amdgcn_target "amdgcn-amd-amdhsa--gfx950"')
    out.append('.text')
    done = set()
    for k in kernels:
        if k['name'] in done:
            continue
        done.add(k['name'])
        a = k['asm']
        n = a.fix_hazards()
        errs = a.check_waits(k['name'])
        for e in errs:
            print('WAITCHK', e)
        print('%s: %d instrs, %d auto wait states' % (k['name'], len(a.ins), n))
        out.append('.globl %s' % k['name'])
        out.append('.p2align 8')
        out.append('.type %s,@function' % k['name'])
        out.append(a.text())
    out.append('.section .rodata,"a"')
    done = set()
    for k in kernels:
        if k['name'] in done:
            continue
        done.add(k['name'])
        if STAMPS:
            k['vgpr'] = 256; k['sgpr'] = 102
        acc = (k['vgpr'] + 3) // 4 * 4
        out.append('.p2align 6')
        out.append('.amdhsa_kernel %s' % k['name'])
        out.append('  .amdhsa_next_free_vgpr %d' % (k.get('total_vgpr', k['vgpr'])))
        out.append('  .amdhsa_next_free_sgpr %d' % k['sgpr'])
        out.append('  .amdhsa_accum_offset %d' % acc)
        out.append('  .amdhsa_group_segment_fixed_size 0')
        out.append('  .amdhsa_kernarg_size 88')
        out.append('  .amdhsa_user_sgpr_count 2')
        out.append('  .amdhsa_user_sgpr_kernarg_segment_ptr 1')
        out.append('  .amdhsa_system_sgpr_workgroup_id_x 1')
        out.append('.end_amdhsa_kernel')
    open(path, 'w').write('\n'.join(out) + '\n')


def gen_dummy(i):
    a = Asm()
    L = 'dummy%d_kernel' % i
    a.label(L)
    a('s_endpgm')
    return dict(name=L, asm=a, grid=256, lds=0, vgpr=8, sgpr=16)


if __name__ == '__main__':
    import os
    which = sys.argv[1] if len(sys.argv) > 1 else 'all'
    STAMPS = which in ('stamp', 'rt')
    if which == 'rt':
        STAMP_OP = 's_memrealtime'
        RT_ONLY = True
    path = sys.argv[2] if len(sys.argv) > 2 else 'out.s'
    ks = [gen_k1(), gen_k2(), gen_k3(), gen_k4(), gen_k5()]
    nd = int(os.environ.get('DUMMY', '0'))
    for i in range(nd):
        ks.insert(2 + 2 * i, gen_dummy(0))
    emit(ks, path)
```

```python
import sys, struct
sys.path.insert(0, 'work')
from asmgen import Asm

NAME = 'sequential_preLN__spectral_gfnet__mixer_token_mlp__prompt'

WS_X1 = 0x000000; SZ_X1 = 256 * 8320
WS_WT = 0x300000; SZ_WT = 257 * 8192
WS_Y1 = 0x600000; SZ_Y1 = 257 * 8320
WS_H = 0x900000; SZ_H = 2048 * 1024
WS_L2 = 0xC00000; SZ_L2 = 2048 * 1024
WS_U = 0xF00000; SZ_U = 32 * 43 * 1024


def f2u(x):
    return struct.unpack('<I', struct.pack('<f', x))[0]


def fl(x):
    return '0x%08x' % f2u(x)


def vr(a, n=1):
    return 'v%d' % a if n == 1 else 'v[%d:%d]' % (a, a + n - 1)


def sr(a, n=1):
    return 's%d' % a if n == 1 else 's[%d:%d]' % (a, a + n - 1)


def srd(a, R, lo, size, off=0):
    if off:
        a('s_add_u32 s%d, s%d, 0x%x' % (R, lo, off))
        a('s_addc_u32 s%d, s%d, 0' % (R + 1, lo + 1))
        a('s_and_b32 s%d, s%d, 0xffff' % (R + 1, R + 1))
    else:
        a('s_mov_b32 s%d, s%d' % (R, lo))
        a('s_and_b32 s%d, s%d, 0xffff' % (R + 1, lo + 1))
    a('s_mov_b32 s%d, 0x%x' % (R + 2, size))
    a('s_mov_b32 s%d, 0x20000' % (R + 3))


STAMPS = False
RT_ONLY = False
STAMP_OP = 's_memtime'
WS_DBG = 0x2000000
STAMP_S = 64


class Stamper:
    def __init__(self, a, kid):
        self.a = a
        self.n = 0
        self.kid = kid

    def __call__(self):
        if not STAMPS:
            return
        if RT_ONLY and self.n >= 1 and not getattr(self, 'final', False):
            return
        a = self.a
        a(STAMP_OP + ' s[%d:%d]' % (STAMP_S + 2 * self.n, STAMP_S + 2 * self.n + 1))
        a('s_waitcnt lgkmcnt(0)')
        self.n += 1

    def flush(self, wave_s='s3', vtmp=250):
        if not STAMPS:
            return
        a = self.a
        if not RT_ONLY:
            a('s_waitcnt vmcnt(0)')
        self.final = True
        self()
        if RT_ONLY:
            a('s_getreg_b32 s%d, hwreg(20, 0, 4)' % (STAMP_S + 2 * self.n))
            a('s_add_u32 s%d, s%d, 0x100' % (STAMP_S + 2 * self.n, STAMP_S + 2 * self.n))
            self.n += 1
        a('s_load_dwordx2 s[96:97], s[0:1], 80')
        a('s_waitcnt lgkmcnt(0)')
        srd(a, 60, 96, 0x40000, WS_DBG + self.kid * 0x40000)
        a('s_lshl_b32 s98, s2, 2')
        a('s_add_u32 s98, s98, %s' % wave_s)
        a('s_lshl_b32 s98, s98, 6')
        a('v_mov_b32 v%d, 0x40000000' % (vtmp + 1))
        for i in range(self.n):
            vt = vtmp - (i if RT_ONLY else 0)
            a('v_mov_b32 v%d, s%d' % (vt, STAMP_S + 2 * i))
            a('s_add_u32 s99, s98, %d' % (4 * i))
            a('v_writelane_b32 v%d, 0, 0' % (vtmp + 1))
            a('s_nop 1')
            a('buffer_store_dword v%d, v%d, s[60:63], s99 offen' % (vt, vtmp + 1))
            if not RT_ONLY:
                a('s_waitcnt vmcnt(0)')


import os
PF = os.environ.get('PF', '')


def prefetch(a, which, sptr, sR, sT, vlane, vtmp, vdst, swave='s3', issue=None, nwaves=128):
    issue = issue or (lambda t: a(t))
    stride = 2752 if which == 'a' else 4096
    rows = 2048 if which == 'a' else 1376
    pstep = 672 if which == 'a' else 1024
    srd(a, sR, sptr, rows * stride)
    a('v_lshrrev_b32 v%d, 3, v%d' % (vtmp, vlane))
    a('v_mul_u32_u24 v%d, %d, v%d' % (vtmp, stride, vtmp))
    a('v_and_b32 v%d, 7, v%d' % (vdst, vlane))
    a('v_lshl_add_u32 v%d, v%d, 7, v%d' % (vtmp, vdst, vtmp))
    if which == 'a':
        a('v_cmp_eq_u32 vcc, 7, v%d' % vdst)
        a('v_mov_b32 v%d, 0x40000000' % vdst)
        a('v_cndmask_b32 v%d, v%d, v%d, vcc' % (vtmp, vtmp, vdst))
    a('s_lshr_b32 s%d, s2, 3' % sT)
    a('s_lshl_b32 s%d, s%d, 2' % (sT, sT))
    a('s_add_u32 s%d, s%d, %s' % (sT, sT, swave))
    a('s_mul_i32 s%d, s%d, %d' % (sT, sT, 8 * stride))
    a('s_bfe_u32 s%d, s2, 0x20001' % (sT + 1))
    a('s_mul_i32 s%d, s%d, %d' % (sT + 1, sT + 1, pstep))
    a('s_add_u32 s%d, s%d, s%d' % (sT, sT, sT + 1))
    a('s_add_u32 s%d, s%d, %d' % (sT + 1, sT, 8 * nwaves * stride))
    issue('buffer_load_dword v%d, v%d, s[%d:%d], s%d offen' % (vdst, vtmp, sR, sR + 3, sT))
    issue('buffer_load_dword v%d, v%d, s[%d:%d], s%d offen' % (vdst, vtmp, sR, sR + 3, sT + 1))
    return 2


CPF = os.environ.get('CPF', '0') == '1'


def code_prefetch(a, sR, sT, vlane, vtmp, vdst, swave='s3', nlines_log=6):
    a('s_getpc_b64 s[%d:%d]' % (sR, sR + 1))
    a.label('CPF_PC')
    a('s_add_u32 s%d, s%d, k2_kernel-CPF_PC' % (sR, sR))
    a('s_addc_u32 s%d, s%d, 0' % (sR + 1, sR + 1))
    a('s_and_b32 s%d, s%d, 0xffff' % (sR + 1, sR + 1))
    a('s_mov_b32 s%d, CODE_END-k2_kernel' % (sR + 2))
    a('s_mov_b32 s%d, 0x20000' % (sR + 3))
    a('s_lshr_b32 s%d, s2, 3' % sT)
    a('s_lshl_b32 s%d, s%d, 2' % (sT, sT))
    a('s_add_u32 s%d, s%d, %s' % (sT, sT, swave))
    a('s_lshl_b32 s%d, s%d, 12' % (sT, sT))
    a('v_lshlrev_b32 v%d, 6, v%d' % (vtmp, vlane))
    a('buffer_load_dword v%d, v%d, s[%d:%d], s%d offen' % (vdst, vtmp, sR, sR + 3, sT))
    return 1


def pf_for(kid):
    return [t[1] for t in PF.split(',') if t and t[0] == str(kid)]


def wave_sum(a, regs):
    steps = ['quad_perm:[1,0,3,2] row_mask:0xf', 'quad_perm:[2,3,0,1] row_mask:0xf', 'row_half_mirror row_mask:0xf',
             'row_mirror row_mask:0xf', 'row_bcast:15 row_mask:0xa', 'row_bcast:31 row_mask:0xc']
    for st in steps:
        for r in regs:
            a('v_add_f32_dpp v%d, v%d, v%d %s bank_mask:0xf' % (r, r, r, st))


def ln_rows(a, X, T, S, nrows, out_pk=None, keep_f32=False):
    n = nrows
    sm = [T + j for j in range(n)]
    mean = [T + n + j for j in range(n)]
    mb = [T + 2 * n + j for j in range(n)]
    sq = [T + 3 * n + j for j in range(n)]
    t1 = [T + 4 * n + j for j in range(n)]
    t2 = [T + 5 * n + j for j in range(n)]
    for j in range(n):
        a('v_add_f32 v%d, v%d, v%d' % (sm[j], X[j][0], X[j][1]))
        a('v_add_f32 v%d, v%d, v%d' % (t1[j], X[j][2], X[j][3]))
        a('v_add_f32 v%d, v%d, v%d' % (t2[j], X[j][4], X[j][5]))
        a('v_add_f32 v%d, v%d, v%d' % (sq[j], X[j][6], X[j][7]))
    for j in range(n):
        a('v_add_f32 v%d, v%d, v%d' % (sm[j], sm[j], t1[j]))
        a('v_add_f32 v%d, v%d, v%d' % (t2[j], t2[j], sq[j]))
    for j in range(n):
        a('v_add_f32 v%d, v%d, v%d' % (sm[j], sm[j], t2[j]))
    wave_sum(a, sm)
    for j in range(n):
        a('v_readlane_b32 s%d, v%d, 63' % (S + j, sm[j]))
    for j in range(n):
        a('v_mov_b32 v%d, s%d' % (mean[j], S + j))
    for j in range(n):
        a('v_mul_f32 v%d, %s, v%d' % (mean[j], fl(1.0 / 512), mean[j]))
    for j in range(n):
        a('v_cvt_pk_bf16_f32 v%d, v%d, v%d' % (mb[j], mean[j], mean[j]))
    for j in range(n):
        a('v_and_b32 v%d, 0xffff0000, v%d' % (mb[j], mb[j]))
    for k in range(8):
        for j in range(n):
            a('v_sub_f32 v%d, v%d, v%d' % (X[j][k], X[j][k], mb[j]))
    for j in range(n):
        a('v_mul_f32 v%d, v%d, v%d' % (sq[j], X[j][0], X[j][0]))
        a('v_mul_f32 v%d, v%d, v%d' % (t1[j], X[j][1], X[j][1]))
    for k in range(2, 8, 2):
        for j in range(n):
            a('v_fmac_f32 v%d, v%d, v%d' % (sq[j], X[j][k], X[j][k]))
            a('v_fmac_f32 v%d, v%d, v%d' % (t1[j], X[j][k + 1], X[j][k + 1]))
    for j in range(n):
        a('v_add_f32 v%d, v%d, v%d' % (sq[j], sq[j], t1[j]))
    wave_sum(a, sq)
    for j in range(n):
        for k in range(0, 8, 2):
            a('v_cvt_pk_bf16_f32 v%d, v%d, v%d' % (X[j][k + 1], X[j][k], X[j][k + 1]))
    for j in range(n):
        a('v_readlane_b32 s%d, v%d, 63' % (S + j, sq[j]))
    for j in range(n):
        for k in range(0, 8, 2):
            a('v_lshlrev_b32 v%d, 16, v%d' % (X[j][k], X[j][k + 1]))
            a('v_and_b32 v%d, 0xffff0000, v%d' % (X[j][k + 1], X[j][k + 1]))
    for j in range(n):
        a('v_sub_f32 v%d, v%d, v%d' % (t1[j], mean[j], mb[j]))
        a('v_mov_b32 v%d, s%d' % (sq[j], S + j))
    for j in range(n):
        a('v_mul_f32 v%d, v%d, v%d' % (t1[j], t1[j], t1[j]))
        a('v_mul_f32 v%d, %s, v%d' % (sq[j], fl(1.0 / 512), sq[j]))
    for j in range(n):
        a('v_sub_f32 v%d, v%d, v%d' % (sq[j], sq[j], t1[j]))
    for j in range(n):
        a('v_max_f32 v%d, 0, v%d' % (sq[j], sq[j]))
    for j in range(n):
        a('v_cvt_pk_bf16_f32 v%d, v%d, v%d' % (sq[j], sq[j], sq[j]))
    for j in range(n):
        a('v_and_b32 v%d, 0xffff0000, v%d' % (sq[j], sq[j]))
    for j in range(n):
        a('v_add_f32 v%d, %s, v%d' % (sq[j], fl(1e-5), sq[j]))
    for j in range(n):
        a('v_cvt_pk_bf16_f32 v%d, v%d, v%d' % (sq[j], sq[j], sq[j]))
    for j in range(n):
        a('v_and_b32 v%d, 0xffff0000, v%d' % (sq[j], sq[j]))
    for j in range(n):
        a('v_sqrt_f32 v%d, v%d' % (sq[j], sq[j]))
    for j in range(n):
        a('v_cvt_pk_bf16_f32 v%d, v%d, v%d' % (sq[j], sq[j], sq[j]))
    for j in range(n):
        a('v_and_b32 v%d, 0xffff0000, v%d' % (sq[j], sq[j]))
    for j in range(n):
        a('v_rcp_f32 v%d, v%d' % (sq[j], sq[j]))
    for k in range(8):
        for j in range(n):
            a('v_mul_f32 v%d, v%d, v%d' % (X[j][k], X[j][k], sq[j]))
    for j in range(n):
        for k in range(0, 8, 2):
            a('v_cvt_pk_bf16_f32 v%d, v%d, v%d' % (out_pk[j][k // 2], X[j][k], X[j][k + 1]))
    if keep_f32:
        for j in range(n):
            for k in range(0, 8, 2):
                a('v_lshlrev_b32 v%d, 16, v%d' % (X[j][k], out_pk[j][k // 2]))
                a('v_and_b32 v%d, 0xffff0000, v%d' % (X[j][k + 1], out_pk[j][k // 2]))


def cmul_tw(a, re, im, c, s, ore, oim, sign):
    a('v_mul_f32 v%d, v%d, v%d' % (ore, re, c))
    a('v_mul_f32 v%d, v%d, v%d' % (oim, im, c))
    if sign < 0:
        a('v_fmac_f32 v%d, v%d, v%d' % (ore, im, s))
        a('v_fma_f32 v%d, -v%d, v%d, v%d' % (oim, re, s, oim))
    else:
        a('v_fma_f32 v%d, -v%d, v%d, v%d' % (ore, im, s, ore))
        a('v_fmac_f32 v%d, v%d, v%d' % (oim, re, s))


def gen_k1():
    a = Asm()
    L = 'k1_kernel'
    a.label(L)
    a('s_cmp_ge_u32 s2, 256')
    a('s_cbranch_scc1 K1_TR')
    st = Stamper(a, 1)
    st()
    a('s_load_dwordx2 s[4:5], s[0:1], 0')
    a('s_load_dwordx2 s[6:7], s[0:1], 80')
    for t in pf_for(1):
        a('s_load_dwordx2 s[%d:%d], s[0:1], %d' % ((44, 45, 32) if t == 'a' else (46, 47, 48)))
    a('v_and_b32 v1, 63, v0')
    a('v_lshrrev_b32 v2, 6, v0')
    a('s_lshr_b32 s12, s2, 3')
    a('v_readfirstlane_b32 s3, v2')
    a('s_and_b32 s13, s2, 7')
    a('s_lshl_b32 s13, s13, 8')
    a('s_add_u32 s13, s13, s12')
    a('v_lshlrev_b32 v3, 4, v1')
    a('s_lshl_b32 s14, s3, 6')
    a('s_add_u32 s13, s13, s14')
    a('s_lshl_b32 s13, s13, 10')
    a('s_add_u32 s14, s13, 32768')
    a('s_waitcnt lgkmcnt(0)')
    srd(a, 8, 4, 2048 * 1024)
    a('buffer_load_dwordx4 v[4:7], v3, s[8:11], s13 offen')
    a('buffer_load_dwordx4 v[8:11], v3, s[8:11], s14 offen')
    npf = 0
    for t in pf_for(1):
        npf += prefetch(a, t, 44 if t == 'a' else 46, 48, 52, 1, 125, 124)
    if CPF:
        npf += code_prefetch(a, 48, 52, 1, 125, 124)
    st()
    srd(a, 16, 6, SZ_X1, WS_X1)
    a('s_mul_i32 s15, s2, 8320')
    G, N, FG, FN = 12, 13, 14, 15
    a('v_lshrrev_b32 v%d, 4, v1' % G)
    a('v_and_b32 v%d, 15, v1' % N)
    a('v_cvt_f32_u32 v%d, v%d' % (FG, G))
    a('v_cvt_f32_u32 v%d, v%d' % (FN, N))
    B1 = 16
    T = 96
    a('v_mul_f32 v%d, v%d, v%d' % (T, FN, FG))
    a('v_mul_f32 v%d, 0.125*1, v%d'.replace('0.125*1', fl(0.125)) % (T, T))
    for o in range(1, 4):
        a('v_fmamk_f32 v%d, v%d, %s, v%d' % (T + o, FN, fl(o / 32.0), T))
    for o in range(4):
        a('v_cos_f32 v%d, v%d' % (T + 4 + o, T + o))
        a('v_sin_f32 v%d, v%d' % (T + 8 + o, T + o))
    a('v_and_b32 v%d, 1, v1' % (T + 12))
    a('v_mul_u32_u24 v%d, 0x8000, v%d' % (T + 12, T + 12))
    a('v_lshl_or_b32 v%d, v%d, 16, v%d' % (T + 12, T + 12, T + 12))
    a('v_cvt_pk_bf16_f32 v%d, v%d, v%d' % (B1 + 0, T + 4, T + 5))
    a('v_cvt_pk_bf16_f32 v%d, v%d, v%d' % (B1 + 1, T + 6, T + 7))
    a('v_cvt_pk_bf16_f32 v%d, -v%d, -v%d' % (B1 + 4, T + 8, T + 9))
    a('v_cvt_pk_bf16_f32 v%d, -v%d, -v%d' % (B1 + 5, T + 10, T + 11))
    for cs in range(2):
        for rr in range(2):
            a('v_xor_b32 v%d, v%d, v%d' % (B1 + cs * 4 + 2 + rr, B1 + cs * 4 + rr, T + 12))
    for q in range(8):
        a('v_xor_b32 v%d, 0x80000000, v%d' % (B1 + 8 + q, B1 + q))
    TC, TS = 32, 40
    a('v_mul_f32 v%d, %s, v%d' % (T, fl(1.0 / 512), FN))
    a('v_add_f32 v%d, %s, v%d' % (T + 1, fl(16.0 / 512), T))
    a('v_mul_f32 v%d, 4.0, v%d' % (T + 2, FG))
    for r in range(1, 4):
        a('v_add_f32 v%d, %s, v%d' % (T + 2 + r, fl(float(r)), T + 2))
    for hf in range(2):
        for r in range(4):
            a('v_mul_f32 v%d, v%d, v%d' % (T + 6 + hf * 4 + r, T + hf, T + 2 + r))
    for q in range(8):
        a('v_cos_f32 v%d, v%d' % (TC + q, T + 6 + q))
        a('v_sin_f32 v%d, v%d' % (TS + q, T + 6 + q))
    A3 = 48
    a('v_lshrrev_b32 v%d, 1, v%d' % (T, N))
    a('v_cvt_f32_u32 v%d, v%d' % (T, T))
    a('v_mul_f32 v%d, %s, v%d' % (T, fl(1.0 / 16), T))
    a('v_and_b32 v%d, 1, v%d' % (T + 1, N))
    a('v_cvt_f32_u32 v%d, v%d' % (T + 1, T + 1))
    a('v_mul_f32 v%d, %s, v%d' % (T + 1, fl(0.25), T + 1))
    for rr in range(4):
        a('v_fma_f32 v%d, v%d, v%d, v%d' % (T + 6 + rr, T, T + 2 + rr, T + 1))
    for rr in range(4):
        a('v_cos_f32 v%d, v%d' % (T + 10 + rr, T + 6 + rr))
        a('v_sin_f32 v%d, v%d' % (T + 14 + rr, T + 6 + rr))
    for rr in range(4):
        a('v_cvt_pk_bf16_f32 v%d, v%d, v%d' % (A3 + rr, T + 10 + rr, T + 14 + rr))
    G8 = 52
    for rr in range(4):
        a('v_mov_b32 v%d, 0x%x' % (G8 + rr, 0x3F80 if rr % 2 == 0 else 0xBF80))
    a('s_lshl_b32 s20, s3, 3')
    a('v_lshlrev_b32 v56, 5, v%d' % N)
    a('v_lshl_add_u32 v56, v%d, 11, v56' % G)
    a('v_add_u32 v56, s20, v56')
    a('s_add_u32 s21, s20, 8192')
    a('v_mov_b32 v57, 0x40000000')
    a('v_writelane_b32 v57, s21, 0')
    a('s_lshl_b32 s22, s3, 11')
    a('v_add_u32 v58, s22, v3')
    a('v_lshlrev_b32 v59, 3, v1')
    a('v_add_u32 v59, s22, v59')
    st()
    a('s_waitcnt vmcnt(%d)' % npf)
    st()
    X = [[64 + k for k in range(8)], [72 + k for k in range(8)]]
    for j in range(2):
        for k in range(4):
            a('v_lshlrev_b32 v%d, 16, v%d' % (X[j][2 * k], 4 + 4 * j + k))
            a('v_and_b32 v%d, 0xffff0000, v%d' % (X[j][2 * k + 1], 4 + 4 * j + k))
    ln_rows(a, X, T, 24, 2, out_pk=[[4, 5, 6, 7], [8, 9, 10, 11]])
    st()
    a('ds_write_b128 v58, v[4:7]')
    a('ds_write_b128 v58, v[8:11] offset:1024')
    a('ds_read_b64_tr_b16 v[60:61], v59')
    a('ds_read_b64_tr_b16 v[62:63], v59 offset:512')
    a('ds_read_b64_tr_b16 v[64:65], v59 offset:1024')
    a('ds_read_b64_tr_b16 v[66:67], v59 offset:1536')
    D1 = 68
    A = [60, 64]
    for j in range(2):
        a('s_waitcnt lgkmcnt(%d)' % (2 - 2 * j))
        for hf in range(2):
            for cs in range(2):
                d = D1 + ((j * 2 + hf) * 2 + cs) * 4
                a('v_mfma_f32_16x16x32_bf16 %s, %s, %s, 0' % (vr(d, 4), vr(A[j], 4), vr(B1 + hf * 8 + cs * 4, 4)))
    P = 100
    for j in range(2):
        for hf in range(2):
            dre = D1 + ((j * 2 + hf) * 2 + 0) * 4
            dim = dre + 4
            for r in range(4):
                cmul_tw(a, dre + r, dim + r, TC + hf * 4 + r, TS + hf * 4 + r, 116 + 2 * r, 117 + 2 * r, -1)
            for r in range(4):
                a('v_cvt_pk_bf16_f32 v%d, v%d, v%d' % (P + (j * 2 + hf) * 4 + r, 116 + 2 * r, 117 + 2 * r))
    D3 = 68
    for j in range(2):
        for hf in range(2):
            a('v_mfma_f32_16x16x32_bf16 %s, %s, %s, 0' % (vr(D3 + (j * 2 + hf) * 4, 4), vr(A3, 4), vr(P + (j * 2 + hf) * 4, 4)))
    for j in range(2):
        a('v_mfma_f32_16x16x32_bf16 %s, %s, %s, 0' % (vr(D3 + 16 + j * 4, 4), vr(G8, 4), vr(P + (j * 2) * 4, 4)))
    st()
    O = 4
    for hf in range(2):
        for p in range(2):
            o = O + (hf * 2 + p) * 2
            for j in range(2):
                d = D3 + (j * 2 + hf) * 4 + 2 * p
                a('v_cvt_pk_bf16_f32 v%d, v%d, v%d' % (o + j, d, d + 1))
            a('buffer_store_dwordx2 %s, v56, s[16:19], s15 offen offset:%d' % (vr(o, 2), hf * 512 + p * 1024))
    for j in range(2):
        a('v_cvt_pk_bf16_f32 v%d, v%d, 0' % (60 + j, D3 + 16 + j * 4))
    a('buffer_store_dwordx2 v[60:61], v57, s[16:19], s15 offen')
    st()
    st.flush()
    a('s_endpgm')
    a.label('K1_TR')
    a('s_cmp_ge_u32 s2, 320')
    a('s_cbranch_scc1 K1_END')
    a('s_load_dwordx4 s[4:7], s[0:1], 8')
    a('s_load_dwordx2 s[12:13], s[0:1], 80')
    a('s_sub_u32 s3, s2, 256')
    a('s_and_b32 s14, s3, 7')
    a('s_lshr_b32 s15, s3, 3')
    a('s_lshl_b32 s20, s14, 3')
    a('s_lshl_b32 s21, s15, 8')
    a('s_add_u32 s20, s20, s21')
    a('s_mul_i32 s20, s20, 514')
    for r in range(1, 4):
        a('s_add_u32 s%d, s20, %d' % (20 + r, r * 64 * 514))
    a('v_lshlrev_b32 v1, 4, v0')
    a('v_and_b32 v2, 3, v0')
    a('v_mul_u32_u24 v2, %d, v2' % (64 * 514))
    a('v_add_u32 v2, 4096, v2')
    a('s_waitcnt lgkmcnt(0)')
    srd(a, 8, 4, 2048 * 514)
    srd(a, 16, 6, 2048 * 514)
    srd(a, 24, 12, SZ_WT, WS_WT)
    for r in range(4):
        a('buffer_load_dwordx4 %s, v1, s[8:11], s%d offen' % (vr(4 + 4 * r, 4), 20 + r))
    for r in range(4):
        a('buffer_load_dwordx4 %s, v1, s[16:19], s%d offen' % (vr(20 + 4 * r, 4), 20 + r))
    a('buffer_load_dwordx4 v[36:39], v2, s[8:11], s20 offen')
    a('buffer_load_dwordx4 v[40:43], v2, s[16:19], s20 offen')
    RUN = 4112
    a('v_and_b32 v3, 3, v0')
    a('v_mul_u32_u24 v3, %d, v3' % RUN)
    a('v_add_u32 v3, 4096, v3')
    a('v_and_b32 v45, 7, v0')
    a('v_bfe_u32 v46, v0, 3, 3')
    a('v_lshrrev_b32 v47, 6, v0')
    a('v_lshrrev_b32 v48, 1, v47')
    a('v_lshlrev_b32 v48, 7, v48')
    a('v_lshl_add_u32 v48, v46, 4, v48')
    a('v_and_b32 v47, 1, v47')
    a('v_lshl_add_u32 v48, v47, 3, v48')
    a('v_mul_u32_u24 v49, 514, v45')
    a('v_lshl_add_u32 v49, v48, 1, v49')
    a('v_lshlrev_b32 v50, 13, v48')
    a('v_lshl_add_u32 v50, v45, 4, v50')
    a('s_lshr_b32 s28, s14, 1')
    a('s_lshl_b32 s28, s28, 11')
    a('s_lshr_b32 s29, s15, 2')
    a('s_lshl_b32 s29, s29, 10')
    a('s_add_u32 s28, s28, s29')
    a('s_and_b32 s29, s15, 3')
    a('s_lshl_b32 s29, s29, 8')
    a('s_add_u32 s28, s28, s29')
    a('s_and_b32 s29, s14, 1')
    a('s_lshl_b32 s29, s29, 7')
    a('s_add_u32 s28, s28, s29')
    for r in range(8):
        a('s_waitcnt vmcnt(%d)' % (9 - r))
        a('ds_write_b128 v1, %s offset:%d' % (vr(4 + 4 * r, 4), r * RUN))
    a('s_waitcnt vmcnt(0)')
    a('v_cmp_gt_u32 vcc, 4, v0')
    a('s_and_saveexec_b64 s[30:31], vcc')
    a('s_cbranch_execz K1_TR2')
    a('ds_write_b128 v3, v[36:39]')
    a('ds_write_b128 v3, v[40:43] offset:%d' % (4 * RUN))
    a.label('K1_TR2')
    a('s_mov_b64 exec, s[30:31]')
    a('s_waitcnt lgkmcnt(0)')
    a('s_barrier')
    for it in range(9):
        koff = it if it < 8 else None
        if it == 8:
            a('v_add_u32 v49, 512, v49')
            a('v_add_u32 v50, 0x%x, v50' % (256 * 8192))
            koff = 0
        base = 4 + (it % 2) * 12
        for r in range(4):
            a('ds_read_u16 v%d, v49 offset:%d' % (base + 2 * r, r * RUN + koff * 2))
            a('ds_read_u16 v%d, v49 offset:%d' % (base + 2 * r + 1, (4 + r) * RUN + koff * 2))
        a('s_waitcnt lgkmcnt(0)')
        o = 28 + (it % 2) * 4
        for r in range(4):
            a('v_lshl_or_b32 v%d, v%d, 16, v%d' % (o + r, base + 2 * r + 1, base + 2 * r))
        if it < 8:
            a('s_add_u32 s29, s28, %d' % (it * 8192))
        else:
            a('s_mov_b32 s29, s28')
        a('buffer_store_dwordx4 %s, v50, s[24:27], s29 offen' % vr(o, 4))
    a.label('K1_END')
    a('s_endpgm')
    return dict(name=L, asm=a, grid=320, lds=8 * 4112 + 1024, vgpr=128, sgpr=56)

def gen_k2():
    a = Asm()
    L = 'k2_kernel'
    a.label(L)
    a('s_cmp_ge_u32 s2, 257')
    a('s_cbranch_scc1 K2_END')
    st = Stamper(a, 2)
    st()
    a('s_load_dwordx2 s[4:5], s[0:1], 80')
    for t in pf_for(2):
        a('s_load_dwordx2 s[%d:%d], s[0:1], %d' % ((44, 45, 32) if t == 'a' else (46, 47, 48)))
    a('v_and_b32 v1, 63, v0')
    a('v_lshrrev_b32 v2, 6, v0')
    a('s_and_b32 s12, s2, 7')
    a('s_lshl_b32 s12, s12, 5')
    a('v_readfirstlane_b32 s3, v2')
    a('s_lshr_b32 s13, s2, 3')
    a('s_add_u32 s12, s12, s13')
    a('s_cmp_eq_u32 s2, 256')
    a('s_cselect_b32 s12, 256, s12')
    G, N = 2, 3
    a('v_lshrrev_b32 v2, 4, v1')
    a('v_and_b32 v3, 15, v1')
    a('v_lshlrev_b32 v4, 3, v3')
    a('v_lshrrev_b32 v5, 1, v2')
    a('v_add_u32 v4, v4, v5')
    a('v_mul_u32_u24 v4, 8320, v4')
    a('v_and_b32 v5, 1, v2')
    a('v_lshl_add_u32 v4, v5, 4, v4')
    a('s_lshl_b32 s14, s3, 1')
    a('s_mul_i32 s14, s14, 8320')
    a('s_lshl_b32 s15, s12, 5')
    a('s_add_u32 s14, s14, s15')
    a('s_add_u32 s15, s14, %d' % (128 * 8320))
    a('s_lshl_b32 s16, s3, 11')
    a('v_lshlrev_b32 v5, 4, v1')
    a('s_lshl_b32 s17, s12, 13')
    a('s_add_u32 s17, s17, s16')
    a('s_waitcnt lgkmcnt(0)')
    srd(a, 8, 4, SZ_X1, WS_X1)
    a('s_mov_b32 m0, s16')
    srd(a, 20, 4, SZ_WT, WS_WT)
    a('buffer_load_dwordx4 v4, s[8:11], s14 offen lds')
    a('s_add_u32 m0, s16, 1024')
    srd(a, 24, 4, SZ_Y1, WS_Y1)
    a('buffer_load_dwordx4 v4, s[8:11], s15 offen lds')
    W = 112
    a('buffer_load_dwordx4 %s, v5, s[20:23], s17 offen' % vr(W, 4))
    a('buffer_load_dwordx4 %s, v5, s[20:23], s17 offen offset:1024' % vr(W + 4, 4))
    npf = 0
    for t in pf_for(2):
        npf += prefetch(a, t, 44 if t == 'a' else 46, 48, 52, 1, 193, 192)
    st()
    TAB = 16384
    T = 176
    a('v_cvt_f32_u32 v%d, v1' % T)
    a('v_mul_f32 v%d, %s, v%d' % (T, fl(1.0 / 64), T))
    a('v_cos_f32 v%d, v%d' % (T + 1, T))
    a('v_sin_f32 v%d, v%d' % (T + 2, T))
    a('s_lshl_b32 s18, s3, 9')
    a('s_add_u32 s18, s18, %d' % TAB)
    a('v_mov_b32 v6, s18')
    a('v_cvt_pk_bf16_f32 v%d, v%d, v%d' % (T + 1, T + 1, T + 2))
    a('v_lshl_add_u32 v%d, v1, 2, v6' % (T + 2))
    a('ds_write2st64_b32 v%d, v%d, v%d offset0:0 offset1:1' % (T + 2, T + 1, T + 1))
    F64, F32 = 16, 48
    a('s_mov_b32 s19, 0xff')
    a('s_lshl_b32 s28, s3, 4')
    a('v_add_u32 v7, s28, v3')
    a('v_lshlrev_b32 v8, 2, v7')
    a('v_lshlrev_b32 v9, 2, v2')
    a('v_mul_u32_u24 v10, v9, v8')
    for ks in range(2):
        for rr in range(4):
            t = T + 4 + ks * 4 + rr
            a('v_mad_u32_u24 v%d, v8, %d, v10' % (t, 16 * ks + rr))
            a('v_and_or_b32 v%d, v%d, s19, v6' % (t, t))
    a('v_lshlrev_b32 v11, 3, v3')
    a('v_mul_u32_u24 v12, v9, v11')
    for rr in range(4):
        t = T + 12 + rr
        a('v_mad_u32_u24 v%d, v11, %d, v12' % (t, rr))
        a('v_and_or_b32 v%d, v%d, s19, v6' % (t, t))
    for ks in range(2):
        for rr in range(4):
            t = T + 4 + ks * 4 + rr
            a('ds_read_b32 v%d, v%d' % (F64 + ks * 8 + rr, t))
            a('ds_read_b32 v%d, v%d offset:64' % (F64 + ks * 8 + 4 + rr, t))
    for rr in range(4):
        t = T + 12 + rr
        a('ds_read_b32 v%d, v%d' % (F32 + rr, t))
        a('ds_read_b32 v%d, v%d offset:64' % (F32 + 4 + rr, t))
    T1C, T1S, T2C, T2S = 80, 88, 96, 104
    a('v_cvt_f32_u32 v%d, v7' % T)
    a('v_mul_f32 v%d, %s, v%d' % (T, fl(1.0 / 2048), T))
    a('v_cvt_f32_u32 v%d, v9' % (T + 1))
    for mt in range(2):
        for r in range(4):
            q = mt * 4 + r
            a('v_add_f32 v%d, %s, v%d' % (T + 2, fl(float(16 * mt + r)), T + 1))
            a('v_mul_f32 v%d, v%d, v%d' % (T + 2, T + 2, T))
            a('v_cos_f32 v%d, v%d' % (T1C + q, T + 2))
            a('v_sin_f32 v%d, v%d' % (T1S + q, T + 2))
    a('v_add_u32 v13, s28, v9')
    a('v_cvt_f32_u32 v%d, v13' % (T + 1))
    a('v_cvt_f32_u32 v%d, v3' % T)
    a('v_mul_f32 v%d, %s, v%d' % (T, fl(1.0 / 2048), T))
    a('v_add_f32 v%d, %s, v%d' % (T + 3, fl(16.0 / 2048), T))
    for bt in range(2):
        for r in range(4):
            q = bt * 4 + r
            a('v_add_f32 v%d, %s, v%d' % (T + 2, fl(float(r)), T + 1))
            a('v_mul_f32 v%d, v%d, v%d' % (T + 2, T + 2, T + 3 * bt))
            a('v_cos_f32 v%d, v%d' % (T2C + q, T + 2))
            a('v_sin_f32 v%d, v%d' % (T2S + q, T + 2))
    a('v_and_b32 v14, 1, v1')
    a('v_mul_u32_u24 v14, 0x8000, v14')
    a('v_lshl_or_b32 v14, v14, 16, v14')
    a('s_waitcnt lgkmcnt(0)')
    for q in range(16):
        a('v_xor_b32 v%d, v%d, v14' % (F64 + 16 + q, F64 + q))
    for q in range(8):
        a('v_xor_b32 v%d, v%d, v14' % (F32 + 8 + q, F32 + q))
    for K in range(2):
        for q in range(8):
            src = F32 + K * 8 + q
            dst = F32 + 16 + K * 8 + q
            if (q & 1):
                a('v_xor_b32 v%d, 0x80008000, v%d' % (dst, src))
            else:
                a('v_mov_b32 v%d, v%d' % (dst, src))
    a('v_lshlrev_b32 v15, 8, v3')
    a('v_lshl_add_u32 v15, v2, 4, v15')
    a('s_mul_i32 s29, s12, 8320')
    a('s_lshl_b32 s30, s3, 6')
    a('s_add_u32 s29, s29, s30')
    a('s_add_u32 s30, s29, 4096')
    FR = 120
    D = 152
    P = 168
    st()
    a('s_waitcnt vmcnt(%d)' % (2 + npf))
    st()
    a('s_barrier')
    st()
    for ks in range(4):
        for mt in range(2):
            a('ds_read_b128 %s, v5 offset:%d' % (vr(FR + (ks * 2 + mt) * 4, 4), (ks * 2 + mt) * 1024))
    for ks in range(4):
        a('s_waitcnt lgkmcnt(%d)' % (6 - 2 * ks))
        for mt in range(2):
            for ro in range(2):
                d = D + (mt * 2 + ro) * 4
                c = '0' if ks == 0 else vr(d, 4)
                a('v_mfma_f32_16x16x32_bf16 %s, %s, %s, %s' % (vr(d, 4), vr(FR + (ks * 2 + mt) * 4, 4), vr(F64 + ks * 8 + ro * 4, 4), c))

    def twpack(TC, TS):
        for mt in range(2):
            dre = D + (mt * 2) * 4
            dim = dre + 4
            for r in range(4):
                cmul_tw(a, dre + r, dim + r, TC + mt * 4 + r, TS + mt * 4 + r, T + 2 * r, T + 2 * r + 1, -1)
            for r in range(4):
                a('v_cvt_pk_bf16_f32 v%d, v%d, v%d' % (P + mt * 4 + r, T + 2 * r, T + 2 * r + 1))
    twpack(T1C, T1S)
    for mt in range(2):
        for et in range(2):
            for ro in range(2):
                d = D + (et * 2 + ro) * 4
                c = '0' if mt == 0 else vr(d, 4)
                a('v_mfma_f32_16x16x32_bf16 %s, %s, %s, %s' % (vr(d, 4), vr(F32 + (et * 2 + mt) * 8 + ro * 4, 4), vr(P + mt * 4, 4), c))
    st()
    a('s_waitcnt vmcnt(%d)' % npf)
    st()
    for t in range(2):
        for r in range(4):
            wv = W + t * 4 + r
            xr, xi = D + (t * 2) * 4 + r, D + (t * 2 + 1) * 4 + r
            a('v_lshlrev_b32 v%d, 16, v%d' % (T + 8, wv))
            a('v_and_b32 v%d, 0xffff0000, v%d' % (T + 9, wv))
            cmul_tw(a, xr, xi, T + 8, T + 9, T + 10, T + 11, +1)
            a('v_cvt_pk_bf16_f32 v%d, v%d, -v%d' % (P + t * 4 + r, T + 10, T + 11))
    for t in range(2):
        for bt in range(2):
            for ro in range(2):
                d = D + (bt * 2 + ro) * 4
                c = '0' if t == 0 else vr(d, 4)
                a('v_mfma_f32_16x16x32_bf16 %s, %s, %s, %s' % (vr(d, 4), vr(P + t * 4, 4), vr(F32 + (bt * 2 + t) * 8 + ro * 4, 4), c))
    twpack(T2C, T2S)
    EX = 8192
    a('s_add_u32 s31, s16, %d' % EX)
    a('v_add_u32 v4, s31, v5')
    a('ds_write_b128 v4, %s' % vr(P, 4))
    a('ds_write_b128 v4, %s offset:1024' % vr(P + 4, 4))
    a('s_waitcnt lgkmcnt(0)')
    st()
    a('s_barrier')
    st()
    for ks in range(4):
        for nt in range(2):
            a('ds_read_b128 %s, v5 offset:%d' % (vr(FR + (ks * 2 + nt) * 4, 4), EX + (ks * 2 + nt) * 1024))
    for ks in range(4):
        a('s_waitcnt lgkmcnt(%d)' % (6 - 2 * ks))
        for nt in range(2):
            for ro in range(2):
                d = D + (nt * 2 + ro) * 4
                c = '0' if ks == 0 else vr(d, 4)
                a('v_mfma_f32_16x16x32_bf16 %s, %s, %s, %s' % (vr(d, 4), vr(F64 + ks * 8 + ro * 4, 4), vr(FR + (ks * 2 + nt) * 4, 4), c))
    for nt in range(2):
        dre = D + nt * 8
        for r in range(4):
            a('v_cvt_pk_bf16_f32 v%d, v%d, -v%d' % (P + nt * 4 + r, dre + r, dre + 4 + r))
        a('buffer_store_dwordx4 %s, v15, s[24:27], s%d offen' % (vr(P + nt * 4, 4), 29 + nt))
    st()
    st.flush()
    a.label('K2_END')
    a('s_endpgm')
    return dict(name=L, asm=a, grid=257, lds=16384 + 2048, vgpr=196, sgpr=56)

def gen_k3():
    a = Asm()
    L = 'k3_kernel'
    a.label(L)
    a('s_cmp_ge_u32 s2, 256')
    a('s_cbranch_scc1 K3_END')
    st = Stamper(a, 3)
    st()
    a('s_load_dwordx2 s[4:5], s[0:1], 80')
    a('s_load_dwordx2 s[6:7], s[0:1], 0')
    for t in pf_for(3):
        a('s_load_dwordx2 s[%d:%d], s[0:1], %d' % ((44, 45, 32) if t == 'a' else (46, 47, 48)))
    a('v_and_b32 v1, 63, v0')
    a('v_lshrrev_b32 v2, 6, v0')
    a('s_and_b32 s12, s2, 7')
    a('s_lshr_b32 s13, s2, 3')
    a('v_readfirstlane_b32 s3, v2')
    a('s_lshl_b32 s12, s12, 2')
    a('s_lshr_b32 s14, s13, 3')
    a('s_add_u32 s12, s12, s14')
    a('s_and_b32 s13, s13, 7')
    a('s_lshl_b32 s14, s12, 8')
    a('s_lshl_b32 s15, s13, 5')
    a('s_add_u32 s14, s14, s15')
    a('v_mul_u32_u24 v4, 8320, v0')
    a('s_lshl_b32 s15, s13, 8')
    a('s_lshl_b32 s16, s3, 6')
    a('s_add_u32 s15, s15, s16')
    a('s_add_u32 s15, s15, s12')
    a('s_lshl_b32 s15, s15, 10')
    a('s_add_u32 s16, s15, 32768')
    a('v_lshrrev_b32 v2, 4, v1')
    a('v_and_b32 v3, 15, v1')
    a('v_lshlrev_b32 v5, 5, v3')
    a('v_lshl_add_u32 v5, v2, 3, v5')
    a('s_lshl_b32 s17, s3, 3')
    a('s_add_u32 s17, s17, s14')
    a('s_waitcnt lgkmcnt(0)')
    srd(a, 8, 4, SZ_Y1, WS_Y1)
    a('buffer_load_dwordx4 v[8:11], v4, s[8:11], s14 offen')
    a('buffer_load_dwordx4 v[12:15], v4, s[8:11], s14 offen offset:16')
    srd(a, 20, 6, 2048 * 1024)
    XR = 16
    for j in range(2):
        for t in range(2):
            a('buffer_load_dwordx2 %s, v5, s[20:23], s%d offen offset:%d' % (vr(XR + (j * 2 + t) * 2, 2), 15 + j, t * 512))
    a('s_add_u32 s24, s4, 0x%x' % WS_Y1)
    a('s_addc_u32 s25, s5, 0')
    a('s_add_u32 s24, s24, s17')
    a('s_addc_u32 s25, s25, 0')
    a('s_load_dwordx2 s[26:27], s[24:25], 0')
    a('s_add_u32 s42, s24, 0x%x' % (256 * 8320))
    a('s_addc_u32 s43, s25, 0')
    a('s_load_dwordx2 s[28:29], s[42:43], 0')
    npf = 0
    for t in pf_for(3):
        npf += prefetch(a, t, 44 if t == 'a' else 46, 48, 52, 1, 129, 128)
    srd(a, 32, 4, SZ_H, WS_H)
    srd(a, 36, 4, SZ_L2, WS_L2)
    st()
    T = 96
    FG, FN = 6, 7
    a('v_cvt_f32_u32 v%d, v2' % FG)
    a('v_cvt_f32_u32 v%d, v3' % FN)
    B1 = 24
    a('v_mul_f32 v%d, %s, v%d' % (T, fl(-1.0 / 16), FN))
    a('v_add_f32 v%d, v%d, v%d' % (T + 1, FG, FG))
    a('v_add_f32 v%d, 1.0, v%d' % (T + 2, T + 1))
    a('v_mul_f32 v%d, v%d, v%d' % (T + 3, T, T + 1))
    a('v_mul_f32 v%d, v%d, v%d' % (T + 4, T, T + 2))
    a('v_add_f32 v%d, %s, v%d' % (T + 5, fl(0.25), T + 3))
    a('v_add_f32 v%d, %s, v%d' % (T + 6, fl(0.25), T + 4))
    for q in range(4):
        a('v_cos_f32 v%d, v%d' % (T + 8 + q, T + 3 + q))
        a('v_sin_f32 v%d, v%d' % (T + 12 + q, T + 3 + q))
    for q in range(4):
        a('v_cvt_pk_bf16_f32 v%d, v%d, v%d' % (B1 + q, T + 8 + q, T + 12 + q))
    TC, TS = 28, 36
    a('v_mul_f32 v%d, %s, v%d' % (T, fl(1.0 / 512), FN))
    a('v_mul_f32 v%d, 4.0, v%d' % (T + 1, FG))
    for hf in range(2):
        for r in range(4):
            q = hf * 4 + r
            a('v_add_f32 v%d, %s, v%d' % (T + 2, fl(float(16 * hf + r)), T + 1))
            a('v_mul_f32 v%d, v%d, v%d' % (T + 2, T + 2, T))
            a('v_cos_f32 v%d, v%d' % (TC + q, T + 2))
            a('v_sin_f32 v%d, v%d' % (TS + q, T + 2))
    B3 = 44
    a('v_mul_f32 v%d, %s, v%d' % (T, fl(1.0 / 32), FN))
    for rr in range(4):
        a('v_add_f32 v%d, %s, v%d' % (T + 2, fl(float(rr)), T + 1))
        a('v_mul_f32 v%d, v%d, v%d' % (T + 2, T + 2, T))
        a('v_cos_f32 v%d, v%d' % (T + 3, T + 2))
        a('v_sin_f32 v%d, v%d' % (T + 4, T + 2))
        a('v_cvt_pk_bf16_f32 v%d, v%d, -v%d' % (B3 + rr, T + 3, T + 4))
    a('v_and_b32 v%d, 1, v1' % (T + 5))
    a('v_mul_u32_u24 v%d, 0x8000, v%d' % (T + 5, T + 5))
    a('v_lshl_or_b32 v%d, v%d, 16, v%d' % (T + 5, T + 5, T + 5))
    for rr in range(4):
        a('v_xor_b32 v%d, v%d, v%d' % (B3 + 4 + rr, B3 + rr, T + 5))
    for hf in range(2):
        for rr in range(4):
            src, dst = B3 + hf * 4 + rr, B3 + 8 + hf * 4 + rr
            if rr & 1:
                a('v_xor_b32 v%d, 0x80008000, v%d' % (dst, src))
            else:
                a('v_mov_b32 v%d, v%d' % (dst, src))
    a('v_lshrrev_b32 v60, 6, v0')
    a('v_mul_u32_u24 v60, 80, v60')
    a('v_add_u32 v60, v60, v1')
    a('v_lshlrev_b32 v60, 2, v60')
    a('v_mul_u32_u24 v61, 80, v2')
    a('v_add_u32 v61, v61, v3')
    a('v_lshlrev_b32 v61, 2, v61')
    a('s_mul_i32 s18, s3, 2560')
    a('v_add_u32 v61, s18, v61')
    R2 = 10240
    a('s_mul_i32 s19, s3, 2176')
    a('s_add_u32 s19, s19, %d' % R2)
    a('v_add_u32 v62, s19, v5')
    a('v_lshrrev_b32 v63, 2, v3')
    a('v_mul_u32_u24 v63, 1088, v63')
    a('v_lshl_add_u32 v63, v2, 5, v63')
    a('v_and_b32 v%d, 3, v1' % T)
    a('v_lshl_add_u32 v63, v%d, 3, v63' % T)
    a('s_lshl_b32 s30, s3, 8')
    a('s_add_u32 s30, s30, %d' % R2)
    a('v_add_u32 v63, s30, v63')
    st()
    a('s_waitcnt vmcnt(%d)' % (4 + npf))
    st()
    for q in range(4):
        a('ds_write2st64_b32 v60, v%d, v%d offset0:%d offset1:%d' % (8 + 2 * q, 9 + 2 * q, 10 * q, 10 * q + 5))
    a('s_waitcnt lgkmcnt(0)')
    a('s_barrier')
    st()
    AF = 64
    for j in range(2):
        for hf in range(2):
            a('ds_read2_b32 %s, v61 offset0:%d offset1:%d' % (vr(AF + (j * 2 + hf) * 2, 2), 16 * hf, 16 * hf + 32) if j == 0 else
              'ds_read2_b32 %s, v%d offset0:%d offset1:%d' % (vr(AF + (j * 2 + hf) * 2, 2), T + 1, 16 * hf, 16 * hf + 32))
        if j == 0:
            a('v_add_u32 v%d, 1280, v61' % (T + 1))
    for j in range(2):
        a('s_lshl_b32 s%d, s%d, 16' % (26 + j, 26 + j))
        a('s_lshl_b32 s%d, s%d, 16' % (28 + j, 28 + j))
    CE, CO = 8, 10
    for j in range(2):
        a('v_mov_b32 v%d, s%d' % (T + 2 + j, 28 + j))
    for j in range(2):
        a('v_subrev_f32 v%d, s%d, v%d' % (CE + j, 26 + j, T + 2 + j))
        a('v_sub_f32 v%d, -v%d, s%d' .replace('v_sub_f32', 'v_sub_f32_e64') % (CO + j, T + 2 + j, 26 + j))
    for j in range(2):
        a('v_mul_f32 v%d, %s, v%d' % (CE + j, fl(2.0 ** -20), CE + j))
        a('v_mul_f32 v%d, %s, v%d' % (CO + j, fl(2.0 ** -20), CO + j))
    D1 = 72
    for j in range(2):
        a('s_waitcnt lgkmcnt(%d)' % (2 - 2 * j))
        for hf in range(2):
            for ro in range(2):
                d = D1 + ((j * 2 + hf) * 2 + ro) * 4
                a('v_mfma_f32_16x16x16_bf16 %s, %s, %s, 0' % (vr(d, 4), vr(AF + (j * 2 + hf) * 2, 2), vr(B1 + ro * 2, 2)))
    P = 104
    T2 = 120
    for j in range(2):
        for hf in range(2):
            dre = D1 + ((j * 2 + hf) * 2) * 4
            dim = dre + 4
            for r in range(4):
                cmul_tw(a, dre + r, dim + r, TC + hf * 4 + r, TS + hf * 4 + r, T2 + 2 * r, T2 + 2 * r + 1, +1)
            for r in range(4):
                a('v_cvt_pk_bf16_f32 v%d, v%d, v%d' % (P + (j * 2 + hf) * 4 + r, T2 + 2 * r, T2 + 2 * r + 1))
    D3 = 72
    for hf in range(2):
        for j in range(2):
            for t in range(2):
                d = D3 + (j * 2 + t) * 4
                c = '0' if hf == 0 else vr(d, 4)
                a('v_mfma_f32_16x16x32_bf16 %s, %s, %s, %s' % (vr(d, 4), vr(P + (j * 2 + hf) * 4, 4), vr(B3 + t * 8 + hf * 4, 4), c))
    X = [[D3 + j * 8 + k for k in range(8)] for j in range(2)]
    a('v_mov_b32 v12, %s' % fl(2.0 ** -19))
    for j in range(2):
        for k in range(8):
            a('v_fma_f32 v%d, v%d, v12, v%d' % (X[j][k], X[j][k], (CE if k % 2 == 0 else CO) + j))
    st()
    a('s_waitcnt vmcnt(%d)' % npf)
    st()
    HP = [[88 + j * 4 + q for q in range(4)] for j in range(2)]
    for j in range(2):
        for q in range(4):
            k = 2 * q
            a('v_cvt_pk_bf16_f32 v%d, v%d, v%d' % (T2, X[j][k], X[j][k + 1]))
            xv = XR + j * 4 + q
            a('v_lshlrev_b32 v%d, 16, v%d' % (T2 + 1, T2))
            a('v_and_b32 v%d, 0xffff0000, v%d' % (T2 + 2, T2))
            a('v_lshlrev_b32 v%d, 16, v%d' % (T2 + 3, xv))
            a('v_and_b32 v%d, 0xffff0000, v%d' % (T2 + 4, xv))
            a('v_add_f32 v%d, v%d, v%d' % (T2 + 1, T2 + 1, T2 + 3))
            a('v_add_f32 v%d, v%d, v%d' % (T2 + 2, T2 + 2, T2 + 4))
            a('v_cvt_pk_bf16_f32 v%d, v%d, v%d' % (HP[j][q], T2 + 1, T2 + 2))
            a('v_lshlrev_b32 v%d, 16, v%d' % (X[j][k], HP[j][q]))
            a('v_and_b32 v%d, 0xffff0000, v%d' % (X[j][k + 1], HP[j][q]))
    for j in range(2):
        for t in range(2):
            a('buffer_store_dwordx2 %s, v5, s[32:35], s%d offen offset:%d' % (vr(HP[j][2 * t], 2), 15 + j, t * 512))
    PK = [[104 + j * 4 + q for q in range(4)] for j in range(2)]
    ln_rows(a, X, 112, 40, 2, out_pk=PK, keep_f32=True)
    ln_rows(a, X, 112, 40, 2, out_pk=PK)
    st()
    for j in range(2):
        for t in range(2):
            a('ds_write_b64 v62, %s offset:%d' % (vr(PK[j][2 * t], 2), j * 1088 + t * 512))
    a('s_waitcnt lgkmcnt(0)')
    a('s_barrier')
    O = 72
    for half in range(2):
        for q in range(2):
            a('ds_read_b64_tr_b16 %s, v63 offset:%d' % (vr(O + half * 4 + q * 2, 2), q * 4 * 1088 + half * 128))
    a('s_lshl_b32 s30, s12, 3')
    a('s_add_u32 s30, s30, s13')
    a('s_lshl_b32 s30, s30, 13')
    a('s_lshl_b32 s31, s3, 11')
    a('s_add_u32 s30, s30, s31')
    a('v_lshlrev_b32 v4, 4, v1')
    for half in range(2):
        a('s_waitcnt lgkmcnt(%d)' % (2 - 2 * half))
        a('buffer_store_dwordx4 %s, v4, s[36:39], s30 offen offset:%d' % (vr(O + half * 4, 4), half * 1024))
    st()
    st.flush()
    a.label('K3_END')
    a('s_endpgm')
    return dict(name=L, asm=a, grid=256, lds=10240 + 8 * 1088, vgpr=132, sgpr=56)

class VM:
    def __init__(self, a):
        self.a = a
        self.q = []
        self.last = None

    def issue(self, text, tag):
        self.a(text)
        self.q.append(tag)
        assert len(self.q) <= 63 or True

    def wait(self, tags):
        idx = max([i for i, t in enumerate(self.q) if t in tags], default=-1)
        if idx < 0:
            return
        n = len(self.q) - 1 - idx
        assert n <= 63, n
        self.a('s_waitcnt vmcnt(%d)' % n)
        self.q = self.q[idx + 1:]


def gen_k4(DEPTH=8):
    a = Asm()
    L = 'k4_kernel'
    a.label(L)
    a('s_cmp_ge_u32 s2, 232')
    a('s_cbranch_scc1 K4_END')
    st = Stamper(a, 4)
    st()
    a('s_load_dwordx4 s[4:7], s[0:1], 32')
    a('s_load_dwordx2 s[12:13], s[0:1], 80')
    if pf_for(4):
        a('s_load_dwordx2 s[46:47], s[0:1], 48')
    a('v_and_b32 v1, 63, v0')
    a('v_lshrrev_b32 v2, 6, v0')
    a('s_and_b32 s14, s2, 7')
    a('s_lshr_b32 s15, s2, 3')
    a('v_readfirstlane_b32 s3, v2')
    a('s_lshr_b32 s16, s14, 1')
    a('s_mul_i32 s16, s16, 29')
    a('s_add_u32 s16, s16, s15')
    a('s_and_b32 s14, s14, 1')
    a('s_lshl_b32 s14, s14, 2')
    a('s_and_b32 s15, s16, 3')
    a('s_add_u32 s14, s14, s15')
    a('s_lshr_b32 s15, s16, 2')
    a('v_lshrrev_b32 v2, 4, v1')
    a('v_and_b32 v3, 15, v1')
    for m in range(3):
        a('v_add_u32 v10, %d, v1' % (64 * m))
        a('v_mul_u32_u24 v11, 171, v10')
        a('v_lshrrev_b32 v11, 10, v11')
        a('v_mul_u32_u24 v12, 6, v11')
        a('v_sub_u32 v12, v10, v12')
        a('v_bfe_u32 v13, v11, 2, 2')
        a('v_lshlrev_b32 v13, 8, v13')
        a('v_lshrrev_b32 v14, 4, v11')
        a('v_lshl_add_u32 v13, v14, 7, v13')
        a('v_and_b32 v14, 3, v11')
        a('v_lshl_add_u32 v13, v14, 5, v13')
        a('v_mul_u32_u24 v13, 2752, v13')
        a('v_lshl_add_u32 v%d, v12, 4, v13' % (4 + m))
        if m:
            a('v_subrev_u32 v%d, %d, v%d' % (4 + m, 1024 * m, 4 + m))
    a('v_lshlrev_b32 v7, 13, v2')
    a('v_lshl_add_u32 v7, v3, 4, v7')
    a('v_lshrrev_b32 v10, 2, v3')
    a('v_lshl_add_u32 v10, v2, 2, v10')
    a('v_mul_u32_u24 v10, 96, v10')
    a('v_and_b32 v11, 3, v1')
    a('v_lshl_add_u32 v8, v11, 3, v10')
    a('s_mul_i32 s17, s3, %d' % (DEPTH * 3072))
    a('v_add_u32 v8, s17, v8')
    a('s_mul_i32 s18, s3, %d' % (8 * 2752))
    a('s_mul_i32 s19, s15, 96')
    a('s_add_u32 s18, s18, s19')
    a('s_lshl_b32 s19, s3, 19')
    a('s_lshl_b32 s20, s14, 10')
    a('s_add_u32 s19, s19, s20')
    a('s_mul_i32 s21, s15, 96')
    a('v_lshlrev_b32 v9, 3, v2')
    a('s_waitcnt lgkmcnt(0)')
    srd(a, 8, 4, 2048 * 2752)
    srd(a, 24, 12, SZ_L2, WS_L2)
    srd(a, 28, 6, 2752)
    srd(a, 32, 12, SZ_U, WS_U)
    st()
    vm = VM(a)
    BI = 10
    ACC = 16
    AF = 64
    BR = 88

    ROT = os.environ.get('ROT', '1') == '1'
    if ROT:
        a('s_and_b32 s42, s15, 7')

    def stage(k):
        slot = k % DEPTH
        a('s_add_u32 m0, s17, %d' % (slot * 3072))
        if ROT:
            a('s_add_u32 s43, s42, %d' % (k >> 1))
            a('s_and_b32 s43, s43, 7')
            a('s_mul_i32 s22, s43, 2752')
            a('s_lshl_b32 s23, s43, 16')
            a('s_add_u32 s22, s22, s18')
            a('s_add_u32 s23, s23, s19')
            if k & 1:
                a('s_add_u32 s22, s22, %d' % (1024 * 2752))
                a('s_add_u32 s23, s23, 32768')
        else:
            a('s_add_u32 s22, s18, %d' % (((k & 1) * 1024 + (k >> 1)) * 2752))
            a('s_add_u32 s23, s19, %d' % (k * 32768))
        for m in range(3):
            vm.issue('buffer_load_dwordx4 v%d, s[8:11], s22 offen offset:%d lds' % (4 + m, 1024 * m), ('A', k))
        for nt in range(4):
            vm.issue('buffer_load_dwordx4 %s, v7, s[24:27], s23 offen offset:%d' % (vr(BR + slot * 16 + nt * 4, 4), nt * 256), ('B', k))

    def aread(k):
        slot = k % DEPTH
        for mt in range(3):
            for q in range(2):
                a('ds_read_b64_tr_b16 %s, v8 offset:%d' % (vr(AF + (k & 1) * 12 + mt * 4 + q * 2, 2), slot * 3072 + q * 16 * 96 + mt * 32))

    for k in range(DEPTH):
        stage(k)
    for mt in range(3):
        vm.issue('buffer_load_dwordx2 %s, v9, s[28:31], s21 offen offset:%d' % (vr(BI + 2 * mt, 2), 32 * mt), ('bias',))
    NK = 16
    st()
    vm.wait({('A', 0)})
    st()
    aread(0)
    for k in range(NK):
        if k + 1 < NK:
            vm.wait({('A', k + 1), ('B', k)})
            aread(k + 1)
            a('s_waitcnt lgkmcnt(6)')
        else:
            vm.wait({('B', k)})
            a('s_waitcnt lgkmcnt(0)')
        slot = k % DEPTH
        for mt in range(3):
            for nt in range(4):
                d = ACC + (mt * 4 + nt) * 4
                c = '0' if k == 0 else vr(d, 4)
                a('v_mfma_f32_16x16x32_bf16 %s, %s, %s, %s' % (vr(d, 4), vr(AF + (k & 1) * 12 + mt * 4, 4), vr(BR + slot * 16 + nt * 4, 4), c))
        if k + DEPTH < NK:
            stage(k + DEPTH)
        if k in (0, 3, 7, 11, 15):
            st()
    if pf_for(4):
        prefetch(a, 'b', 46, 48, 52, 1, 9, 8, issue=lambda t: vm.issue(t, ('pf',)), nwaves=116)
    a('s_barrier')
    a('v_lshlrev_b32 v4, 4, v1')
    a('s_mul_i32 s22, s3, 3072')
    a('v_add_u32 v5, s22, v4')
    for nt in range(4):
        for mt in range(3):
            a('ds_write_b128 v5, %s offset:%d' % (vr(ACC + (mt * 4 + nt) * 4, 4), nt * 12288 + mt * 1024))
    a('s_mul_i32 s22, s3, 12288')
    a('v_add_u32 v6, s22, v4')
    a('s_waitcnt lgkmcnt(0)')
    a('s_barrier')
    st()
    R = 88
    for src in range(4):
        for mt in range(3):
            a('ds_read_b128 %s, v6 offset:%d' % (vr(R + (src * 3 + mt) * 4, 4), src * 3072 + mt * 1024))
    a('s_lshl_b32 s22, s14, 2')
    a('s_add_u32 s22, s22, s3')
    a('s_mul_i32 s22, s22, %d' % (43 * 1024))
    a('s_mul_i32 s23, s15, 3')
    for mt in range(3):
        a('s_add_u32 s36, s23, %d' % mt)
        a('s_lshr_b32 s37, s36, 1')
        a('s_lshl_b32 s37, s37, 10')
        a('s_and_b32 s36, s36, 1')
        a('s_lshl_b32 s36, s36, 3')
        a('s_add_u32 s37, s37, s36')
        a('s_add_u32 s%d, s37, s22' % (38 + mt))
    a('s_waitcnt lgkmcnt(0)')
    vm.wait({('bias',)})
    S = 16
    for mt in range(3):
        for r in range(4):
            x0, x1, x2, x3 = [R + (src * 3 + mt) * 4 + r for src in range(4)]
            a('v_add_f32 v%d, v%d, v%d' % (x0, x0, x1))
            a('v_add_f32 v%d, v%d, v%d' % (x2, x2, x3))
            a('v_add_f32 v%d, v%d, v%d' % (S + mt * 4 + r, x0, x2))
    T = 40
    C1 = -2.0 * 1.4426950408889634 * 0.7978845608028654
    C2 = C1 * 0.044715
    a('v_mov_b32 v60, %s' % fl(C1))
    for mt in range(3):
        u = [S + mt * 4 + r for r in range(4)]
        a('v_cvt_pk_bf16_f32 v%d, v%d, v%d' % (T, u[0], u[1]))
        a('v_cvt_pk_bf16_f32 v%d, v%d, v%d' % (T + 1, u[2], u[3]))
        for h in range(2):
            a('v_lshlrev_b32 v%d, 16, v%d' % (u[2 * h], T + h))
            a('v_and_b32 v%d, 0xffff0000, v%d' % (u[2 * h + 1], T + h))
            a('v_lshlrev_b32 v%d, 16, v%d' % (T + 2, BI + 2 * mt + h))
            a('v_and_b32 v%d, 0xffff0000, v%d' % (T + 3, BI + 2 * mt + h))
            a('v_add_f32 v%d, v%d, v%d' % (u[2 * h], u[2 * h], T + 2))
            a('v_add_f32 v%d, v%d, v%d' % (u[2 * h + 1], u[2 * h + 1], T + 3))
        a('v_cvt_pk_bf16_f32 v%d, v%d, v%d' % (T, u[0], u[1]))
        a('v_cvt_pk_bf16_f32 v%d, v%d, v%d' % (T + 1, u[2], u[3]))
        for h in range(2):
            a('v_lshlrev_b32 v%d, 16, v%d' % (u[2 * h], T + h))
            a('v_and_b32 v%d, 0xffff0000, v%d' % (u[2 * h + 1], T + h))
        for r in range(4):
            a('v_mul_f32 v%d, v%d, v%d' % (T + 4 + r, u[r], u[r]))
        for r in range(4):
            a('v_fmamk_f32 v%d, v%d, %s, v60' % (T + 4 + r, T + 4 + r, fl(C2)))
        for r in range(4):
            a('v_mul_f32 v%d, v%d, v%d' % (T + 4 + r, T + 4 + r, u[r]))
        for r in range(4):
            a('v_exp_f32 v%d, v%d' % (T + 4 + r, T + 4 + r))
        for r in range(4):
            a('v_add_f32 v%d, 1.0, v%d' % (T + 4 + r, T + 4 + r))
        for r in range(4):
            a('v_rcp_f32 v%d, v%d' % (T + 4 + r, T + 4 + r))
        for r in range(4):
            a('v_mul_f32 v%d, v%d, v%d' % (u[r], u[r], T + 4 + r))
        o = 48 + 2 * mt
        a('v_cvt_pk_bf16_f32 v%d, v%d, v%d' % (o, u[0], u[1]))
        a('v_cvt_pk_bf16_f32 v%d, v%d, v%d' % (o + 1, u[2], u[3]))
        if mt == 2:
            a('s_cmp_eq_u32 s15, 28')
            a('s_cbranch_scc1 K4_FL')
        a('buffer_store_dwordx2 %s, v4, s[32:35], s%d offen' % (vr(o, 2), 38 + mt))
    a.label('K4_FL')
    st.flush()
    a.label('K4_END')
    a('s_endpgm')
    return dict(name=L, asm=a, grid=232, lds=4 * DEPTH * 3072, vgpr=88 + DEPTH * 16, sgpr=56)


def gen_k5(DEPTH=7):
    a = Asm()
    L = NAME + '_kernel'
    a.label(L)
    a('s_cmp_ge_u32 s2, 256')
    a('s_cbranch_scc1 K5_END')
    st = Stamper(a, 5)
    st()
    a('s_load_dwordx4 s[4:7], s[0:1], 48')
    a('s_load_dwordx2 s[12:13], s[0:1], 80')
    a('s_load_dwordx2 s[40:41], s[0:1], 64')
    a('v_and_b32 v1, 63, v0')
    a('v_lshrrev_b32 v2, 6, v0')
    a('s_and_b32 s14, s2, 7')
    a('s_lshr_b32 s15, s2, 3')
    a('v_readfirstlane_b32 s3, v2')
    a('s_and_b32 s16, s14, 1')
    a('s_lshl_b32 s16, s16, 2')
    a('s_and_b32 s17, s15, 3')
    a('s_add_u32 s16, s16, s17')
    a('s_lshr_b32 s14, s14, 1')
    a('s_lshl_b32 s14, s14, 3')
    a('s_lshr_b32 s15, s15, 2')
    a('s_add_u32 s15, s15, s14')
    a('v_lshrrev_b32 v2, 4, v1')
    a('v_and_b32 v3, 15, v1')
    a('v_lshrrev_b32 v10, 3, v1')
    a('v_bfe_u32 v11, v10, 1, 2')
    a('v_lshlrev_b32 v11, 1, v11')
    a('v_and_b32 v12, 7, v1')
    a('v_xor_b32 v11, v11, v12')
    a('v_lshlrev_b32 v11, 4, v11')
    a('v_lshl_add_u32 v4, v10, 12, v11')
    for m in range(1, 4):
        a('v_add_u32 v%d, %d, v4' % (4 + m, m * (32768 - 1024)))
    a('v_lshlrev_b32 v8, 4, v1')
    a('v_lshrrev_b32 v10, 2, v3')
    a('v_lshl_add_u32 v11, v2, 2, v10')
    a('v_bfe_u32 v9, v11, 1, 2')
    a('v_lshlrev_b32 v11, 7, v11')
    a('v_lshl_add_u32 v11, v9, 5, v11')
    a('v_and_b32 v10, 3, v1')
    a('v_lshl_add_u32 v11, v10, 3, v11')
    a('s_mul_i32 s18, s3, %d' % (DEPTH * 4096))
    a('v_add_u32 v12, s18, v11')
    for nt in range(1, 4):
        a('v_xor_b32 v%d, %d, v12' % (12 + nt, nt * 32))
    a('s_mul_i32 s19, s3, %d' % (11 * 32 * 4096))
    a('s_lshl_b32 s20, s15, 7')
    a('s_add_u32 s19, s19, s20')
    a('s_mul_i32 s20, s16, %d' % (4 * 43 * 1024))
    a('s_mul_i32 s21, s3, %d' % (11 * 1024))
    a('s_add_u32 s20, s20, s21')
    a('v_lshlrev_b32 v9, 10, v3')
    a('v_lshl_add_u32 v9, v2, 5, v9')
    a('s_lshl_b32 s21, s15, 6')
    a('s_lshl_b32 s22, s3, 4')
    a('s_add_u32 s21, s21, s22')
    a('s_lshl_b32 s22, s21, 10')
    a('s_lshl_b32 s23, s16, 7')
    a('s_add_u32 s22, s22, s23')
    a('s_lshl_b32 s21, s21, 1')
    a('v_lshlrev_b32 v10, 1, v3')
    a('s_waitcnt lgkmcnt(0)')
    srd(a, 8, 4, 1376 * 4096)
    srd(a, 24, 12, SZ_U, WS_U)
    srd(a, 28, 6, 4096)
    srd(a, 32, 12, SZ_H, WS_H)
    srd(a, 36, 40, 2048 * 1024)
    st()
    vm = VM(a)
    ACC = 24
    BF = 88
    AR = 120
    HR = 16
    NK = 11

    ROT = os.environ.get('ROT', '1') == '1'
    if ROT:
        a('s_and_b32 s43, s15, 7')
        a('s_mul_i32 s43, s43, 11')
        a('s_lshr_b32 s43, s43, 3')
        a('s_cmp_eq_u32 s3, 3')
        a('s_cselect_b32 s44, 10, 99')

    def stage(k):
        slot = k % DEPTH
        a('s_add_u32 m0, s18, %d' % (slot * 4096))
        if ROT:
            if k:
                a('s_add_u32 s43, s43, 1')
                a('s_cmp_eq_u32 s43, 11')
                a('s_cselect_b32 s43, 0, s43')
            a('s_lshl_b32 s23, s43, 17')
            a('s_add_u32 s23, s23, s19')
            a('s_lshl_b32 s42, s43, 10')
            a('s_add_u32 s42, s42, s20')
            a('s_cmp_eq_u32 s43, s44')
            a('s_cselect_b32 s42, 0x7000000, s42')
        else:
            a('s_add_u32 s23, s19, %d' % (k * 32 * 4096))
            a('s_add_u32 s42, s20, %d' % (k * 1024))
            if k == 10:
                a('s_cmp_eq_u32 s3, 3')
                a('s_cselect_b32 s42, 0x7000000, s42')
        for m in range(4):
            vm.issue('buffer_load_dwordx4 v%d, s[8:11], s23 offen offset:%d lds' % (4 + m, 1024 * m), ('B', k))
        for mt in range(4):
            if mt:
                a('s_add_u32 s42, s42, %d' % (43 * 1024))
            vm.issue('buffer_load_dwordx4 %s, v8, s[24:27], s42 offen' % vr(AR + slot * 16 + mt * 4, 4), ('A', k))

    def bread(k):
        slot = k % DEPTH
        for nt in range(4):
            for q in range(2):
                a('ds_read_b64_tr_b16 %s, v%d offset:%d' % (vr(BF + (k & 1) * 16 + nt * 4 + q * 2, 2), 12 + nt, slot * 4096 + q * 2048))

    for k in range(DEPTH):
        stage(k)
    vm.issue('buffer_load_dwordx4 %s, v9, s[32:35], s22 offen' % vr(HR, 4), ('h',))
    vm.issue('buffer_load_dwordx4 %s, v9, s[32:35], s22 offen offset:16' % vr(HR + 4, 4), ('h',))
    vm.issue('buffer_load_ushort v11, v10, s[28:31], s21 offen', ('h',))
    st()
    vm.wait({('B', 0)})
    st()
    bread(0)
    for k in range(NK):
        if k + 1 < NK:
            vm.wait({('B', k + 1), ('A', k)})
            bread(k + 1)
            a('s_waitcnt lgkmcnt(8)')
        else:
            vm.wait({('A', k)})
            a('s_waitcnt lgkmcnt(0)')
        slot = k % DEPTH
        for mt in range(4):
            for nt in range(4):
                d = ACC + (mt * 4 + nt) * 4
                c = '0' if k == 0 else vr(d, 4)
                a('v_mfma_f32_16x16x32_bf16 %s, %s, %s, %s' % (vr(d, 4), vr(AR + slot * 16 + mt * 4, 4), vr(BF + (k & 1) * 16 + nt * 4, 4), c))
        if k + DEPTH < NK:
            stage(k + DEPTH)
        if k in (0, 3, 7, 10):
            st()
    a('s_barrier')
    a('s_lshl_b32 s23, s3, 14')
    a('v_add_u32 v5, s23, v8')
    for mt in range(4):
        for nt in range(4):
            a('ds_write_b128 v5, %s offset:%d' % (vr(ACC + (mt * 4 + nt) * 4, 4), (mt * 4 + nt) * 1024))
    a('v_lshlrev_b32 v6, 12, v2')
    a('v_lshl_add_u32 v6, v3, 4, v6')
    a('s_lshl_b32 s23, s3, 10')
    a('v_add_u32 v6, s23, v6')
    a('s_waitcnt lgkmcnt(0)')
    a('s_barrier')
    st()
    R = 88
    for src in range(4):
        for gg in range(4):
            a('ds_read_b128 %s, v6 offset:%d' % (vr(R + (src * 4 + gg) * 4, 4), src * 16384 + gg * 256))
    a('s_waitcnt lgkmcnt(0)')
    vm.wait({('h',)})
    S = 24
    for q in range(16):
        x0, x1, x2, x3 = [R + src * 16 + q for src in range(4)]
        a('v_add_f32 v%d, v%d, v%d' % (x0, x0, x1))
        a('v_add_f32 v%d, v%d, v%d' % (x2, x2, x3))
        a('v_add_f32 v%d, v%d, v%d' % (S + q, x0, x2))
    a('v_lshlrev_b32 v11, 16, v11')
    T = 48
    O = 40
    for p in range(8):
        u0, u1 = S + 2 * p, S + 2 * p + 1
        a('v_cvt_pk_bf16_f32 v%d, v%d, v%d' % (T, u0, u1))
        a('v_lshlrev_b32 v%d, 16, v%d' % (u0, T))
        a('v_and_b32 v%d, 0xffff0000, v%d' % (u1, T))
        a('v_add_f32 v%d, v%d, v11' % (u0, u0))
        a('v_add_f32 v%d, v%d, v11' % (u1, u1))
        a('v_cvt_pk_bf16_f32 v%d, v%d, v%d' % (T, u0, u1))
        a('v_lshlrev_b32 v%d, 16, v%d' % (u0, T))
        a('v_and_b32 v%d, 0xffff0000, v%d' % (u1, T))
        a('v_lshlrev_b32 v%d, 16, v%d' % (T + 1, HR + p))
        a('v_and_b32 v%d, 0xffff0000, v%d' % (T + 2, HR + p))
        a('v_add_f32 v%d, v%d, v%d' % (u0, u0, T + 1))
        a('v_add_f32 v%d, v%d, v%d' % (u1, u1, T + 2))
        a('v_cvt_pk_bf16_f32 v%d, v%d, v%d' % (O + p, u0, u1))
    a('buffer_store_dwordx4 %s, v9, s[36:39], s22 offen' % vr(O, 4))
    a('buffer_store_dwordx4 %s, v9, s[36:39], s22 offen offset:16' % vr(O + 4, 4))
    st.flush()
    a.label('K5_END')
    a('s_endpgm')
    return dict(name=L, asm=a, grid=256, lds=max(4 * DEPTH * 4096, 65536), vgpr=120 + DEPTH * 16, sgpr=48)


def emit(kernels, path):
    out = []
    for k in kernels:
        out.append('; @launch kernel=%s grid=(%d,1,1) block=(256,1,1) lds=%d' % (k['name'], k['grid'], k['lds']))
    out.append('.amdgcn_target "amdgcn-amd-amdhsa--gfx950"')
    out.append('.text')
    done = set()
    for k in kernels:
        if k['name'] in done:
            continue
        done.add(k['name'])
        a = k['asm']
        n = a.fix_hazards()
        errs = a.check_waits(k['name'])
        for e in errs:
            print('WAITCHK', e)
        print('%s: %d instrs, %d auto wait states' % (k['name'], len(a.ins), n))
        out.append('.globl %s' % k['name'])
        out.append('.p2align 8')
        out.append('.type %s,@function' % k['name'])
        out.append(a.text())
    out.append('CODE_END:')
    out.append('.section .rodata,"a"')
    done = set()
    for k in kernels:
        if k['name'] in done:
            continue
        done.add(k['name'])
        if STAMPS:
            k['vgpr'] = 256; k['sgpr'] = 102
        acc = (k['vgpr'] + 3) // 4 * 4
        out.append('.p2align 6')
        out.append('.amdhsa_kernel %s' % k['name'])
        out.append('  .amdhsa_next_free_vgpr %d' % (k.get('total_vgpr', k['vgpr'])))
        out.append('  .amdhsa_next_free_sgpr %d' % k['sgpr'])
        out.append('  .amdhsa_accum_offset %d' % acc)
        out.append('  .amdhsa_group_segment_fixed_size 0')
        out.append('  .amdhsa_kernarg_size 88')
        out.append('  .amdhsa_user_sgpr_count 2')
        out.append('  .amdhsa_user_sgpr_kernarg_segment_ptr 1')
        out.append('  .amdhsa_system_sgpr_workgroup_id_x 1')
        out.append('.end_amdhsa_kernel')
    open(path, 'w').write('\n'.join(out) + '\n')


def gen_dummy(i):
    a = Asm()
    L = 'dummy%d_kernel' % i
    a.label(L)
    for q in range(int(os.environ.get('DUMMYN', '0'))):
        a('v_mov_b32 v1, 0x12345678')
    a('s_endpgm')
    return dict(name=L, asm=a, grid=256, lds=0, vgpr=8, sgpr=16)


if __name__ == '__main__':
    import os
    which = sys.argv[1] if len(sys.argv) > 1 else 'all'
    STAMPS = which in ('stamp', 'rt')
    if which == 'rt':
        STAMP_OP = 's_memrealtime'
        RT_ONLY = True
    path = sys.argv[2] if len(sys.argv) > 2 else 'out.s'
    ks = [gen_k1(), gen_k2(), gen_k3(), gen_k4(), gen_k5()]
    nd = int(os.environ.get('DUMMY', '0'))
    for i in range(nd):
        ks.insert(2 + (2 * i if os.environ.get('DUMMYADJ', '0') == '0' else 0), gen_dummy(0))
    emit(ks, path)
```

```python
import sys, struct
sys.path.insert(0, 'work')
from asmgen import Asm

NAME = 'sequential_preLN__spectral_gfnet__mixer_token_mlp__prompt'

WS_X1 = 0x000000; SZ_X1 = 256 * 8320
WS_WT = 0x300000; SZ_WT = 257 * 8192
WS_Y1 = 0x600000; SZ_Y1 = 257 * 8320
WS_H = 0x900000; SZ_H = 2048 * 1024
WS_L2 = 0xC00000; SZ_L2 = 2048 * 1024
WS_U = 0xF00000; SZ_U = 32 * 43 * 1024


def f2u(x):
    return struct.unpack('<I', struct.pack('<f', x))[0]


def fl(x):
    return '0x%08x' % f2u(x)


def vr(a, n=1):
    return 'v%d' % a if n == 1 else 'v[%d:%d]' % (a, a + n - 1)


def sr(a, n=1):
    return 's%d' % a if n == 1 else 's[%d:%d]' % (a, a + n - 1)


def srd(a, R, lo, size, off=0):
    if off:
        a('s_add_u32 s%d, s%d, 0x%x' % (R, lo, off))
        a('s_addc_u32 s%d, s%d, 0' % (R + 1, lo + 1))
        a('s_and_b32 s%d, s%d, 0xffff' % (R + 1, R + 1))
    else:
        a('s_mov_b32 s%d, s%d' % (R, lo))
        a('s_and_b32 s%d, s%d, 0xffff' % (R + 1, lo + 1))
    a('s_mov_b32 s%d, 0x%x' % (R + 2, size))
    a('s_mov_b32 s%d, 0x20000' % (R + 3))


STAMPS = False
DBG_MODE = False
DBG_STRIDE = 512
RT_ONLY = False
STAMP_OP = 's_memtime'
WS_DBG = 0x2000000
STAMP_S = 64


class Stamper:
    def __init__(self, a, kid):
        self.a = a
        self.n = 0
        self.kid = kid

    def __call__(self):
        if not STAMPS:
            return
        if RT_ONLY and self.n >= 1 and not getattr(self, 'final', False):
            return
        a = self.a
        a(STAMP_OP + ' s[%d:%d]' % (STAMP_S + 2 * self.n, STAMP_S + 2 * self.n + 1))
        a('s_waitcnt lgkmcnt(0)')
        self.n += 1

    def flush(self, wave_s='s3', vtmp=250):
        if not STAMPS:
            return
        a = self.a
        if not RT_ONLY:
            a('s_waitcnt vmcnt(0)')
        self.final = True
        self()
        if DBG_MODE:
            k = self.kid
            a('s_load_dwordx2 s[96:97], s[0:1], 72')
            a('s_waitcnt lgkmcnt(0)')
            a('s_sub_u32 s96, s96, %d' % (DBG_STRIDE * (k - 1)))
            a('s_subb_u32 s97, s97, 0')
            srd(a, 60, 96, 64)
            a('s_lshl_b32 s98, s2, 2')
            a('s_add_u32 s98, s98, %s' % wave_s)
            a('v_mov_b32 v%d, 0x40000000' % (vtmp + 1))
            a('v_mov_b32 v%d, 0x40000000' % (vtmp + 2))
            a('s_cmp_eq_u32 s98, 0')
            a('s_cselect_b32 s99, %d, 0x40000000' % (8 * (k - 1)))
            a('v_writelane_b32 v%d, s99, 0' % (vtmp + 1))
            a('s_cmp_eq_u32 s98, 403')
            a('s_cselect_b32 s99, %d, 0x40000000' % (40 + 4 * (k - 1)))
            a('v_writelane_b32 v%d, s99, 0' % (vtmp + 2))
            a('v_mov_b32 v%d, s%d' % (vtmp - 2, STAMP_S))
            a('v_mov_b32 v%d, s%d' % (vtmp - 1, STAMP_S + 2))
            a('s_nop 1')
            a('buffer_store_dwordx2 v[%d:%d], v%d, s[60:63], 0 offen' % (vtmp - 2, vtmp - 1, vtmp + 1))
            a('buffer_store_dword v%d, v%d, s[60:63], 0 offen' % (vtmp - 1, vtmp + 2))
            return
        if RT_ONLY:
            a('s_getreg_b32 s%d, hwreg(20, 0, 4)' % (STAMP_S + 2 * self.n))
            a('s_add_u32 s%d, s%d, 0x100' % (STAMP_S + 2 * self.n, STAMP_S + 2 * self.n))
            self.n += 1
        a('s_load_dwordx2 s[96:97], s[0:1], 80')
        a('s_waitcnt lgkmcnt(0)')
        srd(a, 60, 96, 0x40000, WS_DBG + self.kid * 0x40000)
        a('s_lshl_b32 s98, s2, 2')
        a('s_add_u32 s98, s98, %s' % wave_s)
        a('s_lshl_b32 s98, s98, 6')
        a('v_mov_b32 v%d, 0x40000000' % (vtmp + 1))
        for i in range(self.n):
            vt = vtmp - (i if RT_ONLY else 0)
            a('v_mov_b32 v%d, s%d' % (vt, STAMP_S + 2 * i))
            a('s_add_u32 s99, s98, %d' % (4 * i))
            a('v_writelane_b32 v%d, 0, 0' % (vtmp + 1))
            a('s_nop 1')
            a('buffer_store_dword v%d, v%d, s[60:63], s99 offen' % (vt, vtmp + 1))
            if not RT_ONLY:
                a('s_waitcnt vmcnt(0)')


import os
PF = os.environ.get('PF', '')


def prefetch(a, which, sptr, sR, sT, vlane, vtmp, vdst, swave='s3', issue=None, nwaves=128):
    issue = issue or (lambda t: a(t))
    stride = 2752 if which == 'a' else 4096
    rows = 2048 if which == 'a' else 1376
    pstep = 672 if which == 'a' else 1024
    srd(a, sR, sptr, rows * stride)
    a('v_lshrrev_b32 v%d, 3, v%d' % (vtmp, vlane))
    a('v_mul_u32_u24 v%d, %d, v%d' % (vtmp, stride, vtmp))
    a('v_and_b32 v%d, 7, v%d' % (vdst, vlane))
    a('v_lshl_add_u32 v%d, v%d, 7, v%d' % (vtmp, vdst, vtmp))
    if which == 'a':
        a('v_cmp_eq_u32 vcc, 7, v%d' % vdst)
        a('v_mov_b32 v%d, 0x40000000' % vdst)
        a('v_cndmask_b32 v%d, v%d, v%d, vcc' % (vtmp, vtmp, vdst))
    a('s_lshr_b32 s%d, s2, 3' % sT)
    a('s_lshl_b32 s%d, s%d, 2' % (sT, sT))
    a('s_add_u32 s%d, s%d, %s' % (sT, sT, swave))
    a('s_mul_i32 s%d, s%d, %d' % (sT, sT, 8 * stride))
    a('s_bfe_u32 s%d, s2, 0x20001' % (sT + 1))
    a('s_mul_i32 s%d, s%d, %d' % (sT + 1, sT + 1, pstep))
    a('s_add_u32 s%d, s%d, s%d' % (sT, sT, sT + 1))
    a('s_add_u32 s%d, s%d, %d' % (sT + 1, sT, 8 * nwaves * stride))
    issue('buffer_load_dword v%d, v%d, s[%d:%d], s%d offen' % (vdst, vtmp, sR, sR + 3, sT))
    issue('buffer_load_dword v%d, v%d, s[%d:%d], s%d offen' % (vdst, vtmp, sR, sR + 3, sT + 1))
    return 2


CPF = os.environ.get('CPF', '0') == '1'


def code_prefetch(a, sR, sT, vlane, vtmp, vdst, swave='s3', nlines_log=6):
    a('s_getpc_b64 s[%d:%d]' % (sR, sR + 1))
    a.label('CPF_PC')
    a('s_add_u32 s%d, s%d, k2_kernel-CPF_PC' % (sR, sR))
    a('s_addc_u32 s%d, s%d, 0' % (sR + 1, sR + 1))
    a('s_and_b32 s%d, s%d, 0xffff' % (sR + 1, sR + 1))
    a('s_mov_b32 s%d, CODE_END-k2_kernel' % (sR + 2))
    a('s_mov_b32 s%d, 0x20000' % (sR + 3))
    a('s_lshr_b32 s%d, s2, 3' % sT)
    a('s_lshl_b32 s%d, s%d, 2' % (sT, sT))
    a('s_add_u32 s%d, s%d, %s' % (sT, sT, swave))
    a('s_lshl_b32 s%d, s%d, 12' % (sT, sT))
    a('v_lshlrev_b32 v%d, 6, v%d' % (vtmp, vlane))
    a('buffer_load_dword v%d, v%d, s[%d:%d], s%d offen' % (vdst, vtmp, sR, sR + 3, sT))
    return 1


def pf_for(kid):
    return [t[1] for t in PF.split(',') if t and t[0] == str(kid)]


def wave_sum(a, regs):
    steps = ['quad_perm:[1,0,3,2] row_mask:0xf', 'quad_perm:[2,3,0,1] row_mask:0xf', 'row_half_mirror row_mask:0xf',
             'row_mirror row_mask:0xf', 'row_bcast:15 row_mask:0xa', 'row_bcast:31 row_mask:0xc']
    for st in steps:
        for r in regs:
            a('v_add_f32_dpp v%d, v%d, v%d %s bank_mask:0xf' % (r, r, r, st))


def ln_rows(a, X, T, S, nrows, out_pk=None, keep_f32=False):
    n = nrows
    sm = [T + j for j in range(n)]
    mean = [T + n + j for j in range(n)]
    mb = [T + 2 * n + j for j in range(n)]
    sq = [T + 3 * n + j for j in range(n)]
    t1 = [T + 4 * n + j for j in range(n)]
    t2 = [T + 5 * n + j for j in range(n)]
    for j in range(n):
        a('v_add_f32 v%d, v%d, v%d' % (sm[j], X[j][0], X[j][1]))
        a('v_add_f32 v%d, v%d, v%d' % (t1[j], X[j][2], X[j][3]))
        a('v_add_f32 v%d, v%d, v%d' % (t2[j], X[j][4], X[j][5]))
        a('v_add_f32 v%d, v%d, v%d' % (sq[j], X[j][6], X[j][7]))
    for j in range(n):
        a('v_add_f32 v%d, v%d, v%d' % (sm[j], sm[j], t1[j]))
        a('v_add_f32 v%d, v%d, v%d' % (t2[j], t2[j], sq[j]))
    for j in range(n):
        a('v_add_f32 v%d, v%d, v%d' % (sm[j], sm[j], t2[j]))
    wave_sum(a, sm)
    for j in range(n):
        a('v_readlane_b32 s%d, v%d, 63' % (S + j, sm[j]))
    for j in range(n):
        a('v_mov_b32 v%d, s%d' % (mean[j], S + j))
    for j in range(n):
        a('v_mul_f32 v%d, %s, v%d' % (mean[j], fl(1.0 / 512), mean[j]))
    for j in range(n):
        a('v_cvt_pk_bf16_f32 v%d, v%d, v%d' % (mb[j], mean[j], mean[j]))
    for j in range(n):
        a('v_and_b32 v%d, 0xffff0000, v%d' % (mb[j], mb[j]))
    for k in range(8):
        for j in range(n):
            a('v_sub_f32 v%d, v%d, v%d' % (X[j][k], X[j][k], mb[j]))
    for j in range(n):
        a('v_mul_f32 v%d, v%d, v%d' % (sq[j], X[j][0], X[j][0]))
        a('v_mul_f32 v%d, v%d, v%d' % (t1[j], X[j][1], X[j][1]))
    for k in range(2, 8, 2):
        for j in range(n):
            a('v_fmac_f32 v%d, v%d, v%d' % (sq[j], X[j][k], X[j][k]))
            a('v_fmac_f32 v%d, v%d, v%d' % (t1[j], X[j][k + 1], X[j][k + 1]))
    for j in range(n):
        a('v_add_f32 v%d, v%d, v%d' % (sq[j], sq[j], t1[j]))
    wave_sum(a, sq)
    for j in range(n):
        for k in range(0, 8, 2):
            a('v_cvt_pk_bf16_f32 v%d, v%d, v%d' % (X[j][k + 1], X[j][k], X[j][k + 1]))
    for j in range(n):
        a('v_readlane_b32 s%d, v%d, 63' % (S + j, sq[j]))
    for j in range(n):
        for k in range(0, 8, 2):
            a('v_lshlrev_b32 v%d, 16, v%d' % (X[j][k], X[j][k + 1]))
            a('v_and_b32 v%d, 0xffff0000, v%d' % (X[j][k + 1], X[j][k + 1]))
    for j in range(n):
        a('v_sub_f32 v%d, v%d, v%d' % (t1[j], mean[j], mb[j]))
        a('v_mov_b32 v%d, s%d' % (sq[j], S + j))
    for j in range(n):
        a('v_mul_f32 v%d, v%d, v%d' % (t1[j], t1[j], t1[j]))
        a('v_mul_f32 v%d, %s, v%d' % (sq[j], fl(1.0 / 512), sq[j]))
    for j in range(n):
        a('v_sub_f32 v%d, v%d, v%d' % (sq[j], sq[j], t1[j]))
    for j in range(n):
        a('v_max_f32 v%d, 0, v%d' % (sq[j], sq[j]))
    for j in range(n):
        a('v_cvt_pk_bf16_f32 v%d, v%d, v%d' % (sq[j], sq[j], sq[j]))
    for j in range(n):
        a('v_and_b32 v%d, 0xffff0000, v%d' % (sq[j], sq[j]))
    for j in range(n):
        a('v_add_f32 v%d, %s, v%d' % (sq[j], fl(1e-5), sq[j]))
    for j in range(n):
        a('v_cvt_pk_bf16_f32 v%d, v%d, v%d' % (sq[j], sq[j], sq[j]))
    for j in range(n):
        a('v_and_b32 v%d, 0xffff0000, v%d' % (sq[j], sq[j]))
    for j in range(n):
        a('v_sqrt_f32 v%d, v%d' % (sq[j], sq[j]))
    for j in range(n):
        a('v_cvt_pk_bf16_f32 v%d, v%d, v%d' % (sq[j], sq[j], sq[j]))
    for j in range(n):
        a('v_and_b32 v%d, 0xffff0000, v%d' % (sq[j], sq[j]))
    for j in range(n):
        a('v_rcp_f32 v%d, v%d' % (sq[j], sq[j]))
    for k in range(8):
        for j in range(n):
            a('v_mul_f32 v%d, v%d, v%d' % (X[j][k], X[j][k], sq[j]))
    for j in range(n):
        for k in range(0, 8, 2):
            a('v_cvt_pk_bf16_f32 v%d, v%d, v%d' % (out_pk[j][k // 2], X[j][k], X[j][k + 1]))
    if keep_f32:
        for j in range(n):
            for k in range(0, 8, 2):
                a('v_lshlrev_b32 v%d, 16, v%d' % (X[j][k], out_pk[j][k // 2]))
                a('v_and_b32 v%d, 0xffff0000, v%d' % (X[j][k + 1], out_pk[j][k // 2]))


def cmul_tw(a, re, im, c, s, ore, oim, sign):
    a('v_mul_f32 v%d, v%d, v%d' % (ore, re, c))
    a('v_mul_f32 v%d, v%d, v%d' % (oim, im, c))
    if sign < 0:
        a('v_fmac_f32 v%d, v%d, v%d' % (ore, im, s))
        a('v_fma_f32 v%d, -v%d, v%d, v%d' % (oim, re, s, oim))
    else:
        a('v_fma_f32 v%d, -v%d, v%d, v%d' % (ore, im, s, ore))
        a('v_fmac_f32 v%d, v%d, v%d' % (oim, re, s))


def gen_k1():
    a = Asm()
    L = 'k1_kernel'
    a.label(L)
    a('s_cmp_ge_u32 s2, 256')
    a('s_cbranch_scc1 K1_TR')
    st = Stamper(a, 1)
    st()
    a('s_load_dwordx2 s[4:5], s[0:1], 0')
    a('s_load_dwordx2 s[6:7], s[0:1], 80')
    for t in pf_for(1):
        a('s_load_dwordx2 s[%d:%d], s[0:1], %d' % ((44, 45, 32) if t == 'a' else (46, 47, 48)))
    a('v_and_b32 v1, 63, v0')
    a('v_lshrrev_b32 v2, 6, v0')
    a('s_lshr_b32 s12, s2, 3')
    a('v_readfirstlane_b32 s3, v2')
    a('s_and_b32 s13, s2, 7')
    a('s_lshl_b32 s13, s13, 8')
    a('s_add_u32 s13, s13, s12')
    a('v_lshlrev_b32 v3, 4, v1')
    a('s_lshl_b32 s14, s3, 6')
    a('s_add_u32 s13, s13, s14')
    a('s_lshl_b32 s13, s13, 10')
    a('s_add_u32 s14, s13, 32768')
    a('s_waitcnt lgkmcnt(0)')
    srd(a, 8, 4, 2048 * 1024)
    a('buffer_load_dwordx4 v[4:7], v3, s[8:11], s13 offen')
    a('buffer_load_dwordx4 v[8:11], v3, s[8:11], s14 offen')
    npf = 0
    for t in pf_for(1):
        npf += prefetch(a, t, 44 if t == 'a' else 46, 48, 52, 1, 125, 124)
    if CPF:
        npf += code_prefetch(a, 48, 52, 1, 125, 124)
    st()
    srd(a, 16, 6, SZ_X1, WS_X1)
    a('s_mul_i32 s15, s2, 8320')
    G, N, FG, FN = 12, 13, 14, 15
    a('v_lshrrev_b32 v%d, 4, v1' % G)
    a('v_and_b32 v%d, 15, v1' % N)
    a('v_cvt_f32_u32 v%d, v%d' % (FG, G))
    a('v_cvt_f32_u32 v%d, v%d' % (FN, N))
    B1 = 16
    T = 96
    a('v_mul_f32 v%d, v%d, v%d' % (T, FN, FG))
    a('v_mul_f32 v%d, 0.125*1, v%d'.replace('0.125*1', fl(0.125)) % (T, T))
    for o in range(1, 4):
        a('v_fmamk_f32 v%d, v%d, %s, v%d' % (T + o, FN, fl(o / 32.0), T))
    for o in range(4):
        a('v_cos_f32 v%d, v%d' % (T + 4 + o, T + o))
        a('v_sin_f32 v%d, v%d' % (T + 8 + o, T + o))
    a('v_and_b32 v%d, 1, v1' % (T + 12))
    a('v_mul_u32_u24 v%d, 0x8000, v%d' % (T + 12, T + 12))
    a('v_lshl_or_b32 v%d, v%d, 16, v%d' % (T + 12, T + 12, T + 12))
    a('v_cvt_pk_bf16_f32 v%d, v%d, v%d' % (B1 + 0, T + 4, T + 5))
    a('v_cvt_pk_bf16_f32 v%d, v%d, v%d' % (B1 + 1, T + 6, T + 7))
    a('v_cvt_pk_bf16_f32 v%d, -v%d, -v%d' % (B1 + 4, T + 8, T + 9))
    a('v_cvt_pk_bf16_f32 v%d, -v%d, -v%d' % (B1 + 5, T + 10, T + 11))
    for cs in range(2):
        for rr in range(2):
            a('v_xor_b32 v%d, v%d, v%d' % (B1 + cs * 4 + 2 + rr, B1 + cs * 4 + rr, T + 12))
    for q in range(8):
        a('v_xor_b32 v%d, 0x80000000, v%d' % (B1 + 8 + q, B1 + q))
    TC, TS = 32, 40
    a('v_mul_f32 v%d, %s, v%d' % (T, fl(1.0 / 512), FN))
    a('v_add_f32 v%d, %s, v%d' % (T + 1, fl(16.0 / 512), T))
    a('v_mul_f32 v%d, 4.0, v%d' % (T + 2, FG))
    for r in range(1, 4):
        a('v_add_f32 v%d, %s, v%d' % (T + 2 + r, fl(float(r)), T + 2))
    for hf in range(2):
        for r in range(4):
            a('v_mul_f32 v%d, v%d, v%d' % (T + 6 + hf * 4 + r, T + hf, T + 2 + r))
    for q in range(8):
        a('v_cos_f32 v%d, v%d' % (TC + q, T + 6 + q))
        a('v_sin_f32 v%d, v%d' % (TS + q, T + 6 + q))
    A3 = 48
    a('v_lshrrev_b32 v%d, 1, v%d' % (T, N))
    a('v_cvt_f32_u32 v%d, v%d' % (T, T))
    a('v_mul_f32 v%d, %s, v%d' % (T, fl(1.0 / 16), T))
    a('v_and_b32 v%d, 1, v%d' % (T + 1, N))
    a('v_cvt_f32_u32 v%d, v%d' % (T + 1, T + 1))
    a('v_mul_f32 v%d, %s, v%d' % (T + 1, fl(0.25), T + 1))
    for rr in range(4):
        a('v_fma_f32 v%d, v%d, v%d, v%d' % (T + 6 + rr, T, T + 2 + rr, T + 1))
    for rr in range(4):
        a('v_cos_f32 v%d, v%d' % (T + 10 + rr, T + 6 + rr))
        a('v_sin_f32 v%d, v%d' % (T + 14 + rr, T + 6 + rr))
    for rr in range(4):
        a('v_cvt_pk_bf16_f32 v%d, v%d, v%d' % (A3 + rr, T + 10 + rr, T + 14 + rr))
    G8 = 52
    for rr in range(4):
        a('v_mov_b32 v%d, 0x%x' % (G8 + rr, 0x3F80 if rr % 2 == 0 else 0xBF80))
    a('s_lshl_b32 s20, s3, 3')
    a('v_lshlrev_b32 v56, 5, v%d' % N)
    a('v_lshl_add_u32 v56, v%d, 11, v56' % G)
    a('v_add_u32 v56, s20, v56')
    a('s_add_u32 s21, s20, 8192')
    a('v_mov_b32 v57, 0x40000000')
    a('v_writelane_b32 v57, s21, 0')
    a('s_lshl_b32 s22, s3, 11')
    a('v_add_u32 v58, s22, v3')
    a('v_lshlrev_b32 v59, 3, v1')
    a('v_add_u32 v59, s22, v59')
    st()
    a('s_waitcnt vmcnt(%d)' % npf)
    st()
    X = [[64 + k for k in range(8)], [72 + k for k in range(8)]]
    for j in range(2):
        for k in range(4):
            a('v_lshlrev_b32 v%d, 16, v%d' % (X[j][2 * k], 4 + 4 * j + k))
            a('v_and_b32 v%d, 0xffff0000, v%d' % (X[j][2 * k + 1], 4 + 4 * j + k))
    ln_rows(a, X, T, 24, 2, out_pk=[[4, 5, 6, 7], [8, 9, 10, 11]])
    st()
    a('ds_write_b128 v58, v[4:7]')
    a('ds_write_b128 v58, v[8:11] offset:1024')
    a('ds_read_b64_tr_b16 v[60:61], v59')
    a('ds_read_b64_tr_b16 v[62:63], v59 offset:512')
    a('ds_read_b64_tr_b16 v[64:65], v59 offset:1024')
    a('ds_read_b64_tr_b16 v[66:67], v59 offset:1536')
    D1 = 68
    A = [60, 64]
    for j in range(2):
        a('s_waitcnt lgkmcnt(%d)' % (2 - 2 * j))
        for hf in range(2):
            for cs in range(2):
                d = D1 + ((j * 2 + hf) * 2 + cs) * 4
                a('v_mfma_f32_16x16x32_bf16 %s, %s, %s, 0' % (vr(d, 4), vr(A[j], 4), vr(B1 + hf * 8 + cs * 4, 4)))
    P = 100
    for j in range(2):
        for hf in range(2):
            dre = D1 + ((j * 2 + hf) * 2 + 0) * 4
            dim = dre + 4
            for r in range(4):
                cmul_tw(a, dre + r, dim + r, TC + hf * 4 + r, TS + hf * 4 + r, 116 + 2 * r, 117 + 2 * r, -1)
            for r in range(4):
                a('v_cvt_pk_bf16_f32 v%d, v%d, v%d' % (P + (j * 2 + hf) * 4 + r, 116 + 2 * r, 117 + 2 * r))
    D3 = 68
    for j in range(2):
        for hf in range(2):
            a('v_mfma_f32_16x16x32_bf16 %s, %s, %s, 0' % (vr(D3 + (j * 2 + hf) * 4, 4), vr(A3, 4), vr(P + (j * 2 + hf) * 4, 4)))
    for j in range(2):
        a('v_mfma_f32_16x16x32_bf16 %s, %s, %s, 0' % (vr(D3 + 16 + j * 4, 4), vr(G8, 4), vr(P + (j * 2) * 4, 4)))
    st()
    O = 4
    for hf in range(2):
        for p in range(2):
            o = O + (hf * 2 + p) * 2
            for j in range(2):
                d = D3 + (j * 2 + hf) * 4 + 2 * p
                a('v_cvt_pk_bf16_f32 v%d, v%d, v%d' % (o + j, d, d + 1))
            a('buffer_store_dwordx2 %s, v56, s[16:19], s15 offen offset:%d' % (vr(o, 2), hf * 512 + p * 1024))
    for j in range(2):
        a('v_cvt_pk_bf16_f32 v%d, v%d, 0' % (60 + j, D3 + 16 + j * 4))
    a('buffer_store_dwordx2 v[60:61], v57, s[16:19], s15 offen')
    st()
    st.flush()
    a('s_endpgm')
    a.label('K1_TR')
    a('s_cmp_ge_u32 s2, 320')
    a('s_cbranch_scc1 K1_END')
    a('s_load_dwordx4 s[4:7], s[0:1], 8')
    a('s_load_dwordx2 s[12:13], s[0:1], 80')
    a('s_sub_u32 s3, s2, 256')
    a('s_and_b32 s14, s3, 7')
    a('s_lshr_b32 s15, s3, 3')
    a('s_lshl_b32 s20, s14, 3')
    a('s_lshl_b32 s21, s15, 8')
    a('s_add_u32 s20, s20, s21')
    a('s_mul_i32 s20, s20, 514')
    for r in range(1, 4):
        a('s_add_u32 s%d, s20, %d' % (20 + r, r * 64 * 514))
    a('v_lshlrev_b32 v1, 4, v0')
    a('v_and_b32 v2, 3, v0')
    a('v_mul_u32_u24 v2, %d, v2' % (64 * 514))
    a('v_add_u32 v2, 4096, v2')
    a('s_waitcnt lgkmcnt(0)')
    srd(a, 8, 4, 2048 * 514)
    srd(a, 16, 6, 2048 * 514)
    srd(a, 24, 12, SZ_WT, WS_WT)
    for r in range(4):
        a('buffer_load_dwordx4 %s, v1, s[8:11], s%d offen' % (vr(4 + 4 * r, 4), 20 + r))
    for r in range(4):
        a('buffer_load_dwordx4 %s, v1, s[16:19], s%d offen' % (vr(20 + 4 * r, 4), 20 + r))
    a('buffer_load_dwordx4 v[36:39], v2, s[8:11], s20 offen')
    a('buffer_load_dwordx4 v[40:43], v2, s[16:19], s20 offen')
    RUN = 4112
    a('v_and_b32 v3, 3, v0')
    a('v_mul_u32_u24 v3, %d, v3' % RUN)
    a('v_add_u32 v3, 4096, v3')
    a('v_and_b32 v45, 7, v0')
    a('v_bfe_u32 v46, v0, 3, 3')
    a('v_lshrrev_b32 v47, 6, v0')
    a('v_lshrrev_b32 v48, 1, v47')
    a('v_lshlrev_b32 v48, 7, v48')
    a('v_lshl_add_u32 v48, v46, 4, v48')
    a('v_and_b32 v47, 1, v47')
    a('v_lshl_add_u32 v48, v47, 3, v48')
    a('v_mul_u32_u24 v49, 514, v45')
    a('v_lshl_add_u32 v49, v48, 1, v49')
    a('v_lshlrev_b32 v50, 13, v48')
    a('v_lshl_add_u32 v50, v45, 4, v50')
    a('s_lshr_b32 s28, s14, 1')
    a('s_lshl_b32 s28, s28, 11')
    a('s_lshr_b32 s29, s15, 2')
    a('s_lshl_b32 s29, s29, 10')
    a('s_add_u32 s28, s28, s29')
    a('s_and_b32 s29, s15, 3')
    a('s_lshl_b32 s29, s29, 8')
    a('s_add_u32 s28, s28, s29')
    a('s_and_b32 s29, s14, 1')
    a('s_lshl_b32 s29, s29, 7')
    a('s_add_u32 s28, s28, s29')
    for r in range(8):
        a('s_waitcnt vmcnt(%d)' % (9 - r))
        a('ds_write_b128 v1, %s offset:%d' % (vr(4 + 4 * r, 4), r * RUN))
    a('s_waitcnt vmcnt(0)')
    a('v_cmp_gt_u32 vcc, 4, v0')
    a('s_and_saveexec_b64 s[30:31], vcc')
    a('s_cbranch_execz K1_TR2')
    a('ds_write_b128 v3, v[36:39]')
    a('ds_write_b128 v3, v[40:43] offset:%d' % (4 * RUN))
    a.label('K1_TR2')
    a('s_mov_b64 exec, s[30:31]')
    a('s_waitcnt lgkmcnt(0)')
    a('s_barrier')
    for it in range(9):
        koff = it if it < 8 else None
        if it == 8:
            a('v_add_u32 v49, 512, v49')
            a('v_add_u32 v50, 0x%x, v50' % (256 * 8192))
            koff = 0
        base = 4 + (it % 2) * 12
        for r in range(4):
            a('ds_read_u16 v%d, v49 offset:%d' % (base + 2 * r, r * RUN + koff * 2))
            a('ds_read_u16 v%d, v49 offset:%d' % (base + 2 * r + 1, (4 + r) * RUN + koff * 2))
        a('s_waitcnt lgkmcnt(0)')
        o = 28 + (it % 2) * 4
        for r in range(4):
            a('v_lshl_or_b32 v%d, v%d, 16, v%d' % (o + r, base + 2 * r + 1, base + 2 * r))
        if it < 8:
            a('s_add_u32 s29, s28, %d' % (it * 8192))
        else:
            a('s_mov_b32 s29, s28')
        a('buffer_store_dwordx4 %s, v50, s[24:27], s29 offen' % vr(o, 4))
    a.label('K1_END')
    a('s_endpgm')
    return dict(name=L, asm=a, grid=320, lds=8 * 4112 + 1024, vgpr=128, sgpr=56)

def gen_k2():
    a = Asm()
    L = 'k2_kernel'
    a.label(L)
    a('s_cmp_ge_u32 s2, 257')
    a('s_cbranch_scc1 K2_END')
    st = Stamper(a, 2)
    st()
    a('s_load_dwordx2 s[4:5], s[0:1], 80')
    for t in pf_for(2):
        a('s_load_dwordx2 s[%d:%d], s[0:1], %d' % ((44, 45, 32) if t == 'a' else (46, 47, 48)))
    a('v_and_b32 v1, 63, v0')
    a('v_lshrrev_b32 v2, 6, v0')
    a('s_and_b32 s12, s2, 7')
    a('s_lshl_b32 s12, s12, 5')
    a('v_readfirstlane_b32 s3, v2')
    a('s_lshr_b32 s13, s2, 3')
    a('s_add_u32 s12, s12, s13')
    a('s_cmp_eq_u32 s2, 256')
    a('s_cselect_b32 s12, 256, s12')
    G, N = 2, 3
    a('v_lshrrev_b32 v2, 4, v1')
    a('v_and_b32 v3, 15, v1')
    a('v_lshlrev_b32 v4, 3, v3')
    a('v_lshrrev_b32 v5, 1, v2')
    a('v_add_u32 v4, v4, v5')
    a('v_mul_u32_u24 v4, 8320, v4')
    a('v_and_b32 v5, 1, v2')
    a('v_lshl_add_u32 v4, v5, 4, v4')
    a('s_lshl_b32 s14, s3, 1')
    a('s_mul_i32 s14, s14, 8320')
    a('s_lshl_b32 s15, s12, 5')
    a('s_add_u32 s14, s14, s15')
    a('s_add_u32 s15, s14, %d' % (128 * 8320))
    a('s_lshl_b32 s16, s3, 11')
    a('v_lshlrev_b32 v5, 4, v1')
    a('s_lshl_b32 s17, s12, 13')
    a('s_add_u32 s17, s17, s16')
    a('s_waitcnt lgkmcnt(0)')
    srd(a, 8, 4, SZ_X1, WS_X1)
    a('s_mov_b32 m0, s16')
    srd(a, 20, 4, SZ_WT, WS_WT)
    a('buffer_load_dwordx4 v4, s[8:11], s14 offen lds')
    a('s_add_u32 m0, s16, 1024')
    srd(a, 24, 4, SZ_Y1, WS_Y1)
    a('buffer_load_dwordx4 v4, s[8:11], s15 offen lds')
    W = 112
    a('buffer_load_dwordx4 %s, v5, s[20:23], s17 offen' % vr(W, 4))
    a('buffer_load_dwordx4 %s, v5, s[20:23], s17 offen offset:1024' % vr(W + 4, 4))
    npf = 0
    for t in pf_for(2):
        npf += prefetch(a, t, 44 if t == 'a' else 46, 48, 52, 1, 193, 192)
    st()
    TAB = 16384
    T = 176
    a('v_cvt_f32_u32 v%d, v1' % T)
    a('v_mul_f32 v%d, %s, v%d' % (T, fl(1.0 / 64), T))
    a('v_cos_f32 v%d, v%d' % (T + 1, T))
    a('v_sin_f32 v%d, v%d' % (T + 2, T))
    a('s_lshl_b32 s18, s3, 9')
    a('s_add_u32 s18, s18, %d' % TAB)
    a('v_mov_b32 v6, s18')
    a('v_cvt_pk_bf16_f32 v%d, v%d, v%d' % (T + 1, T + 1, T + 2))
    a('v_lshl_add_u32 v%d, v1, 2, v6' % (T + 2))
    a('ds_write2st64_b32 v%d, v%d, v%d offset0:0 offset1:1' % (T + 2, T + 1, T + 1))
    F64, F32 = 16, 48
    a('s_mov_b32 s19, 0xff')
    a('s_lshl_b32 s28, s3, 4')
    a('v_add_u32 v7, s28, v3')
    a('v_lshlrev_b32 v8, 2, v7')
    a('v_lshlrev_b32 v9, 2, v2')
    a('v_mul_u32_u24 v10, v9, v8')
    for ks in range(2):
        for rr in range(4):
            t = T + 4 + ks * 4 + rr
            a('v_mad_u32_u24 v%d, v8, %d, v10' % (t, 16 * ks + rr))
            a('v_and_or_b32 v%d, v%d, s19, v6' % (t, t))
    a('v_lshlrev_b32 v11, 3, v3')
    a('v_mul_u32_u24 v12, v9, v11')
    for rr in range(4):
        t = T + 12 + rr
        a('v_mad_u32_u24 v%d, v11, %d, v12' % (t, rr))
        a('v_and_or_b32 v%d, v%d, s19, v6' % (t, t))
    for ks in range(2):
        for rr in range(4):
            t = T + 4 + ks * 4 + rr
            a('ds_read_b32 v%d, v%d' % (F64 + ks * 8 + rr, t))
            a('ds_read_b32 v%d, v%d offset:64' % (F64 + ks * 8 + 4 + rr, t))
    for rr in range(4):
        t = T + 12 + rr
        a('ds_read_b32 v%d, v%d' % (F32 + rr, t))
        a('ds_read_b32 v%d, v%d offset:64' % (F32 + 4 + rr, t))
    T1C, T1S, T2C, T2S = 80, 88, 96, 104
    a('v_cvt_f32_u32 v%d, v7' % T)
    a('v_mul_f32 v%d, %s, v%d' % (T, fl(1.0 / 2048), T))
    a('v_cvt_f32_u32 v%d, v9' % (T + 1))
    for mt in range(2):
        for r in range(4):
            q = mt * 4 + r
            a('v_add_f32 v%d, %s, v%d' % (T + 2, fl(float(16 * mt + r)), T + 1))
            a('v_mul_f32 v%d, v%d, v%d' % (T + 2, T + 2, T))
            a('v_cos_f32 v%d, v%d' % (T1C + q, T + 2))
            a('v_sin_f32 v%d, v%d' % (T1S + q, T + 2))
    a('v_add_u32 v13, s28, v9')
    a('v_cvt_f32_u32 v%d, v13' % (T + 1))
    a('v_cvt_f32_u32 v%d, v3' % T)
    a('v_mul_f32 v%d, %s, v%d' % (T, fl(1.0 / 2048), T))
    a('v_add_f32 v%d, %s, v%d' % (T + 3, fl(16.0 / 2048), T))
    for bt in range(2):
        for r in range(4):
            q = bt * 4 + r
            a('v_add_f32 v%d, %s, v%d' % (T + 2, fl(float(r)), T + 1))
            a('v_mul_f32 v%d, v%d, v%d' % (T + 2, T + 2, T + 3 * bt))
            a('v_cos_f32 v%d, v%d' % (T2C + q, T + 2))
            a('v_sin_f32 v%d, v%d' % (T2S + q, T + 2))
    a('v_and_b32 v14, 1, v1')
    a('v_mul_u32_u24 v14, 0x8000, v14')
    a('v_lshl_or_b32 v14, v14, 16, v14')
    a('s_waitcnt lgkmcnt(0)')
    for q in range(16):
        a('v_xor_b32 v%d, v%d, v14' % (F64 + 16 + q, F64 + q))
    for q in range(8):
        a('v_xor_b32 v%d, v%d, v14' % (F32 + 8 + q, F32 + q))
    for K in range(2):
        for q in range(8):
            src = F32 + K * 8 + q
            dst = F32 + 16 + K * 8 + q
            if (q & 1):
                a('v_xor_b32 v%d, 0x80008000, v%d' % (dst, src))
            else:
                a('v_mov_b32 v%d, v%d' % (dst, src))
    a('v_lshlrev_b32 v15, 8, v3')
    a('v_lshl_add_u32 v15, v2, 4, v15')
    a('s_mul_i32 s29, s12, 8320')
    a('s_lshl_b32 s30, s3, 6')
    a('s_add_u32 s29, s29, s30')
    a('s_add_u32 s30, s29, 4096')
    FR = 120
    D = 152
    P = 168
    st()
    a('s_waitcnt vmcnt(%d)' % (2 + npf))
    st()
    a('s_barrier')
    st()
    for ks in range(4):
        for mt in range(2):
            a('ds_read_b128 %s, v5 offset:%d' % (vr(FR + (ks * 2 + mt) * 4, 4), (ks * 2 + mt) * 1024))
    for ks in range(4):
        a('s_waitcnt lgkmcnt(%d)' % (6 - 2 * ks))
        for mt in range(2):
            for ro in range(2):
                d = D + (mt * 2 + ro) * 4
                c = '0' if ks == 0 else vr(d, 4)
                a('v_mfma_f32_16x16x32_bf16 %s, %s, %s, %s' % (vr(d, 4), vr(FR + (ks * 2 + mt) * 4, 4), vr(F64 + ks * 8 + ro * 4, 4), c))

    def twpack(TC, TS):
        for mt in range(2):
            dre = D + (mt * 2) * 4
            dim = dre + 4
            for r in range(4):
                cmul_tw(a, dre + r, dim + r, TC + mt * 4 + r, TS + mt * 4 + r, T + 2 * r, T + 2 * r + 1, -1)
            for r in range(4):
                a('v_cvt_pk_bf16_f32 v%d, v%d, v%d' % (P + mt * 4 + r, T + 2 * r, T + 2 * r + 1))
    twpack(T1C, T1S)
    for mt in range(2):
        for et in range(2):
            for ro in range(2):
                d = D + (et * 2 + ro) * 4
                c = '0' if mt == 0 else vr(d, 4)
                a('v_mfma_f32_16x16x32_bf16 %s, %s, %s, %s' % (vr(d, 4), vr(F32 + (et * 2 + mt) * 8 + ro * 4, 4), vr(P + mt * 4, 4), c))
    st()
    a('s_waitcnt vmcnt(%d)' % npf)
    st()
    for t in range(2):
        for r in range(4):
            wv = W + t * 4 + r
            xr, xi = D + (t * 2) * 4 + r, D + (t * 2 + 1) * 4 + r
            a('v_lshlrev_b32 v%d, 16, v%d' % (T + 8, wv))
            a('v_and_b32 v%d, 0xffff0000, v%d' % (T + 9, wv))
            cmul_tw(a, xr, xi, T + 8, T + 9, T + 10, T + 11, +1)
            a('v_cvt_pk_bf16_f32 v%d, v%d, -v%d' % (P + t * 4 + r, T + 10, T + 11))
    for t in range(2):
        for bt in range(2):
            for ro in range(2):
                d = D + (bt * 2 + ro) * 4
                c = '0' if t == 0 else vr(d, 4)
                a('v_mfma_f32_16x16x32_bf16 %s, %s, %s, %s' % (vr(d, 4), vr(P + t * 4, 4), vr(F32 + (bt * 2 + t) * 8 + ro * 4, 4), c))
    twpack(T2C, T2S)
    EX = 8192
    a('s_add_u32 s31, s16, %d' % EX)
    a('v_add_u32 v4, s31, v5')
    a('ds_write_b128 v4, %s' % vr(P, 4))
    a('ds_write_b128 v4, %s offset:1024' % vr(P + 4, 4))
    a('s_waitcnt lgkmcnt(0)')
    st()
    a('s_barrier')
    st()
    for ks in range(4):
        for nt in range(2):
            a('ds_read_b128 %s, v5 offset:%d' % (vr(FR + (ks * 2 + nt) * 4, 4), EX + (ks * 2 + nt) * 1024))
    for ks in range(4):
        a('s_waitcnt lgkmcnt(%d)' % (6 - 2 * ks))
        for nt in range(2):
            for ro in range(2):
                d = D + (nt * 2 + ro) * 4
                c = '0' if ks == 0 else vr(d, 4)
                a('v_mfma_f32_16x16x32_bf16 %s, %s, %s, %s' % (vr(d, 4), vr(F64 + ks * 8 + ro * 4, 4), vr(FR + (ks * 2 + nt) * 4, 4), c))
    for nt in range(2):
        dre = D + nt * 8
        for r in range(4):
            a('v_cvt_pk_bf16_f32 v%d, v%d, -v%d' % (P + nt * 4 + r, dre + r, dre + 4 + r))
        a('buffer_store_dwordx4 %s, v15, s[24:27], s%d offen' % (vr(P + nt * 4, 4), 29 + nt))
    st()
    st.flush()
    a.label('K2_END')
    a('s_endpgm')
    return dict(name=L, asm=a, grid=257, lds=16384 + 2048, vgpr=196, sgpr=56)

def gen_k3():
    a = Asm()
    L = 'k3_kernel'
    a.label(L)
    a('s_cmp_ge_u32 s2, 256')
    a('s_cbranch_scc1 K3_END')
    st = Stamper(a, 3)
    st()
    a('s_load_dwordx2 s[4:5], s[0:1], 80')
    a('s_load_dwordx2 s[6:7], s[0:1], 0')
    for t in pf_for(3):
        a('s_load_dwordx2 s[%d:%d], s[0:1], %d' % ((44, 45, 32) if t == 'a' else (46, 47, 48)))
    a('v_and_b32 v1, 63, v0')
    a('v_lshrrev_b32 v2, 6, v0')
    a('s_and_b32 s12, s2, 7')
    a('s_lshr_b32 s13, s2, 3')
    a('v_readfirstlane_b32 s3, v2')
    a('s_lshl_b32 s12, s12, 2')
    a('s_lshr_b32 s14, s13, 3')
    a('s_add_u32 s12, s12, s14')
    a('s_and_b32 s13, s13, 7')
    a('s_lshl_b32 s14, s12, 8')
    a('s_lshl_b32 s15, s13, 5')
    a('s_add_u32 s14, s14, s15')
    a('v_mul_u32_u24 v4, 8320, v0')
    a('s_lshl_b32 s15, s13, 8')
    a('s_lshl_b32 s16, s3, 6')
    a('s_add_u32 s15, s15, s16')
    a('s_add_u32 s15, s15, s12')
    a('s_lshl_b32 s15, s15, 10')
    a('s_add_u32 s16, s15, 32768')
    a('v_lshrrev_b32 v2, 4, v1')
    a('v_and_b32 v3, 15, v1')
    a('v_lshlrev_b32 v5, 5, v3')
    a('v_lshl_add_u32 v5, v2, 3, v5')
    a('s_lshl_b32 s17, s3, 3')
    a('s_add_u32 s17, s17, s14')
    a('s_waitcnt lgkmcnt(0)')
    srd(a, 8, 4, SZ_Y1, WS_Y1)
    a('buffer_load_dwordx4 v[8:11], v4, s[8:11], s14 offen')
    a('buffer_load_dwordx4 v[12:15], v4, s[8:11], s14 offen offset:16')
    srd(a, 20, 6, 2048 * 1024)
    XR = 16
    for j in range(2):
        for t in range(2):
            a('buffer_load_dwordx2 %s, v5, s[20:23], s%d offen offset:%d' % (vr(XR + (j * 2 + t) * 2, 2), 15 + j, t * 512))
    a('s_add_u32 s24, s4, 0x%x' % WS_Y1)
    a('s_addc_u32 s25, s5, 0')
    a('s_add_u32 s24, s24, s17')
    a('s_addc_u32 s25, s25, 0')
    a('s_load_dwordx2 s[26:27], s[24:25], 0')
    a('s_add_u32 s42, s24, 0x%x' % (256 * 8320))
    a('s_addc_u32 s43, s25, 0')
    a('s_load_dwordx2 s[28:29], s[42:43], 0')
    npf = 0
    for t in pf_for(3):
        npf += prefetch(a, t, 44 if t == 'a' else 46, 48, 52, 1, 129, 128)
    srd(a, 32, 4, SZ_H, WS_H)
    srd(a, 36, 4, SZ_L2, WS_L2)
    st()
    T = 96
    FG, FN = 6, 7
    a('v_cvt_f32_u32 v%d, v2' % FG)
    a('v_cvt_f32_u32 v%d, v3' % FN)
    B1 = 24
    a('v_mul_f32 v%d, %s, v%d' % (T, fl(-1.0 / 16), FN))
    a('v_add_f32 v%d, v%d, v%d' % (T + 1, FG, FG))
    a('v_add_f32 v%d, 1.0, v%d' % (T + 2, T + 1))
    a('v_mul_f32 v%d, v%d, v%d' % (T + 3, T, T + 1))
    a('v_mul_f32 v%d, v%d, v%d' % (T + 4, T, T + 2))
    a('v_add_f32 v%d, %s, v%d' % (T + 5, fl(0.25), T + 3))
    a('v_add_f32 v%d, %s, v%d' % (T + 6, fl(0.25), T + 4))
    for q in range(4):
        a('v_cos_f32 v%d, v%d' % (T + 8 + q, T + 3 + q))
        a('v_sin_f32 v%d, v%d' % (T + 12 + q, T + 3 + q))
    for q in range(4):
        a('v_cvt_pk_bf16_f32 v%d, v%d, v%d' % (B1 + q, T + 8 + q, T + 12 + q))
    TC, TS = 28, 36
    a('v_mul_f32 v%d, %s, v%d' % (T, fl(1.0 / 512), FN))
    a('v_mul_f32 v%d, 4.0, v%d' % (T + 1, FG))
    for hf in range(2):
        for r in range(4):
            q = hf * 4 + r
            a('v_add_f32 v%d, %s, v%d' % (T + 2, fl(float(16 * hf + r)), T + 1))
            a('v_mul_f32 v%d, v%d, v%d' % (T + 2, T + 2, T))
            a('v_cos_f32 v%d, v%d' % (TC + q, T + 2))
            a('v_sin_f32 v%d, v%d' % (TS + q, T + 2))
    B3 = 44
    a('v_mul_f32 v%d, %s, v%d' % (T, fl(1.0 / 32), FN))
    for rr in range(4):
        a('v_add_f32 v%d, %s, v%d' % (T + 2, fl(float(rr)), T + 1))
        a('v_mul_f32 v%d, v%d, v%d' % (T + 2, T + 2, T))
        a('v_cos_f32 v%d, v%d' % (T + 3, T + 2))
        a('v_sin_f32 v%d, v%d' % (T + 4, T + 2))
        a('v_cvt_pk_bf16_f32 v%d, v%d, -v%d' % (B3 + rr, T + 3, T + 4))
    a('v_and_b32 v%d, 1, v1' % (T + 5))
    a('v_mul_u32_u24 v%d, 0x8000, v%d' % (T + 5, T + 5))
    a('v_lshl_or_b32 v%d, v%d, 16, v%d' % (T + 5, T + 5, T + 5))
    for rr in range(4):
        a('v_xor_b32 v%d, v%d, v%d' % (B3 + 4 + rr, B3 + rr, T + 5))
    for hf in range(2):
        for rr in range(4):
            src, dst = B3 + hf * 4 + rr, B3 + 8 + hf * 4 + rr
            if rr & 1:
                a('v_xor_b32 v%d, 0x80008000, v%d' % (dst, src))
            else:
                a('v_mov_b32 v%d, v%d' % (dst, src))
    a('v_lshrrev_b32 v60, 6, v0')
    a('v_mul_u32_u24 v60, 80, v60')
    a('v_add_u32 v60, v60, v1')
    a('v_lshlrev_b32 v60, 2, v60')
    a('v_mul_u32_u24 v61, 80, v2')
    a('v_add_u32 v61, v61, v3')
    a('v_lshlrev_b32 v61, 2, v61')
    a('s_mul_i32 s18, s3, 2560')
    a('v_add_u32 v61, s18, v61')
    R2 = 10240
    a('s_mul_i32 s19, s3, 2176')
    a('s_add_u32 s19, s19, %d' % R2)
    a('v_add_u32 v62, s19, v5')
    a('v_lshrrev_b32 v63, 2, v3')
    a('v_mul_u32_u24 v63, 1088, v63')
    a('v_lshl_add_u32 v63, v2, 5, v63')
    a('v_and_b32 v%d, 3, v1' % T)
    a('v_lshl_add_u32 v63, v%d, 3, v63' % T)
    a('s_lshl_b32 s30, s3, 8')
    a('s_add_u32 s30, s30, %d' % R2)
    a('v_add_u32 v63, s30, v63')
    st()
    a('s_waitcnt vmcnt(%d)' % (4 + npf))
    st()
    for q in range(4):
        a('ds_write2st64_b32 v60, v%d, v%d offset0:%d offset1:%d' % (8 + 2 * q, 9 + 2 * q, 10 * q, 10 * q + 5))
    a('s_waitcnt lgkmcnt(0)')
    a('s_barrier')
    st()
    AF = 64
    for j in range(2):
        for hf in range(2):
            a('ds_read2_b32 %s, v61 offset0:%d offset1:%d' % (vr(AF + (j * 2 + hf) * 2, 2), 16 * hf, 16 * hf + 32) if j == 0 else
              'ds_read2_b32 %s, v%d offset0:%d offset1:%d' % (vr(AF + (j * 2 + hf) * 2, 2), T + 1, 16 * hf, 16 * hf + 32))
        if j == 0:
            a('v_add_u32 v%d, 1280, v61' % (T + 1))
    for j in range(2):
        a('s_lshl_b32 s%d, s%d, 16' % (26 + j, 26 + j))
        a('s_lshl_b32 s%d, s%d, 16' % (28 + j, 28 + j))
    CE, CO = 8, 10
    for j in range(2):
        a('v_mov_b32 v%d, s%d' % (T + 2 + j, 28 + j))
    for j in range(2):
        a('v_subrev_f32 v%d, s%d, v%d' % (CE + j, 26 + j, T + 2 + j))
        a('v_sub_f32 v%d, -v%d, s%d' .replace('v_sub_f32', 'v_sub_f32_e64') % (CO + j, T + 2 + j, 26 + j))
    for j in range(2):
        a('v_mul_f32 v%d, %s, v%d' % (CE + j, fl(2.0 ** -20), CE + j))
        a('v_mul_f32 v%d, %s, v%d' % (CO + j, fl(2.0 ** -20), CO + j))
    D1 = 72
    for j in range(2):
        a('s_waitcnt lgkmcnt(%d)' % (2 - 2 * j))
        for hf in range(2):
            for ro in range(2):
                d = D1 + ((j * 2 + hf) * 2 + ro) * 4
                a('v_mfma_f32_16x16x16_bf16 %s, %s, %s, 0' % (vr(d, 4), vr(AF + (j * 2 + hf) * 2, 2), vr(B1 + ro * 2, 2)))
    P = 104
    T2 = 120
    for j in range(2):
        for hf in range(2):
            dre = D1 + ((j * 2 + hf) * 2) * 4
            dim = dre + 4
            for r in range(4):
                cmul_tw(a, dre + r, dim + r, TC + hf * 4 + r, TS + hf * 4 + r, T2 + 2 * r, T2 + 2 * r + 1, +1)
            for r in range(4):
                a('v_cvt_pk_bf16_f32 v%d, v%d, v%d' % (P + (j * 2 + hf) * 4 + r, T2 + 2 * r, T2 + 2 * r + 1))
    D3 = 72
    for hf in range(2):
        for j in range(2):
            for t in range(2):
                d = D3 + (j * 2 + t) * 4
                c = '0' if hf == 0 else vr(d, 4)
                a('v_mfma_f32_16x16x32_bf16 %s, %s, %s, %s' % (vr(d, 4), vr(P + (j * 2 + hf) * 4, 4), vr(B3 + t * 8 + hf * 4, 4), c))
    X = [[D3 + j * 8 + k for k in range(8)] for j in range(2)]
    a('v_mov_b32 v12, %s' % fl(2.0 ** -19))
    for j in range(2):
        for k in range(8):
            a('v_fma_f32 v%d, v%d, v12, v%d' % (X[j][k], X[j][k], (CE if k % 2 == 0 else CO) + j))
    st()
    a('s_waitcnt vmcnt(%d)' % npf)
    st()
    HP = [[88 + j * 4 + q for q in range(4)] for j in range(2)]
    for j in range(2):
        for q in range(4):
            k = 2 * q
            a('v_cvt_pk_bf16_f32 v%d, v%d, v%d' % (T2, X[j][k], X[j][k + 1]))
            xv = XR + j * 4 + q
            a('v_lshlrev_b32 v%d, 16, v%d' % (T2 + 1, T2))
            a('v_and_b32 v%d, 0xffff0000, v%d' % (T2 + 2, T2))
            a('v_lshlrev_b32 v%d, 16, v%d' % (T2 + 3, xv))
            a('v_and_b32 v%d, 0xffff0000, v%d' % (T2 + 4, xv))
            a('v_add_f32 v%d, v%d, v%d' % (T2 + 1, T2 + 1, T2 + 3))
            a('v_add_f32 v%d, v%d, v%d' % (T2 + 2, T2 + 2, T2 + 4))
            a('v_cvt_pk_bf16_f32 v%d, v%d, v%d' % (HP[j][q], T2 + 1, T2 + 2))
            a('v_lshlrev_b32 v%d, 16, v%d' % (X[j][k], HP[j][q]))
            a('v_and_b32 v%d, 0xffff0000, v%d' % (X[j][k + 1], HP[j][q]))
    for j in range(2):
        for t in range(2):
            a('buffer_store_dwordx2 %s, v5, s[32:35], s%d offen offset:%d' % (vr(HP[j][2 * t], 2), 15 + j, t * 512))
    PK = [[104 + j * 4 + q for q in range(4)] for j in range(2)]
    ln_rows(a, X, 112, 40, 2, out_pk=PK, keep_f32=True)
    ln_rows(a, X, 112, 40, 2, out_pk=PK)
    st()
    for j in range(2):
        for t in range(2):
            a('ds_write_b64 v62, %s offset:%d' % (vr(PK[j][2 * t], 2), j * 1088 + t * 512))
    a('s_waitcnt lgkmcnt(0)')
    a('s_barrier')
    O = 72
    for half in range(2):
        for q in range(2):
            a('ds_read_b64_tr_b16 %s, v63 offset:%d' % (vr(O + half * 4 + q * 2, 2), q * 4 * 1088 + half * 128))
    a('s_lshl_b32 s30, s12, 3')
    a('s_add_u32 s30, s30, s13')
    a('s_lshl_b32 s30, s30, 13')
    a('s_lshl_b32 s31, s3, 11')
    a('s_add_u32 s30, s30, s31')
    a('v_lshlrev_b32 v4, 4, v1')
    for half in range(2):
        a('s_waitcnt lgkmcnt(%d)' % (2 - 2 * half))
        a('buffer_store_dwordx4 %s, v4, s[36:39], s30 offen offset:%d' % (vr(O + half * 4, 4), half * 1024))
    st()
    st.flush()
    a.label('K3_END')
    a('s_endpgm')
    return dict(name=L, asm=a, grid=256, lds=10240 + 8 * 1088, vgpr=132, sgpr=56)

class VM:
    def __init__(self, a):
        self.a = a
        self.q = []
        self.last = None

    def issue(self, text, tag):
        self.a(text)
        self.q.append(tag)
        assert len(self.q) <= 63 or True

    def wait(self, tags):
        idx = max([i for i, t in enumerate(self.q) if t in tags], default=-1)
        if idx < 0:
            return
        n = len(self.q) - 1 - idx
        assert n <= 63, n
        self.a('s_waitcnt vmcnt(%d)' % n)
        self.q = self.q[idx + 1:]


def gen_k4(DEPTH=8):
    a = Asm()
    L = 'k4_kernel'
    a.label(L)
    a('s_cmp_ge_u32 s2, 232')
    a('s_cbranch_scc1 K4_END')
    st = Stamper(a, 4)
    st()
    a('s_load_dwordx4 s[4:7], s[0:1], 32')
    a('s_load_dwordx2 s[12:13], s[0:1], 80')
    if pf_for(4):
        a('s_load_dwordx2 s[46:47], s[0:1], 48')
    a('v_and_b32 v1, 63, v0')
    a('v_lshrrev_b32 v2, 6, v0')
    a('s_and_b32 s14, s2, 7')
    a('s_lshr_b32 s15, s2, 3')
    a('v_readfirstlane_b32 s3, v2')
    a('s_lshr_b32 s16, s14, 1')
    a('s_mul_i32 s16, s16, 29')
    a('s_add_u32 s16, s16, s15')
    a('s_and_b32 s14, s14, 1')
    a('s_lshl_b32 s14, s14, 2')
    a('s_and_b32 s15, s16, 3')
    a('s_add_u32 s14, s14, s15')
    a('s_lshr_b32 s15, s16, 2')
    a('v_lshrrev_b32 v2, 4, v1')
    a('v_and_b32 v3, 15, v1')
    for m in range(3):
        a('v_add_u32 v10, %d, v1' % (64 * m))
        a('v_mul_u32_u24 v11, 171, v10')
        a('v_lshrrev_b32 v11, 10, v11')
        a('v_mul_u32_u24 v12, 6, v11')
        a('v_sub_u32 v12, v10, v12')
        a('v_bfe_u32 v13, v11, 2, 2')
        a('v_lshlrev_b32 v13, 8, v13')
        a('v_lshrrev_b32 v14, 4, v11')
        a('v_lshl_add_u32 v13, v14, 7, v13')
        a('v_and_b32 v14, 3, v11')
        a('v_lshl_add_u32 v13, v14, 5, v13')
        a('v_mul_u32_u24 v13, 2752, v13')
        a('v_lshl_add_u32 v%d, v12, 4, v13' % (4 + m))
        if m:
            a('v_subrev_u32 v%d, %d, v%d' % (4 + m, 1024 * m, 4 + m))
    a('v_lshlrev_b32 v7, 13, v2')
    a('v_lshl_add_u32 v7, v3, 4, v7')
    a('v_lshrrev_b32 v10, 2, v3')
    a('v_lshl_add_u32 v10, v2, 2, v10')
    a('v_mul_u32_u24 v10, 96, v10')
    a('v_and_b32 v11, 3, v1')
    a('v_lshl_add_u32 v8, v11, 3, v10')
    a('s_mul_i32 s17, s3, %d' % (DEPTH * 3072))
    a('v_add_u32 v8, s17, v8')
    a('s_mul_i32 s18, s3, %d' % (8 * 2752))
    a('s_mul_i32 s19, s15, 96')
    a('s_add_u32 s18, s18, s19')
    a('s_lshl_b32 s19, s3, 19')
    a('s_lshl_b32 s20, s14, 10')
    a('s_add_u32 s19, s19, s20')
    a('s_mul_i32 s21, s15, 96')
    a('v_lshlrev_b32 v9, 3, v2')
    a('s_waitcnt lgkmcnt(0)')
    srd(a, 8, 4, 2048 * 2752)
    srd(a, 24, 12, SZ_L2, WS_L2)
    srd(a, 28, 6, 2752)
    srd(a, 32, 12, SZ_U, WS_U)
    st()
    vm = VM(a)
    BI = 10
    ACC = 16
    AF = 64
    BR = 88

    ROT = os.environ.get('ROT', '1') == '1'
    if ROT:
        a('s_and_b32 s42, s15, 7')

    def stage(k):
        slot = k % DEPTH
        a('s_add_u32 m0, s17, %d' % (slot * 3072))
        if ROT:
            a('s_add_u32 s43, s42, %d' % (k >> 1))
            a('s_and_b32 s43, s43, 7')
            a('s_mul_i32 s22, s43, 2752')
            a('s_lshl_b32 s23, s43, 16')
            a('s_add_u32 s22, s22, s18')
            a('s_add_u32 s23, s23, s19')
            if k & 1:
                a('s_add_u32 s22, s22, %d' % (1024 * 2752))
                a('s_add_u32 s23, s23, 32768')
        else:
            a('s_add_u32 s22, s18, %d' % (((k & 1) * 1024 + (k >> 1)) * 2752))
            a('s_add_u32 s23, s19, %d' % (k * 32768))
        for m in range(3):
            vm.issue('buffer_load_dwordx4 v%d, s[8:11], s22 offen offset:%d lds' % (4 + m, 1024 * m), ('A', k))
        for nt in range(4):
            vm.issue('buffer_load_dwordx4 %s, v7, s[24:27], s23 offen offset:%d' % (vr(BR + slot * 16 + nt * 4, 4), nt * 256), ('B', k))

    def aread(k):
        slot = k % DEPTH
        for mt in range(3):
            for q in range(2):
                a('ds_read_b64_tr_b16 %s, v8 offset:%d' % (vr(AF + (k & 1) * 12 + mt * 4 + q * 2, 2), slot * 3072 + q * 16 * 96 + mt * 32))

    for k in range(DEPTH):
        stage(k)
    for mt in range(3):
        vm.issue('buffer_load_dwordx2 %s, v9, s[28:31], s21 offen offset:%d' % (vr(BI + 2 * mt, 2), 32 * mt), ('bias',))
    NK = 16
    st()
    vm.wait({('A', 0)})
    st()
    aread(0)
    for k in range(NK):
        if k + 1 < NK:
            vm.wait({('A', k + 1), ('B', k)})
            aread(k + 1)
            a('s_waitcnt lgkmcnt(6)')
        else:
            vm.wait({('B', k)})
            a('s_waitcnt lgkmcnt(0)')
        slot = k % DEPTH
        for mt in range(3):
            for nt in range(4):
                d = ACC + (mt * 4 + nt) * 4
                c = '0' if k == 0 else vr(d, 4)
                a('v_mfma_f32_16x16x32_bf16 %s, %s, %s, %s' % (vr(d, 4), vr(AF + (k & 1) * 12 + mt * 4, 4), vr(BR + slot * 16 + nt * 4, 4), c))
        if k + DEPTH < NK:
            stage(k + DEPTH)
        if k in (0, 3, 7, 11, 15):
            st()
    if pf_for(4):
        prefetch(a, 'b', 46, 48, 52, 1, 9, 8, issue=lambda t: vm.issue(t, ('pf',)), nwaves=116)
    a('s_barrier')
    a('v_lshlrev_b32 v4, 4, v1')
    a('s_mul_i32 s22, s3, 3072')
    a('v_add_u32 v5, s22, v4')
    for nt in range(4):
        for mt in range(3):
            a('ds_write_b128 v5, %s offset:%d' % (vr(ACC + (mt * 4 + nt) * 4, 4), nt * 12288 + mt * 1024))
    a('s_mul_i32 s22, s3, 12288')
    a('v_add_u32 v6, s22, v4')
    a('s_waitcnt lgkmcnt(0)')
    a('s_barrier')
    st()
    R = 88
    for src in range(4):
        for mt in range(3):
            a('ds_read_b128 %s, v6 offset:%d' % (vr(R + (src * 3 + mt) * 4, 4), src * 3072 + mt * 1024))
    a('s_lshl_b32 s22, s14, 2')
    a('s_add_u32 s22, s22, s3')
    a('s_mul_i32 s22, s22, %d' % (43 * 1024))
    a('s_mul_i32 s23, s15, 3')
    for mt in range(3):
        a('s_add_u32 s36, s23, %d' % mt)
        a('s_lshr_b32 s37, s36, 1')
        a('s_lshl_b32 s37, s37, 10')
        a('s_and_b32 s36, s36, 1')
        a('s_lshl_b32 s36, s36, 3')
        a('s_add_u32 s37, s37, s36')
        a('s_add_u32 s%d, s37, s22' % (38 + mt))
    a('s_waitcnt lgkmcnt(0)')
    vm.wait({('bias',)})
    S = 16
    for mt in range(3):
        for r in range(4):
            x0, x1, x2, x3 = [R + (src * 3 + mt) * 4 + r for src in range(4)]
            a('v_add_f32 v%d, v%d, v%d' % (x0, x0, x1))
            a('v_add_f32 v%d, v%d, v%d' % (x2, x2, x3))
            a('v_add_f32 v%d, v%d, v%d' % (S + mt * 4 + r, x0, x2))
    T = 40
    C1 = -2.0 * 1.4426950408889634 * 0.7978845608028654
    C2 = C1 * 0.044715
    a('v_mov_b32 v60, %s' % fl(C1))
    for mt in range(3):
        u = [S + mt * 4 + r for r in range(4)]
        a('v_cvt_pk_bf16_f32 v%d, v%d, v%d' % (T, u[0], u[1]))
        a('v_cvt_pk_bf16_f32 v%d, v%d, v%d' % (T + 1, u[2], u[3]))
        for h in range(2):
            a('v_lshlrev_b32 v%d, 16, v%d' % (u[2 * h], T + h))
            a('v_and_b32 v%d, 0xffff0000, v%d' % (u[2 * h + 1], T + h))
            a('v_lshlrev_b32 v%d, 16, v%d' % (T + 2, BI + 2 * mt + h))
            a('v_and_b32 v%d, 0xffff0000, v%d' % (T + 3, BI + 2 * mt + h))
            a('v_add_f32 v%d, v%d, v%d' % (u[2 * h], u[2 * h], T + 2))
            a('v_add_f32 v%d, v%d, v%d' % (u[2 * h + 1], u[2 * h + 1], T + 3))
        a('v_cvt_pk_bf16_f32 v%d, v%d, v%d' % (T, u[0], u[1]))
        a('v_cvt_pk_bf16_f32 v%d, v%d, v%d' % (T + 1, u[2], u[3]))
        for h in range(2):
            a('v_lshlrev_b32 v%d, 16, v%d' % (u[2 * h], T + h))
            a('v_and_b32 v%d, 0xffff0000, v%d' % (u[2 * h + 1], T + h))
        for r in range(4):
            a('v_mul_f32 v%d, v%d, v%d' % (T + 4 + r, u[r], u[r]))
        for r in range(4):
            a('v_fmamk_f32 v%d, v%d, %s, v60' % (T + 4 + r, T + 4 + r, fl(C2)))
        for r in range(4):
            a('v_mul_f32 v%d, v%d, v%d' % (T + 4 + r, T + 4 + r, u[r]))
        for r in range(4):
            a('v_exp_f32 v%d, v%d' % (T + 4 + r, T + 4 + r))
        for r in range(4):
            a('v_add_f32 v%d, 1.0, v%d' % (T + 4 + r, T + 4 + r))
        for r in range(4):
            a('v_rcp_f32 v%d, v%d' % (T + 4 + r, T + 4 + r))
        for r in range(4):
            a('v_mul_f32 v%d, v%d, v%d' % (u[r], u[r], T + 4 + r))
        o = 48 + 2 * mt
        a('v_cvt_pk_bf16_f32 v%d, v%d, v%d' % (o, u[0], u[1]))
        a('v_cvt_pk_bf16_f32 v%d, v%d, v%d' % (o + 1, u[2], u[3]))
        if mt == 2:
            a('s_cmp_eq_u32 s15, 28')
            a('s_cbranch_scc1 K4_FL')
        a('buffer_store_dwordx2 %s, v4, s[32:35], s%d offen' % (vr(o, 2), 38 + mt))
    a.label('K4_FL')
    st.flush()
    a.label('K4_END')
    a('s_endpgm')
    return dict(name=L, asm=a, grid=232, lds=4 * DEPTH * 3072, vgpr=88 + DEPTH * 16, sgpr=56)


def gen_k5(DEPTH=7):
    a = Asm()
    L = NAME + '_kernel'
    a.label(L)
    a('s_cmp_ge_u32 s2, 256')
    a('s_cbranch_scc1 K5_END')
    st = Stamper(a, 5)
    st()
    a('s_load_dwordx4 s[4:7], s[0:1], 48')
    a('s_load_dwordx2 s[12:13], s[0:1], 80')
    a('s_load_dwordx2 s[40:41], s[0:1], 64')
    a('v_and_b32 v1, 63, v0')
    a('v_lshrrev_b32 v2, 6, v0')
    a('s_and_b32 s14, s2, 7')
    a('s_lshr_b32 s15, s2, 3')
    a('v_readfirstlane_b32 s3, v2')
    a('s_and_b32 s16, s14, 1')
    a('s_lshl_b32 s16, s16, 2')
    a('s_and_b32 s17, s15, 3')
    a('s_add_u32 s16, s16, s17')
    a('s_lshr_b32 s14, s14, 1')
    a('s_lshl_b32 s14, s14, 3')
    a('s_lshr_b32 s15, s15, 2')
    a('s_add_u32 s15, s15, s14')
    a('v_lshrrev_b32 v2, 4, v1')
    a('v_and_b32 v3, 15, v1')
    a('v_lshrrev_b32 v10, 3, v1')
    a('v_bfe_u32 v11, v10, 1, 2')
    a('v_lshlrev_b32 v11, 1, v11')
    a('v_and_b32 v12, 7, v1')
    a('v_xor_b32 v11, v11, v12')
    a('v_lshlrev_b32 v11, 4, v11')
    a('v_lshl_add_u32 v4, v10, 12, v11')
    for m in range(1, 4):
        a('v_add_u32 v%d, %d, v4' % (4 + m, m * (32768 - 1024)))
    a('v_lshlrev_b32 v8, 4, v1')
    a('v_lshrrev_b32 v10, 2, v3')
    a('v_lshl_add_u32 v11, v2, 2, v10')
    a('v_bfe_u32 v9, v11, 1, 2')
    a('v_lshlrev_b32 v11, 7, v11')
    a('v_lshl_add_u32 v11, v9, 5, v11')
    a('v_and_b32 v10, 3, v1')
    a('v_lshl_add_u32 v11, v10, 3, v11')
    a('s_mul_i32 s18, s3, %d' % (DEPTH * 4096))
    a('v_add_u32 v12, s18, v11')
    for nt in range(1, 4):
        a('v_xor_b32 v%d, %d, v12' % (12 + nt, nt * 32))
    a('s_mul_i32 s19, s3, %d' % (11 * 32 * 4096))
    a('s_lshl_b32 s20, s15, 7')
    a('s_add_u32 s19, s19, s20')
    a('s_mul_i32 s20, s16, %d' % (4 * 43 * 1024))
    a('s_mul_i32 s21, s3, %d' % (11 * 1024))
    a('s_add_u32 s20, s20, s21')
    a('v_lshlrev_b32 v9, 10, v3')
    a('v_lshl_add_u32 v9, v2, 5, v9')
    a('s_lshl_b32 s21, s15, 6')
    a('s_lshl_b32 s22, s3, 4')
    a('s_add_u32 s21, s21, s22')
    a('s_lshl_b32 s22, s21, 10')
    a('s_lshl_b32 s23, s16, 7')
    a('s_add_u32 s22, s22, s23')
    a('s_lshl_b32 s21, s21, 1')
    a('v_lshlrev_b32 v10, 1, v3')
    a('s_waitcnt lgkmcnt(0)')
    srd(a, 8, 4, 1376 * 4096)
    srd(a, 24, 12, SZ_U, WS_U)
    srd(a, 28, 6, 4096)
    srd(a, 32, 12, SZ_H, WS_H)
    srd(a, 36, 40, 2048 * 1024)
    st()
    vm = VM(a)
    ACC = 24
    BF = 88
    AR = 120
    HR = 16
    NK = 11

    ROT = os.environ.get('ROT', '1') == '1'
    if ROT:
        a('s_and_b32 s43, s15, 7')
        a('s_mul_i32 s43, s43, 11')
        a('s_lshr_b32 s43, s43, 3')
        a('s_cmp_eq_u32 s3, 3')
        a('s_cselect_b32 s44, 10, 99')

    def stage(k):
        slot = k % DEPTH
        a('s_add_u32 m0, s18, %d' % (slot * 4096))
        if ROT:
            if k:
                a('s_add_u32 s43, s43, 1')
                a('s_cmp_eq_u32 s43, 11')
                a('s_cselect_b32 s43, 0, s43')
            a('s_lshl_b32 s23, s43, 17')
            a('s_add_u32 s23, s23, s19')
            a('s_lshl_b32 s42, s43, 10')
            a('s_add_u32 s42, s42, s20')
            a('s_cmp_eq_u32 s43, s44')
            a('s_cselect_b32 s42, 0x7000000, s42')
        else:
            a('s_add_u32 s23, s19, %d' % (k * 32 * 4096))
            a('s_add_u32 s42, s20, %d' % (k * 1024))
            if k == 10:
                a('s_cmp_eq_u32 s3, 3')
                a('s_cselect_b32 s42, 0x7000000, s42')
        for m in range(4):
            vm.issue('buffer_load_dwordx4 v%d, s[8:11], s23 offen offset:%d lds' % (4 + m, 1024 * m), ('B', k))
        for mt in range(4):
            if mt:
                a('s_add_u32 s42, s42, %d' % (43 * 1024))
            vm.issue('buffer_load_dwordx4 %s, v8, s[24:27], s42 offen' % vr(AR + slot * 16 + mt * 4, 4), ('A', k))

    def bread(k):
        slot = k % DEPTH
        for nt in range(4):
            for q in range(2):
                a('ds_read_b64_tr_b16 %s, v%d offset:%d' % (vr(BF + (k & 1) * 16 + nt * 4 + q * 2, 2), 12 + nt, slot * 4096 + q * 2048))

    for k in range(DEPTH):
        stage(k)
    vm.issue('buffer_load_dwordx4 %s, v9, s[32:35], s22 offen' % vr(HR, 4), ('h',))
    vm.issue('buffer_load_dwordx4 %s, v9, s[32:35], s22 offen offset:16' % vr(HR + 4, 4), ('h',))
    vm.issue('buffer_load_ushort v11, v10, s[28:31], s21 offen', ('h',))
    st()
    vm.wait({('B', 0)})
    st()
    bread(0)
    for k in range(NK):
        if k + 1 < NK:
            vm.wait({('B', k + 1), ('A', k)})
            bread(k + 1)
            a('s_waitcnt lgkmcnt(8)')
        else:
            vm.wait({('A', k)})
            a('s_waitcnt lgkmcnt(0)')
        slot = k % DEPTH
        for mt in range(4):
            for nt in range(4):
                d = ACC + (mt * 4 + nt) * 4
                c = '0' if k == 0 else vr(d, 4)
                a('v_mfma_f32_16x16x32_bf16 %s, %s, %s, %s' % (vr(d, 4), vr(AR + slot * 16 + mt * 4, 4), vr(BF + (k & 1) * 16 + nt * 4, 4), c))
        if k + DEPTH < NK:
            stage(k + DEPTH)
        if k in (0, 3, 7, 10):
            st()
    a('s_barrier')
    a('s_lshl_b32 s23, s3, 14')
    a('v_add_u32 v5, s23, v8')
    for mt in range(4):
        for nt in range(4):
            a('ds_write_b128 v5, %s offset:%d' % (vr(ACC + (mt * 4 + nt) * 4, 4), (mt * 4 + nt) * 1024))
    a('v_lshlrev_b32 v6, 12, v2')
    a('v_lshl_add_u32 v6, v3, 4, v6')
    a('s_lshl_b32 s23, s3, 10')
    a('v_add_u32 v6, s23, v6')
    a('s_waitcnt lgkmcnt(0)')
    a('s_barrier')
    st()
    R = 88
    for src in range(4):
        for gg in range(4):
            a('ds_read_b128 %s, v6 offset:%d' % (vr(R + (src * 4 + gg) * 4, 4), src * 16384 + gg * 256))
    a('s_waitcnt lgkmcnt(0)')
    vm.wait({('h',)})
    S = 24
    for q in range(16):
        x0, x1, x2, x3 = [R + src * 16 + q for src in range(4)]
        a('v_add_f32 v%d, v%d, v%d' % (x0, x0, x1))
        a('v_add_f32 v%d, v%d, v%d' % (x2, x2, x3))
        a('v_add_f32 v%d, v%d, v%d' % (S + q, x0, x2))
    a('v_lshlrev_b32 v11, 16, v11')
    T = 48
    O = 40
    for p in range(8):
        u0, u1 = S + 2 * p, S + 2 * p + 1
        a('v_cvt_pk_bf16_f32 v%d, v%d, v%d' % (T, u0, u1))
        a('v_lshlrev_b32 v%d, 16, v%d' % (u0, T))
        a('v_and_b32 v%d, 0xffff0000, v%d' % (u1, T))
        a('v_add_f32 v%d, v%d, v11' % (u0, u0))
        a('v_add_f32 v%d, v%d, v11' % (u1, u1))
        a('v_cvt_pk_bf16_f32 v%d, v%d, v%d' % (T, u0, u1))
        a('v_lshlrev_b32 v%d, 16, v%d' % (u0, T))
        a('v_and_b32 v%d, 0xffff0000, v%d' % (u1, T))
        a('v_lshlrev_b32 v%d, 16, v%d' % (T + 1, HR + p))
        a('v_and_b32 v%d, 0xffff0000, v%d' % (T + 2, HR + p))
        a('v_add_f32 v%d, v%d, v%d' % (u0, u0, T + 1))
        a('v_add_f32 v%d, v%d, v%d' % (u1, u1, T + 2))
        a('v_cvt_pk_bf16_f32 v%d, v%d, v%d' % (O + p, u0, u1))
    a('buffer_store_dwordx4 %s, v9, s[36:39], s22 offen' % vr(O, 4))
    a('buffer_store_dwordx4 %s, v9, s[36:39], s22 offen offset:16' % vr(O + 4, 4))
    st.flush()
    a.label('K5_END')
    a('s_endpgm')
    return dict(name=L, asm=a, grid=256, lds=max(4 * DEPTH * 4096, 65536), vgpr=120 + DEPTH * 16, sgpr=48)


def emit(kernels, path):
    out = []
    for k in kernels:
        out.append('; @launch kernel=%s grid=(%d,1,1) block=(256,1,1) lds=%d' % (k['name'], k['grid'], k['lds']))
    out.append('.amdgcn_target "amdgcn-amd-amdhsa--gfx950"')
    out.append('.text')
    done = set()
    for k in kernels:
        if k['name'] in done:
            continue
        done.add(k['name'])
        a = k['asm']
        n = a.fix_hazards()
        errs = a.check_waits(k['name'])
        for e in errs:
            print('WAITCHK', e)
        print('%s: %d instrs, %d auto wait states' % (k['name'], len(a.ins), n))
        out.append('.globl %s' % k['name'])
        out.append('.p2align 8')
        out.append('.type %s,@function' % k['name'])
        out.append(a.text())
    out.append('CODE_END:')
    out.append('.section .rodata,"a"')
    done = set()
    for k in kernels:
        if k['name'] in done:
            continue
        done.add(k['name'])
        if STAMPS:
            k['vgpr'] = 256; k['sgpr'] = 102
        acc = (k['vgpr'] + 3) // 4 * 4
        out.append('.p2align 6')
        out.append('.amdhsa_kernel %s' % k['name'])
        out.append('  .amdhsa_next_free_vgpr %d' % (k.get('total_vgpr', k['vgpr'])))
        out.append('  .amdhsa_next_free_sgpr %d' % k['sgpr'])
        out.append('  .amdhsa_accum_offset %d' % acc)
        out.append('  .amdhsa_group_segment_fixed_size 0')
        out.append('  .amdhsa_kernarg_size 88')
        out.append('  .amdhsa_user_sgpr_count 2')
        out.append('  .amdhsa_user_sgpr_kernarg_segment_ptr 1')
        out.append('  .amdhsa_system_sgpr_workgroup_id_x 1')
        out.append('.end_amdhsa_kernel')
    open(path, 'w').write('\n'.join(out) + '\n')


def gen_dummy(i):
    a = Asm()
    L = 'dummy%d_kernel' % i
    a.label(L)
    for q in range(int(os.environ.get('DUMMYN', '0'))):
        a('v_mov_b32 v1, 0x12345678')
    a('s_endpgm')
    return dict(name=L, asm=a, grid=256, lds=0, vgpr=8, sgpr=16)


if __name__ == '__main__':
    import os
    which = sys.argv[1] if len(sys.argv) > 1 else 'all'
    STAMPS = which in ('stamp', 'rt', 'dbg')
    DBG_MODE = which == 'dbg'
    if which in ('rt', 'dbg'):
        STAMP_OP = 's_memrealtime'
        RT_ONLY = True
    path = sys.argv[2] if len(sys.argv) > 2 else 'out.s'
    ks = [gen_k1(), gen_k2(), gen_k3(), gen_k4(), gen_k5()]
    nd = int(os.environ.get('DUMMY', '0'))
    for i in range(nd):
        ks.insert(2 + (2 * i if os.environ.get('DUMMYADJ', '0') == '0' else 0), gen_dummy(0))
    emit(ks, path)
```

```python
import sys, struct
sys.path.insert(0, 'work')
from asmgen import Asm

NAME = 'sequential_preLN__spectral_gfnet__mixer_token_mlp__prompt'

WS_X1 = 0x000000; SZ_X1 = 256 * 8320
WS_WT = 0x300000; SZ_WT = 257 * 8192
WS_Y1 = 0x600000; SZ_Y1 = 257 * 8320
WS_H = 0x900000; SZ_H = 2048 * 1024
WS_L2 = 0xC00000; SZ_L2 = 2048 * 1024
WS_U = 0xF00000; SZ_U = 32 * 43 * 1024


def f2u(x):
    return struct.unpack('<I', struct.pack('<f', x))[0]


def fl(x):
    return '0x%08x' % f2u(x)


def vr(a, n=1):
    return 'v%d' % a if n == 1 else 'v[%d:%d]' % (a, a + n - 1)


def sr(a, n=1):
    return 's%d' % a if n == 1 else 's[%d:%d]' % (a, a + n - 1)


def srd(a, R, lo, size, off=0):
    if off:
        a('s_add_u32 s%d, s%d, 0x%x' % (R, lo, off))
        a('s_addc_u32 s%d, s%d, 0' % (R + 1, lo + 1))
        a('s_and_b32 s%d, s%d, 0xffff' % (R + 1, R + 1))
    else:
        a('s_mov_b32 s%d, s%d' % (R, lo))
        a('s_and_b32 s%d, s%d, 0xffff' % (R + 1, lo + 1))
    a('s_mov_b32 s%d, 0x%x' % (R + 2, size))
    a('s_mov_b32 s%d, 0x20000' % (R + 3))


STAMPS = False
DBG_MODE = False
DBG_STRIDE = 512
RT_ONLY = False
STAMP_OP = 's_memtime'
WS_DBG = 0x2000000
STAMP_S = 64


class Stamper:
    def __init__(self, a, kid):
        self.a = a
        self.n = 0
        self.kid = kid

    def __call__(self):
        if not STAMPS:
            return
        if RT_ONLY and self.n >= 1 and not getattr(self, 'final', False):
            return
        a = self.a
        a(STAMP_OP + ' s[%d:%d]' % (STAMP_S + 2 * self.n, STAMP_S + 2 * self.n + 1))
        a('s_waitcnt lgkmcnt(0)')
        self.n += 1

    def flush(self, wave_s='s3', vtmp=250):
        if not STAMPS:
            return
        a = self.a
        if not RT_ONLY:
            a('s_waitcnt vmcnt(0)')
        self.final = True
        self()
        if DBG_MODE:
            k = self.kid
            a('s_load_dwordx2 s[96:97], s[0:1], 80')
            a('s_load_dwordx2 s[94:95], s[0:1], 72')
            a('s_waitcnt lgkmcnt(0)')
            srd(a, 60, 96, 64, WS_DBG)
            a('s_lshl_b32 s98, s2, 2')
            a('s_add_u32 s98, s98, %s' % wave_s)
            a('v_mov_b32 v%d, 0x40000000' % (vtmp + 1))
            a('v_mov_b32 v%d, 0x40000000' % (vtmp + 2))
            a('s_cmp_eq_u32 s98, 0')
            a('s_cselect_b32 s99, %d, 0x40000000' % (8 * (k - 1)))
            a('v_writelane_b32 v%d, s99, 0' % (vtmp + 1))
            a('s_cmp_eq_u32 s98, 403')
            a('s_cselect_b32 s99, %d, 0x40000000' % (40 + 4 * (k - 1)))
            a('v_writelane_b32 v%d, s99, 0' % (vtmp + 2))
            a('v_mov_b32 v%d, s%d' % (vtmp - 2, STAMP_S))
            a('v_mov_b32 v%d, s%d' % (vtmp - 1, STAMP_S + 2))
            a('s_nop 1')
            a('buffer_store_dwordx2 v[%d:%d], v%d, s[60:63], 0 offen' % (vtmp - 2, vtmp - 1, vtmp + 1))
            a('buffer_store_dword v%d, v%d, s[60:63], 0 offen' % (vtmp - 1, vtmp + 2))
            if k == 5:
                a('s_cmp_eq_u32 s98, 0')
                a('s_cbranch_scc0 DBG_SKIP')
                a('s_waitcnt vmcnt(0)')
                a('v_mbcnt_lo_u32_b32 v%d, -1, 0' % (vtmp - 3))
                a('v_mbcnt_hi_u32_b32 v%d, -1, v%d' % (vtmp - 3, vtmp - 3))
                a('v_lshlrev_b32 v%d, 2, v%d' % (vtmp - 3, vtmp - 3))
                a('buffer_load_dword v%d, v%d, s[60:63], 0 offen sc1' % (vtmp - 4, vtmp - 3))
                srd(a, 56, 94, 64)
                a('s_waitcnt vmcnt(0)')
                a('buffer_store_dword v%d, v%d, s[56:59], 0 offen' % (vtmp - 4, vtmp - 3))
                a.label('DBG_SKIP')
            return
        if RT_ONLY:
            a('s_getreg_b32 s%d, hwreg(20, 0, 4)' % (STAMP_S + 2 * self.n))
            a('s_add_u32 s%d, s%d, 0x100' % (STAMP_S + 2 * self.n, STAMP_S + 2 * self.n))
            self.n += 1
        a('s_load_dwordx2 s[96:97], s[0:1], 80')
        a('s_waitcnt lgkmcnt(0)')
        srd(a, 60, 96, 0x40000, WS_DBG + self.kid * 0x40000)
        a('s_lshl_b32 s98, s2, 2')
        a('s_add_u32 s98, s98, %s' % wave_s)
        a('s_lshl_b32 s98, s98, 6')
        a('v_mov_b32 v%d, 0x40000000' % (vtmp + 1))
        for i in range(self.n):
            vt = vtmp - (i if RT_ONLY else 0)
            a('v_mov_b32 v%d, s%d' % (vt, STAMP_S + 2 * i))
            a('s_add_u32 s99, s98, %d' % (4 * i))
            a('v_writelane_b32 v%d, 0, 0' % (vtmp + 1))
            a('s_nop 1')
            a('buffer_store_dword v%d, v%d, s[60:63], s99 offen' % (vt, vtmp + 1))
            if not RT_ONLY:
                a('s_waitcnt vmcnt(0)')


import os
PF = os.environ.get('PF', '')


def prefetch(a, which, sptr, sR, sT, vlane, vtmp, vdst, swave='s3', issue=None, nwaves=128):
    issue = issue or (lambda t: a(t))
    stride = 2752 if which == 'a' else 4096
    rows = 2048 if which == 'a' else 1376
    pstep = 672 if which == 'a' else 1024
    srd(a, sR, sptr, rows * stride)
    a('v_lshrrev_b32 v%d, 3, v%d' % (vtmp, vlane))
    a('v_mul_u32_u24 v%d, %d, v%d' % (vtmp, stride, vtmp))
    a('v_and_b32 v%d, 7, v%d' % (vdst, vlane))
    a('v_lshl_add_u32 v%d, v%d, 7, v%d' % (vtmp, vdst, vtmp))
    if which == 'a':
        a('v_cmp_eq_u32 vcc, 7, v%d' % vdst)
        a('v_mov_b32 v%d, 0x40000000' % vdst)
        a('v_cndmask_b32 v%d, v%d, v%d, vcc' % (vtmp, vtmp, vdst))
    a('s_lshr_b32 s%d, s2, 3' % sT)
    a('s_lshl_b32 s%d, s%d, 2' % (sT, sT))
    a('s_add_u32 s%d, s%d, %s' % (sT, sT, swave))
    a('s_mul_i32 s%d, s%d, %d' % (sT, sT, 8 * stride))
    a('s_bfe_u32 s%d, s2, 0x20001' % (sT + 1))
    a('s_mul_i32 s%d, s%d, %d' % (sT + 1, sT + 1, pstep))
    a('s_add_u32 s%d, s%d, s%d' % (sT, sT, sT + 1))
    a('s_add_u32 s%d, s%d, %d' % (sT + 1, sT, 8 * nwaves * stride))
    issue('buffer_load_dword v%d, v%d, s[%d:%d], s%d offen' % (vdst, vtmp, sR, sR + 3, sT))
    issue('buffer_load_dword v%d, v%d, s[%d:%d], s%d offen' % (vdst, vtmp, sR, sR + 3, sT + 1))
    return 2


CPF = os.environ.get('CPF', '0') == '1'


def code_prefetch(a, sR, sT, vlane, vtmp, vdst, swave='s3', nlines_log=6):
    a('s_getpc_b64 s[%d:%d]' % (sR, sR + 1))
    a.label('CPF_PC')
    a('s_add_u32 s%d, s%d, k2_kernel-CPF_PC' % (sR, sR))
    a('s_addc_u32 s%d, s%d, 0' % (sR + 1, sR + 1))
    a('s_and_b32 s%d, s%d, 0xffff' % (sR + 1, sR + 1))
    a('s_mov_b32 s%d, CODE_END-k2_kernel' % (sR + 2))
    a('s_mov_b32 s%d, 0x20000' % (sR + 3))
    a('s_lshr_b32 s%d, s2, 3' % sT)
    a('s_lshl_b32 s%d, s%d, 2' % (sT, sT))
    a('s_add_u32 s%d, s%d, %s' % (sT, sT, swave))
    a('s_lshl_b32 s%d, s%d, 12' % (sT, sT))
    a('v_lshlrev_b32 v%d, 6, v%d' % (vtmp, vlane))
    a('buffer_load_dword v%d, v%d, s[%d:%d], s%d offen' % (vdst, vtmp, sR, sR + 3, sT))
    return 1


def pf_for(kid):
    return [t[1] for t in PF.split(',') if t and t[0] == str(kid)]


def wave_sum(a, regs):
    steps = ['quad_perm:[1,0,3,2] row_mask:0xf', 'quad_perm:[2,3,0,1] row_mask:0xf', 'row_half_mirror row_mask:0xf',
             'row_mirror row_mask:0xf', 'row_bcast:15 row_mask:0xa', 'row_bcast:31 row_mask:0xc']
    for st in steps:
        for r in regs:
            a('v_add_f32_dpp v%d, v%d, v%d %s bank_mask:0xf' % (r, r, r, st))


def ln_rows(a, X, T, S, nrows, out_pk=None, keep_f32=False):
    n = nrows
    sm = [T + j for j in range(n)]
    mean = [T + n + j for j in range(n)]
    mb = [T + 2 * n + j for j in range(n)]
    sq = [T + 3 * n + j for j in range(n)]
    t1 = [T + 4 * n + j for j in range(n)]
    t2 = [T + 5 * n + j for j in range(n)]
    for j in range(n):
        a('v_add_f32 v%d, v%d, v%d' % (sm[j], X[j][0], X[j][1]))
        a('v_add_f32 v%d, v%d, v%d' % (t1[j], X[j][2], X[j][3]))
        a('v_add_f32 v%d, v%d, v%d' % (t2[j], X[j][4], X[j][5]))
        a('v_add_f32 v%d, v%d, v%d' % (sq[j], X[j][6], X[j][7]))
    for j in range(n):
        a('v_add_f32 v%d, v%d, v%d' % (sm[j], sm[j], t1[j]))
        a('v_add_f32 v%d, v%d, v%d' % (t2[j], t2[j], sq[j]))
    for j in range(n):
        a('v_add_f32 v%d, v%d, v%d' % (sm[j], sm[j], t2[j]))
    wave_sum(a, sm)
    for j in range(n):
        a('v_readlane_b32 s%d, v%d, 63' % (S + j, sm[j]))
    for j in range(n):
        a('v_mov_b32 v%d, s%d' % (mean[j], S + j))
    for j in range(n):
        a('v_mul_f32 v%d, %s, v%d' % (mean[j], fl(1.0 / 512), mean[j]))
    for j in range(n):
        a('v_cvt_pk_bf16_f32 v%d, v%d, v%d' % (mb[j], mean[j], mean[j]))
    for j in range(n):
        a('v_and_b32 v%d, 0xffff0000, v%d' % (mb[j], mb[j]))
    for k in range(8):
        for j in range(n):
            a('v_sub_f32 v%d, v%d, v%d' % (X[j][k], X[j][k], mb[j]))
    for j in range(n):
        a('v_mul_f32 v%d, v%d, v%d' % (sq[j], X[j][0], X[j][0]))
        a('v_mul_f32 v%d, v%d, v%d' % (t1[j], X[j][1], X[j][1]))
    for k in range(2, 8, 2):
        for j in range(n):
            a('v_fmac_f32 v%d, v%d, v%d' % (sq[j], X[j][k], X[j][k]))
            a('v_fmac_f32 v%d, v%d, v%d' % (t1[j], X[j][k + 1], X[j][k + 1]))
    for j in range(n):
        a('v_add_f32 v%d, v%d, v%d' % (sq[j], sq[j], t1[j]))
    wave_sum(a, sq)
    for j in range(n):
        for k in range(0, 8, 2):
            a('v_cvt_pk_bf16_f32 v%d, v%d, v%d' % (X[j][k + 1], X[j][k], X[j][k + 1]))
    for j in range(n):
        a('v_readlane_b32 s%d, v%d, 63' % (S + j, sq[j]))
    for j in range(n):
        for k in range(0, 8, 2):
            a('v_lshlrev_b32 v%d, 16, v%d' % (X[j][k], X[j][k + 1]))
            a('v_and_b32 v%d, 0xffff0000, v%d' % (X[j][k + 1], X[j][k + 1]))
    for j in range(n):
        a('v_sub_f32 v%d, v%d, v%d' % (t1[j], mean[j], mb[j]))
        a('v_mov_b32 v%d, s%d' % (sq[j], S + j))
    for j in range(n):
        a('v_mul_f32 v%d, v%d, v%d' % (t1[j], t1[j], t1[j]))
        a('v_mul_f32 v%d, %s, v%d' % (sq[j], fl(1.0 / 512), sq[j]))
    for j in range(n):
        a('v_sub_f32 v%d, v%d, v%d' % (sq[j], sq[j], t1[j]))
    for j in range(n):
        a('v_max_f32 v%d, 0, v%d' % (sq[j], sq[j]))
    for j in range(n):
        a('v_cvt_pk_bf16_f32 v%d, v%d, v%d' % (sq[j], sq[j], sq[j]))
    for j in range(n):
        a('v_and_b32 v%d, 0xffff0000, v%d' % (sq[j], sq[j]))
    for j in range(n):
        a('v_add_f32 v%d, %s, v%d' % (sq[j], fl(1e-5), sq[j]))
    for j in range(n):
        a('v_cvt_pk_bf16_f32 v%d, v%d, v%d' % (sq[j], sq[j], sq[j]))
    for j in range(n):
        a('v_and_b32 v%d, 0xffff0000, v%d' % (sq[j], sq[j]))
    for j in range(n):
        a('v_sqrt_f32 v%d, v%d' % (sq[j], sq[j]))
    for j in range(n):
        a('v_cvt_pk_bf16_f32 v%d, v%d, v%d' % (sq[j], sq[j], sq[j]))
    for j in range(n):
        a('v_and_b32 v%d, 0xffff0000, v%d' % (sq[j], sq[j]))
    for j in range(n):
        a('v_rcp_f32 v%d, v%d' % (sq[j], sq[j]))
    for k in range(8):
        for j in range(n):
            a('v_mul_f32 v%d, v%d, v%d' % (X[j][k], X[j][k], sq[j]))
    for j in range(n):
        for k in range(0, 8, 2):
            a('v_cvt_pk_bf16_f32 v%d, v%d, v%d' % (out_pk[j][k // 2], X[j][k], X[j][k + 1]))
    if keep_f32:
        for j in range(n):
            for k in range(0, 8, 2):
                a('v_lshlrev_b32 v%d, 16, v%d' % (X[j][k], out_pk[j][k // 2]))
                a('v_and_b32 v%d, 0xffff0000, v%d' % (X[j][k + 1], out_pk[j][k // 2]))


def cmul_tw(a, re, im, c, s, ore, oim, sign):
    a('v_mul_f32 v%d, v%d, v%d' % (ore, re, c))
    a('v_mul_f32 v%d, v%d, v%d' % (oim, im, c))
    if sign < 0:
        a('v_fmac_f32 v%d, v%d, v%d' % (ore, im, s))
        a('v_fma_f32 v%d, -v%d, v%d, v%d' % (oim, re, s, oim))
    else:
        a('v_fma_f32 v%d, -v%d, v%d, v%d' % (ore, im, s, ore))
        a('v_fmac_f32 v%d, v%d, v%d' % (oim, re, s))


def gen_k1():
    a = Asm()
    L = 'k1_kernel'
    a.label(L)
    a('s_cmp_ge_u32 s2, 256')
    a('s_cbranch_scc1 K1_TR')
    st = Stamper(a, 1)
    st()
    a('s_load_dwordx2 s[4:5], s[0:1], 0')
    a('s_load_dwordx2 s[6:7], s[0:1], 80')
    for t in pf_for(1):
        a('s_load_dwordx2 s[%d:%d], s[0:1], %d' % ((44, 45, 32) if t == 'a' else (46, 47, 48)))
    a('v_and_b32 v1, 63, v0')
    a('v_lshrrev_b32 v2, 6, v0')
    a('s_lshr_b32 s12, s2, 3')
    a('v_readfirstlane_b32 s3, v2')
    a('s_and_b32 s13, s2, 7')
    a('s_lshl_b32 s13, s13, 8')
    a('s_add_u32 s13, s13, s12')
    a('v_lshlrev_b32 v3, 4, v1')
    a('s_lshl_b32 s14, s3, 6')
    a('s_add_u32 s13, s13, s14')
    a('s_lshl_b32 s13, s13, 10')
    a('s_add_u32 s14, s13, 32768')
    a('s_waitcnt lgkmcnt(0)')
    srd(a, 8, 4, 2048 * 1024)
    a('buffer_load_dwordx4 v[4:7], v3, s[8:11], s13 offen')
    a('buffer_load_dwordx4 v[8:11], v3, s[8:11], s14 offen')
    npf = 0
    for t in pf_for(1):
        npf += prefetch(a, t, 44 if t == 'a' else 46, 48, 52, 1, 125, 124)
    if CPF:
        npf += code_prefetch(a, 48, 52, 1, 125, 124)
    st()
    srd(a, 16, 6, SZ_X1, WS_X1)
    a('s_mul_i32 s15, s2, 8320')
    G, N, FG, FN = 12, 13, 14, 15
    a('v_lshrrev_b32 v%d, 4, v1' % G)
    a('v_and_b32 v%d, 15, v1' % N)
    a('v_cvt_f32_u32 v%d, v%d' % (FG, G))
    a('v_cvt_f32_u32 v%d, v%d' % (FN, N))
    B1 = 16
    T = 96
    a('v_mul_f32 v%d, v%d, v%d' % (T, FN, FG))
    a('v_mul_f32 v%d, 0.125*1, v%d'.replace('0.125*1', fl(0.125)) % (T, T))
    for o in range(1, 4):
        a('v_fmamk_f32 v%d, v%d, %s, v%d' % (T + o, FN, fl(o / 32.0), T))
    for o in range(4):
        a('v_cos_f32 v%d, v%d' % (T + 4 + o, T + o))
        a('v_sin_f32 v%d, v%d' % (T + 8 + o, T + o))
    a('v_and_b32 v%d, 1, v1' % (T + 12))
    a('v_mul_u32_u24 v%d, 0x8000, v%d' % (T + 12, T + 12))
    a('v_lshl_or_b32 v%d, v%d, 16, v%d' % (T + 12, T + 12, T + 12))
    a('v_cvt_pk_bf16_f32 v%d, v%d, v%d' % (B1 + 0, T + 4, T + 5))
    a('v_cvt_pk_bf16_f32 v%d, v%d, v%d' % (B1 + 1, T + 6, T + 7))
    a('v_cvt_pk_bf16_f32 v%d, -v%d, -v%d' % (B1 + 4, T + 8, T + 9))
    a('v_cvt_pk_bf16_f32 v%d, -v%d, -v%d' % (B1 + 5, T + 10, T + 11))
    for cs in range(2):
        for rr in range(2):
            a('v_xor_b32 v%d, v%d, v%d' % (B1 + cs * 4 + 2 + rr, B1 + cs * 4 + rr, T + 12))
    for q in range(8):
        a('v_xor_b32 v%d, 0x80000000, v%d' % (B1 + 8 + q, B1 + q))
    TC, TS = 32, 40
    a('v_mul_f32 v%d, %s, v%d' % (T, fl(1.0 / 512), FN))
    a('v_add_f32 v%d, %s, v%d' % (T + 1, fl(16.0 / 512), T))
    a('v_mul_f32 v%d, 4.0, v%d' % (T + 2, FG))
    for r in range(1, 4):
        a('v_add_f32 v%d, %s, v%d' % (T + 2 + r, fl(float(r)), T + 2))
    for hf in range(2):
        for r in range(4):
            a('v_mul_f32 v%d, v%d, v%d' % (T + 6 + hf * 4 + r, T + hf, T + 2 + r))
    for q in range(8):
        a('v_cos_f32 v%d, v%d' % (TC + q, T + 6 + q))
        a('v_sin_f32 v%d, v%d' % (TS + q, T + 6 + q))
    A3 = 48
    a('v_lshrrev_b32 v%d, 1, v%d' % (T, N))
    a('v_cvt_f32_u32 v%d, v%d' % (T, T))
    a('v_mul_f32 v%d, %s, v%d' % (T, fl(1.0 / 16), T))
    a('v_and_b32 v%d, 1, v%d' % (T + 1, N))
    a('v_cvt_f32_u32 v%d, v%d' % (T + 1, T + 1))
    a('v_mul_f32 v%d, %s, v%d' % (T + 1, fl(0.25), T + 1))
    for rr in range(4):
        a('v_fma_f32 v%d, v%d, v%d, v%d' % (T + 6 + rr, T, T + 2 + rr, T + 1))
    for rr in range(4):
        a('v_cos_f32 v%d, v%d' % (T + 10 + rr, T + 6 + rr))
        a('v_sin_f32 v%d, v%d' % (T + 14 + rr, T + 6 + rr))
    for rr in range(4):
        a('v_cvt_pk_bf16_f32 v%d, v%d, v%d' % (A3 + rr, T + 10 + rr, T + 14 + rr))
    G8 = 52
    for rr in range(4):
        a('v_mov_b32 v%d, 0x%x' % (G8 + rr, 0x3F80 if rr % 2 == 0 else 0xBF80))
    a('s_lshl_b32 s20, s3, 3')
    a('v_lshlrev_b32 v56, 5, v%d' % N)
    a('v_lshl_add_u32 v56, v%d, 11, v56' % G)
    a('v_add_u32 v56, s20, v56')
    a('s_add_u32 s21, s20, 8192')
    a('v_mov_b32 v57, 0x40000000')
    a('v_writelane_b32 v57, s21, 0')
    a('s_lshl_b32 s22, s3, 11')
    a('v_add_u32 v58, s22, v3')
    a('v_lshlrev_b32 v59, 3, v1')
    a('v_add_u32 v59, s22, v59')
    st()
    a('s_waitcnt vmcnt(%d)' % npf)
    st()
    X = [[64 + k for k in range(8)], [72 + k for k in range(8)]]
    for j in range(2):
        for k in range(4):
            a('v_lshlrev_b32 v%d, 16, v%d' % (X[j][2 * k], 4 + 4 * j + k))
            a('v_and_b32 v%d, 0xffff0000, v%d' % (X[j][2 * k + 1], 4 + 4 * j + k))
    ln_rows(a, X, T, 24, 2, out_pk=[[4, 5, 6, 7], [8, 9, 10, 11]])
    st()
    a('ds_write_b128 v58, v[4:7]')
    a('ds_write_b128 v58, v[8:11] offset:1024')
    a('ds_read_b64_tr_b16 v[60:61], v59')
    a('ds_read_b64_tr_b16 v[62:63], v59 offset:512')
    a('ds_read_b64_tr_b16 v[64:65], v59 offset:1024')
    a('ds_read_b64_tr_b16 v[66:67], v59 offset:1536')
    D1 = 68
    A = [60, 64]
    for j in range(2):
        a('s_waitcnt lgkmcnt(%d)' % (2 - 2 * j))
        for hf in range(2):
            for cs in range(2):
                d = D1 + ((j * 2 + hf) * 2 + cs) * 4
                a('v_mfma_f32_16x16x32_bf16 %s, %s, %s, 0' % (vr(d, 4), vr(A[j], 4), vr(B1 + hf * 8 + cs * 4, 4)))
    P = 100
    for j in range(2):
        for hf in range(2):
            dre = D1 + ((j * 2 + hf) * 2 + 0) * 4
            dim = dre + 4
            for r in range(4):
                cmul_tw(a, dre + r, dim + r, TC + hf * 4 + r, TS + hf * 4 + r, 116 + 2 * r, 117 + 2 * r, -1)
            for r in range(4):
                a('v_cvt_pk_bf16_f32 v%d, v%d, v%d' % (P + (j * 2 + hf) * 4 + r, 116 + 2 * r, 117 + 2 * r))
    D3 = 68
    for j in range(2):
        for hf in range(2):
            a('v_mfma_f32_16x16x32_bf16 %s, %s, %s, 0' % (vr(D3 + (j * 2 + hf) * 4, 4), vr(A3, 4), vr(P + (j * 2 + hf) * 4, 4)))
    for j in range(2):
        a('v_mfma_f32_16x16x32_bf16 %s, %s, %s, 0' % (vr(D3 + 16 + j * 4, 4), vr(G8, 4), vr(P + (j * 2) * 4, 4)))
    st()
    O = 4
    for hf in range(2):
        for p in range(2):
            o = O + (hf * 2 + p) * 2
            for j in range(2):
                d = D3 + (j * 2 + hf) * 4 + 2 * p
                a('v_cvt_pk_bf16_f32 v%d, v%d, v%d' % (o + j, d, d + 1))
            a('buffer_store_dwordx2 %s, v56, s[16:19], s15 offen offset:%d' % (vr(o, 2), hf * 512 + p * 1024))
    for j in range(2):
        a('v_cvt_pk_bf16_f32 v%d, v%d, 0' % (60 + j, D3 + 16 + j * 4))
    a('buffer_store_dwordx2 v[60:61], v57, s[16:19], s15 offen')
    st()
    st.flush()
    a('s_endpgm')
    a.label('K1_TR')
    a('s_cmp_ge_u32 s2, 320')
    a('s_cbranch_scc1 K1_END')
    a('s_load_dwordx4 s[4:7], s[0:1], 8')
    a('s_load_dwordx2 s[12:13], s[0:1], 80')
    a('s_sub_u32 s3, s2, 256')
    a('s_and_b32 s14, s3, 7')
    a('s_lshr_b32 s15, s3, 3')
    a('s_lshl_b32 s20, s14, 3')
    a('s_lshl_b32 s21, s15, 8')
    a('s_add_u32 s20, s20, s21')
    a('s_mul_i32 s20, s20, 514')
    for r in range(1, 4):
        a('s_add_u32 s%d, s20, %d' % (20 + r, r * 64 * 514))
    a('v_lshlrev_b32 v1, 4, v0')
    a('v_and_b32 v2, 3, v0')
    a('v_mul_u32_u24 v2, %d, v2' % (64 * 514))
    a('v_add_u32 v2, 4096, v2')
    a('s_waitcnt lgkmcnt(0)')
    srd(a, 8, 4, 2048 * 514)
    srd(a, 16, 6, 2048 * 514)
    srd(a, 24, 12, SZ_WT, WS_WT)
    for r in range(4):
        a('buffer_load_dwordx4 %s, v1, s[8:11], s%d offen' % (vr(4 + 4 * r, 4), 20 + r))
    for r in range(4):
        a('buffer_load_dwordx4 %s, v1, s[16:19], s%d offen' % (vr(20 + 4 * r, 4), 20 + r))
    a('buffer_load_dwordx4 v[36:39], v2, s[8:11], s20 offen')
    a('buffer_load_dwordx4 v[40:43], v2, s[16:19], s20 offen')
    RUN = 4112
    a('v_and_b32 v3, 3, v0')
    a('v_mul_u32_u24 v3, %d, v3' % RUN)
    a('v_add_u32 v3, 4096, v3')
    a('v_and_b32 v45, 7, v0')
    a('v_bfe_u32 v46, v0, 3, 3')
    a('v_lshrrev_b32 v47, 6, v0')
    a('v_lshrrev_b32 v48, 1, v47')
    a('v_lshlrev_b32 v48, 7, v48')
    a('v_lshl_add_u32 v48, v46, 4, v48')
    a('v_and_b32 v47, 1, v47')
    a('v_lshl_add_u32 v48, v47, 3, v48')
    a('v_mul_u32_u24 v49, 514, v45')
    a('v_lshl_add_u32 v49, v48, 1, v49')
    a('v_lshlrev_b32 v50, 13, v48')
    a('v_lshl_add_u32 v50, v45, 4, v50')
    a('s_lshr_b32 s28, s14, 1')
    a('s_lshl_b32 s28, s28, 11')
    a('s_lshr_b32 s29, s15, 2')
    a('s_lshl_b32 s29, s29, 10')
    a('s_add_u32 s28, s28, s29')
    a('s_and_b32 s29, s15, 3')
    a('s_lshl_b32 s29, s29, 8')
    a('s_add_u32 s28, s28, s29')
    a('s_and_b32 s29, s14, 1')
    a('s_lshl_b32 s29, s29, 7')
    a('s_add_u32 s28, s28, s29')
    for r in range(8):
        a('s_waitcnt vmcnt(%d)' % (9 - r))
        a('ds_write_b128 v1, %s offset:%d' % (vr(4 + 4 * r, 4), r * RUN))
    a('s_waitcnt vmcnt(0)')
    a('v_cmp_gt_u32 vcc, 4, v0')
    a('s_and_saveexec_b64 s[30:31], vcc')
    a('s_cbranch_execz K1_TR2')
    a('ds_write_b128 v3, v[36:39]')
    a('ds_write_b128 v3, v[40:43] offset:%d' % (4 * RUN))
    a.label('K1_TR2')
    a('s_mov_b64 exec, s[30:31]')
    a('s_waitcnt lgkmcnt(0)')
    a('s_barrier')
    for it in range(9):
        koff = it if it < 8 else None
        if it == 8:
            a('v_add_u32 v49, 512, v49')
            a('v_add_u32 v50, 0x%x, v50' % (256 * 8192))
            koff = 0
        base = 4 + (it % 2) * 12
        for r in range(4):
            a('ds_read_u16 v%d, v49 offset:%d' % (base + 2 * r, r * RUN + koff * 2))
            a('ds_read_u16 v%d, v49 offset:%d' % (base + 2 * r + 1, (4 + r) * RUN + koff * 2))
        a('s_waitcnt lgkmcnt(0)')
        o = 28 + (it % 2) * 4
        for r in range(4):
            a('v_lshl_or_b32 v%d, v%d, 16, v%d' % (o + r, base + 2 * r + 1, base + 2 * r))
        if it < 8:
            a('s_add_u32 s29, s28, %d' % (it * 8192))
        else:
            a('s_mov_b32 s29, s28')
        a('buffer_store_dwordx4 %s, v50, s[24:27], s29 offen' % vr(o, 4))
    a.label('K1_END')
    a('s_endpgm')
    return dict(name=L, asm=a, grid=320, lds=8 * 4112 + 1024, vgpr=128, sgpr=56)

def gen_k2():
    a = Asm()
    L = 'k2_kernel'
    a.label(L)
    a('s_cmp_ge_u32 s2, 257')
    a('s_cbranch_scc1 K2_END')
    st = Stamper(a, 2)
    st()
    a('s_load_dwordx2 s[4:5], s[0:1], 80')
    for t in pf_for(2):
        a('s_load_dwordx2 s[%d:%d], s[0:1], %d' % ((44, 45, 32) if t == 'a' else (46, 47, 48)))
    a('v_and_b32 v1, 63, v0')
    a('v_lshrrev_b32 v2, 6, v0')
    a('s_and_b32 s12, s2, 7')
    a('s_lshl_b32 s12, s12, 5')
    a('v_readfirstlane_b32 s3, v2')
    a('s_lshr_b32 s13, s2, 3')
    a('s_add_u32 s12, s12, s13')
    a('s_cmp_eq_u32 s2, 256')
    a('s_cselect_b32 s12, 256, s12')
    G, N = 2, 3
    a('v_lshrrev_b32 v2, 4, v1')
    a('v_and_b32 v3, 15, v1')
    a('v_lshlrev_b32 v4, 3, v3')
    a('v_lshrrev_b32 v5, 1, v2')
    a('v_add_u32 v4, v4, v5')
    a('v_mul_u32_u24 v4, 8320, v4')
    a('v_and_b32 v5, 1, v2')
    a('v_lshl_add_u32 v4, v5, 4, v4')
    a('s_lshl_b32 s14, s3, 1')
    a('s_mul_i32 s14, s14, 8320')
    a('s_lshl_b32 s15, s12, 5')
    a('s_add_u32 s14, s14, s15')
    a('s_add_u32 s15, s14, %d' % (128 * 8320))
    a('s_lshl_b32 s16, s3, 11')
    a('v_lshlrev_b32 v5, 4, v1')
    a('s_lshl_b32 s17, s12, 13')
    a('s_add_u32 s17, s17, s16')
    a('s_waitcnt lgkmcnt(0)')
    srd(a, 8, 4, SZ_X1, WS_X1)
    a('s_mov_b32 m0, s16')
    srd(a, 20, 4, SZ_WT, WS_WT)
    a('buffer_load_dwordx4 v4, s[8:11], s14 offen lds')
    a('s_add_u32 m0, s16, 1024')
    srd(a, 24, 4, SZ_Y1, WS_Y1)
    a('buffer_load_dwordx4 v4, s[8:11], s15 offen lds')
    W = 112
    a('buffer_load_dwordx4 %s, v5, s[20:23], s17 offen' % vr(W, 4))
    a('buffer_load_dwordx4 %s, v5, s[20:23], s17 offen offset:1024' % vr(W + 4, 4))
    npf = 0
    for t in pf_for(2):
        npf += prefetch(a, t, 44 if t == 'a' else 46, 48, 52, 1, 193, 192)
    st()
    TAB = 16384
    T = 176
    a('v_cvt_f32_u32 v%d, v1' % T)
    a('v_mul_f32 v%d, %s, v%d' % (T, fl(1.0 / 64), T))
    a('v_cos_f32 v%d, v%d' % (T + 1, T))
    a('v_sin_f32 v%d, v%d' % (T + 2, T))
    a('s_lshl_b32 s18, s3, 9')
    a('s_add_u32 s18, s18, %d' % TAB)
    a('v_mov_b32 v6, s18')
    a('v_cvt_pk_bf16_f32 v%d, v%d, v%d' % (T + 1, T + 1, T + 2))
    a('v_lshl_add_u32 v%d, v1, 2, v6' % (T + 2))
    a('ds_write2st64_b32 v%d, v%d, v%d offset0:0 offset1:1' % (T + 2, T + 1, T + 1))
    F64, F32 = 16, 48
    a('s_mov_b32 s19, 0xff')
    a('s_lshl_b32 s28, s3, 4')
    a('v_add_u32 v7, s28, v3')
    a('v_lshlrev_b32 v8, 2, v7')
    a('v_lshlrev_b32 v9, 2, v2')
    a('v_mul_u32_u24 v10, v9, v8')
    for ks in range(2):
        for rr in range(4):
            t = T + 4 + ks * 4 + rr
            a('v_mad_u32_u24 v%d, v8, %d, v10' % (t, 16 * ks + rr))
            a('v_and_or_b32 v%d, v%d, s19, v6' % (t, t))
    a('v_lshlrev_b32 v11, 3, v3')
    a('v_mul_u32_u24 v12, v9, v11')
    for rr in range(4):
        t = T + 12 + rr
        a('v_mad_u32_u24 v%d, v11, %d, v12' % (t, rr))
        a('v_and_or_b32 v%d, v%d, s19, v6' % (t, t))
    for ks in range(2):
        for rr in range(4):
            t = T + 4 + ks * 4 + rr
            a('ds_read_b32 v%d, v%d' % (F64 + ks * 8 + rr, t))
            a('ds_read_b32 v%d, v%d offset:64' % (F64 + ks * 8 + 4 + rr, t))
    for rr in range(4):
        t = T + 12 + rr
        a('ds_read_b32 v%d, v%d' % (F32 + rr, t))
        a('ds_read_b32 v%d, v%d offset:64' % (F32 + 4 + rr, t))
    T1C, T1S, T2C, T2S = 80, 88, 96, 104
    a('v_cvt_f32_u32 v%d, v7' % T)
    a('v_mul_f32 v%d, %s, v%d' % (T, fl(1.0 / 2048), T))
    a('v_cvt_f32_u32 v%d, v9' % (T + 1))
    for mt in range(2):
        for r in range(4):
            q = mt * 4 + r
            a('v_add_f32 v%d, %s, v%d' % (T + 2, fl(float(16 * mt + r)), T + 1))
            a('v_mul_f32 v%d, v%d, v%d' % (T + 2, T + 2, T))
            a('v_cos_f32 v%d, v%d' % (T1C + q, T + 2))
            a('v_sin_f32 v%d, v%d' % (T1S + q, T + 2))
    a('v_add_u32 v13, s28, v9')
    a('v_cvt_f32_u32 v%d, v13' % (T + 1))
    a('v_cvt_f32_u32 v%d, v3' % T)
    a('v_mul_f32 v%d, %s, v%d' % (T, fl(1.0 / 2048), T))
    a('v_add_f32 v%d, %s, v%d' % (T + 3, fl(16.0 / 2048), T))
    for bt in range(2):
        for r in range(4):
            q = bt * 4 + r
            a('v_add_f32 v%d, %s, v%d' % (T + 2, fl(float(r)), T + 1))
            a('v_mul_f32 v%d, v%d, v%d' % (T + 2, T + 2, T + 3 * bt))
            a('v_cos_f32 v%d, v%d' % (T2C + q, T + 2))
            a('v_sin_f32 v%d, v%d' % (T2S + q, T + 2))
    a('v_and_b32 v14, 1, v1')
    a('v_mul_u32_u24 v14, 0x8000, v14')
    a('v_lshl_or_b32 v14, v14, 16, v14')
    a('s_waitcnt lgkmcnt(0)')
    for q in range(16):
        a('v_xor_b32 v%d, v%d, v14' % (F64 + 16 + q, F64 + q))
    for q in range(8):
        a('v_xor_b32 v%d, v%d, v14' % (F32 + 8 + q, F32 + q))
    for K in range(2):
        for q in range(8):
            src = F32 + K * 8 + q
            dst = F32 + 16 + K * 8 + q
            if (q & 1):
                a('v_xor_b32 v%d, 0x80008000, v%d' % (dst, src))
            else:
                a('v_mov_b32 v%d, v%d' % (dst, src))
    a('v_lshlrev_b32 v15, 8, v3')
    a('v_lshl_add_u32 v15, v2, 4, v15')
    a('s_mul_i32 s29, s12, 8320')
    a('s_lshl_b32 s30, s3, 6')
    a('s_add_u32 s29, s29, s30')
    a('s_add_u32 s30, s29, 4096')
    FR = 120
    D = 152
    P = 168
    st()
    a('s_waitcnt vmcnt(%d)' % (2 + npf))
    st()
    a('s_barrier')
    st()
    for ks in range(4):
        for mt in range(2):
            a('ds_read_b128 %s, v5 offset:%d' % (vr(FR + (ks * 2 + mt) * 4, 4), (ks * 2 + mt) * 1024))
    for ks in range(4):
        a('s_waitcnt lgkmcnt(%d)' % (6 - 2 * ks))
        for mt in range(2):
            for ro in range(2):
                d = D + (mt * 2 + ro) * 4
                c = '0' if ks == 0 else vr(d, 4)
                a('v_mfma_f32_16x16x32_bf16 %s, %s, %s, %s' % (vr(d, 4), vr(FR + (ks * 2 + mt) * 4, 4), vr(F64 + ks * 8 + ro * 4, 4), c))

    def twpack(TC, TS):
        for mt in range(2):
            dre = D + (mt * 2) * 4
            dim = dre + 4
            for r in range(4):
                cmul_tw(a, dre + r, dim + r, TC + mt * 4 + r, TS + mt * 4 + r, T + 2 * r, T + 2 * r + 1, -1)
            for r in range(4):
                a('v_cvt_pk_bf16_f32 v%d, v%d, v%d' % (P + mt * 4 + r, T + 2 * r, T + 2 * r + 1))
    twpack(T1C, T1S)
    for mt in range(2):
        for et in range(2):
            for ro in range(2):
                d = D + (et * 2 + ro) * 4
                c = '0' if mt == 0 else vr(d, 4)
                a('v_mfma_f32_16x16x32_bf16 %s, %s, %s, %s' % (vr(d, 4), vr(F32 + (et * 2 + mt) * 8 + ro * 4, 4), vr(P + mt * 4, 4), c))
    st()
    a('s_waitcnt vmcnt(%d)' % npf)
    st()
    for t in range(2):
        for r in range(4):
            wv = W + t * 4 + r
            xr, xi = D + (t * 2) * 4 + r, D + (t * 2 + 1) * 4 + r
            a('v_lshlrev_b32 v%d, 16, v%d' % (T + 8, wv))
            a('v_and_b32 v%d, 0xffff0000, v%d' % (T + 9, wv))
            cmul_tw(a, xr, xi, T + 8, T + 9, T + 10, T + 11, +1)
            a('v_cvt_pk_bf16_f32 v%d, v%d, -v%d' % (P + t * 4 + r, T + 10, T + 11))
    for t in range(2):
        for bt in range(2):
            for ro in range(2):
                d = D + (bt * 2 + ro) * 4
                c = '0' if t == 0 else vr(d, 4)
                a('v_mfma_f32_16x16x32_bf16 %s, %s, %s, %s' % (vr(d, 4), vr(P + t * 4, 4), vr(F32 + (bt * 2 + t) * 8 + ro * 4, 4), c))
    twpack(T2C, T2S)
    EX = 8192
    a('s_add_u32 s31, s16, %d' % EX)
    a('v_add_u32 v4, s31, v5')
    a('ds_write_b128 v4, %s' % vr(P, 4))
    a('ds_write_b128 v4, %s offset:1024' % vr(P + 4, 4))
    a('s_waitcnt lgkmcnt(0)')
    st()
    a('s_barrier')
    st()
    for ks in range(4):
        for nt in range(2):
            a('ds_read_b128 %s, v5 offset:%d' % (vr(FR + (ks * 2 + nt) * 4, 4), EX + (ks * 2 + nt) * 1024))
    for ks in range(4):
        a('s_waitcnt lgkmcnt(%d)' % (6 - 2 * ks))
        for nt in range(2):
            for ro in range(2):
                d = D + (nt * 2 + ro) * 4
                c = '0' if ks == 0 else vr(d, 4)
                a('v_mfma_f32_16x16x32_bf16 %s, %s, %s, %s' % (vr(d, 4), vr(F64 + ks * 8 + ro * 4, 4), vr(FR + (ks * 2 + nt) * 4, 4), c))
    for nt in range(2):
        dre = D + nt * 8
        for r in range(4):
            a('v_cvt_pk_bf16_f32 v%d, v%d, -v%d' % (P + nt * 4 + r, dre + r, dre + 4 + r))
        a('buffer_store_dwordx4 %s, v15, s[24:27], s%d offen' % (vr(P + nt * 4, 4), 29 + nt))
    st()
    st.flush()
    a.label('K2_END')
    a('s_endpgm')
    return dict(name=L, asm=a, grid=257, lds=16384 + 2048, vgpr=196, sgpr=56)

def gen_k3():
    a = Asm()
    L = 'k3_kernel'
    a.label(L)
    a('s_cmp_ge_u32 s2, 256')
    a('s_cbranch_scc1 K3_END')
    st = Stamper(a, 3)
    st()
    a('s_load_dwordx2 s[4:5], s[0:1], 80')
    a('s_load_dwordx2 s[6:7], s[0:1], 0')
    for t in pf_for(3):
        a('s_load_dwordx2 s[%d:%d], s[0:1], %d' % ((44, 45, 32) if t == 'a' else (46, 47, 48)))
    a('v_and_b32 v1, 63, v0')
    a('v_lshrrev_b32 v2, 6, v0')
    a('s_and_b32 s12, s2, 7')
    a('s_lshr_b32 s13, s2, 3')
    a('v_readfirstlane_b32 s3, v2')
    a('s_lshl_b32 s12, s12, 2')
    a('s_lshr_b32 s14, s13, 3')
    a('s_add_u32 s12, s12, s14')
    a('s_and_b32 s13, s13, 7')
    a('s_lshl_b32 s14, s12, 8')
    a('s_lshl_b32 s15, s13, 5')
    a('s_add_u32 s14, s14, s15')
    a('v_mul_u32_u24 v4, 8320, v0')
    a('s_lshl_b32 s15, s13, 8')
    a('s_lshl_b32 s16, s3, 6')
    a('s_add_u32 s15, s15, s16')
    a('s_add_u32 s15, s15, s12')
    a('s_lshl_b32 s15, s15, 10')
    a('s_add_u32 s16, s15, 32768')
    a('v_lshrrev_b32 v2, 4, v1')
    a('v_and_b32 v3, 15, v1')
    a('v_lshlrev_b32 v5, 5, v3')
    a('v_lshl_add_u32 v5, v2, 3, v5')
    a('s_lshl_b32 s17, s3, 3')
    a('s_add_u32 s17, s17, s14')
    a('s_waitcnt lgkmcnt(0)')
    srd(a, 8, 4, SZ_Y1, WS_Y1)
    a('buffer_load_dwordx4 v[8:11], v4, s[8:11], s14 offen')
    a('buffer_load_dwordx4 v[12:15], v4, s[8:11], s14 offen offset:16')
    srd(a, 20, 6, 2048 * 1024)
    XR = 16
    for j in range(2):
        for t in range(2):
            a('buffer_load_dwordx2 %s, v5, s[20:23], s%d offen offset:%d' % (vr(XR + (j * 2 + t) * 2, 2), 15 + j, t * 512))
    a('s_add_u32 s24, s4, 0x%x' % WS_Y1)
    a('s_addc_u32 s25, s5, 0')
    a('s_add_u32 s24, s24, s17')
    a('s_addc_u32 s25, s25, 0')
    a('s_load_dwordx2 s[26:27], s[24:25], 0')
    a('s_add_u32 s42, s24, 0x%x' % (256 * 8320))
    a('s_addc_u32 s43, s25, 0')
    a('s_load_dwordx2 s[28:29], s[42:43], 0')
    npf = 0
    for t in pf_for(3):
        npf += prefetch(a, t, 44 if t == 'a' else 46, 48, 52, 1, 129, 128)
    srd(a, 32, 4, SZ_H, WS_H)
    srd(a, 36, 4, SZ_L2, WS_L2)
    st()
    T = 96
    FG, FN = 6, 7
    a('v_cvt_f32_u32 v%d, v2' % FG)
    a('v_cvt_f32_u32 v%d, v3' % FN)
    B1 = 24
    a('v_mul_f32 v%d, %s, v%d' % (T, fl(-1.0 / 16), FN))
    a('v_add_f32 v%d, v%d, v%d' % (T + 1, FG, FG))
    a('v_add_f32 v%d, 1.0, v%d' % (T + 2, T + 1))
    a('v_mul_f32 v%d, v%d, v%d' % (T + 3, T, T + 1))
    a('v_mul_f32 v%d, v%d, v%d' % (T + 4, T, T + 2))
    a('v_add_f32 v%d, %s, v%d' % (T + 5, fl(0.25), T + 3))
    a('v_add_f32 v%d, %s, v%d' % (T + 6, fl(0.25), T + 4))
    for q in range(4):
        a('v_cos_f32 v%d, v%d' % (T + 8 + q, T + 3 + q))
        a('v_sin_f32 v%d, v%d' % (T + 12 + q, T + 3 + q))
    for q in range(4):
        a('v_cvt_pk_bf16_f32 v%d, v%d, v%d' % (B1 + q, T + 8 + q, T + 12 + q))
    TC, TS = 28, 36
    a('v_mul_f32 v%d, %s, v%d' % (T, fl(1.0 / 512), FN))
    a('v_mul_f32 v%d, 4.0, v%d' % (T + 1, FG))
    for hf in range(2):
        for r in range(4):
            q = hf * 4 + r
            a('v_add_f32 v%d, %s, v%d' % (T + 2, fl(float(16 * hf + r)), T + 1))
            a('v_mul_f32 v%d, v%d, v%d' % (T + 2, T + 2, T))
            a('v_cos_f32 v%d, v%d' % (TC + q, T + 2))
            a('v_sin_f32 v%d, v%d' % (TS + q, T + 2))
    B3 = 44
    a('v_mul_f32 v%d, %s, v%d' % (T, fl(1.0 / 32), FN))
    for rr in range(4):
        a('v_add_f32 v%d, %s, v%d' % (T + 2, fl(float(rr)), T + 1))
        a('v_mul_f32 v%d, v%d, v%d' % (T + 2, T + 2, T))
        a('v_cos_f32 v%d, v%d' % (T + 3, T + 2))
        a('v_sin_f32 v%d, v%d' % (T + 4, T + 2))
        a('v_cvt_pk_bf16_f32 v%d, v%d, -v%d' % (B3 + rr, T + 3, T + 4))
    a('v_and_b32 v%d, 1, v1' % (T + 5))
    a('v_mul_u32_u24 v%d, 0x8000, v%d' % (T + 5, T + 5))
    a('v_lshl_or_b32 v%d, v%d, 16, v%d' % (T + 5, T + 5, T + 5))
    for rr in range(4):
        a('v_xor_b32 v%d, v%d, v%d' % (B3 + 4 + rr, B3 + rr, T + 5))
    for hf in range(2):
        for rr in range(4):
            src, dst = B3 + hf * 4 + rr, B3 + 8 + hf * 4 + rr
            if rr & 1:
                a('v_xor_b32 v%d, 0x80008000, v%d' % (dst, src))
            else:
                a('v_mov_b32 v%d, v%d' % (dst, src))
    a('v_lshrrev_b32 v60, 6, v0')
    a('v_mul_u32_u24 v60, 80, v60')
    a('v_add_u32 v60, v60, v1')
    a('v_lshlrev_b32 v60, 2, v60')
    a('v_mul_u32_u24 v61, 80, v2')
    a('v_add_u32 v61, v61, v3')
    a('v_lshlrev_b32 v61, 2, v61')
    a('s_mul_i32 s18, s3, 2560')
    a('v_add_u32 v61, s18, v61')
    R2 = 10240
    a('s_mul_i32 s19, s3, 2176')
    a('s_add_u32 s19, s19, %d' % R2)
    a('v_add_u32 v62, s19, v5')
    a('v_lshrrev_b32 v63, 2, v3')
    a('v_mul_u32_u24 v63, 1088, v63')
    a('v_lshl_add_u32 v63, v2, 5, v63')
    a('v_and_b32 v%d, 3, v1' % T)
    a('v_lshl_add_u32 v63, v%d, 3, v63' % T)
    a('s_lshl_b32 s30, s3, 8')
    a('s_add_u32 s30, s30, %d' % R2)
    a('v_add_u32 v63, s30, v63')
    st()
    a('s_waitcnt vmcnt(%d)' % (4 + npf))
    st()
    for q in range(4):
        a('ds_write2st64_b32 v60, v%d, v%d offset0:%d offset1:%d' % (8 + 2 * q, 9 + 2 * q, 10 * q, 10 * q + 5))
    a('s_waitcnt lgkmcnt(0)')
    a('s_barrier')
    st()
    AF = 64
    for j in range(2):
        for hf in range(2):
            a('ds_read2_b32 %s, v61 offset0:%d offset1:%d' % (vr(AF + (j * 2 + hf) * 2, 2), 16 * hf, 16 * hf + 32) if j == 0 else
              'ds_read2_b32 %s, v%d offset0:%d offset1:%d' % (vr(AF + (j * 2 + hf) * 2, 2), T + 1, 16 * hf, 16 * hf + 32))
        if j == 0:
            a('v_add_u32 v%d, 1280, v61' % (T + 1))
    for j in range(2):
        a('s_lshl_b32 s%d, s%d, 16' % (26 + j, 26 + j))
        a('s_lshl_b32 s%d, s%d, 16' % (28 + j, 28 + j))
    CE, CO = 8, 10
    for j in range(2):
        a('v_mov_b32 v%d, s%d' % (T + 2 + j, 28 + j))
    for j in range(2):
        a('v_subrev_f32 v%d, s%d, v%d' % (CE + j, 26 + j, T + 2 + j))
        a('v_sub_f32 v%d, -v%d, s%d' .replace('v_sub_f32', 'v_sub_f32_e64') % (CO + j, T + 2 + j, 26 + j))
    for j in range(2):
        a('v_mul_f32 v%d, %s, v%d' % (CE + j, fl(2.0 ** -20), CE + j))
        a('v_mul_f32 v%d, %s, v%d' % (CO + j, fl(2.0 ** -20), CO + j))
    D1 = 72
    for j in range(2):
        a('s_waitcnt lgkmcnt(%d)' % (2 - 2 * j))
        for hf in range(2):
            for ro in range(2):
                d = D1 + ((j * 2 + hf) * 2 + ro) * 4
                a('v_mfma_f32_16x16x16_bf16 %s, %s, %s, 0' % (vr(d, 4), vr(AF + (j * 2 + hf) * 2, 2), vr(B1 + ro * 2, 2)))
    P = 104
    T2 = 120
    for j in range(2):
        for hf in range(2):
            dre = D1 + ((j * 2 + hf) * 2) * 4
            dim = dre + 4
            for r in range(4):
                cmul_tw(a, dre + r, dim + r, TC + hf * 4 + r, TS + hf * 4 + r, T2 + 2 * r, T2 + 2 * r + 1, +1)
            for r in range(4):
                a('v_cvt_pk_bf16_f32 v%d, v%d, v%d' % (P + (j * 2 + hf) * 4 + r, T2 + 2 * r, T2 + 2 * r + 1))
    D3 = 72
    for hf in range(2):
        for j in range(2):
            for t in range(2):
                d = D3 + (j * 2 + t) * 4
                c = '0' if hf == 0 else vr(d, 4)
                a('v_mfma_f32_16x16x32_bf16 %s, %s, %s, %s' % (vr(d, 4), vr(P + (j * 2 + hf) * 4, 4), vr(B3 + t * 8 + hf * 4, 4), c))
    X = [[D3 + j * 8 + k for k in range(8)] for j in range(2)]
    a('v_mov_b32 v12, %s' % fl(2.0 ** -19))
    for j in range(2):
        for k in range(8):
            a('v_fma_f32 v%d, v%d, v12, v%d' % (X[j][k], X[j][k], (CE if k % 2 == 0 else CO) + j))
    st()
    a('s_waitcnt vmcnt(%d)' % npf)
    st()
    HP = [[88 + j * 4 + q for q in range(4)] for j in range(2)]
    for j in range(2):
        for q in range(4):
            k = 2 * q
            a('v_cvt_pk_bf16_f32 v%d, v%d, v%d' % (T2, X[j][k], X[j][k + 1]))
            xv = XR + j * 4 + q
            a('v_lshlrev_b32 v%d, 16, v%d' % (T2 + 1, T2))
            a('v_and_b32 v%d, 0xffff0000, v%d' % (T2 + 2, T2))
            a('v_lshlrev_b32 v%d, 16, v%d' % (T2 + 3, xv))
            a('v_and_b32 v%d, 0xffff0000, v%d' % (T2 + 4, xv))
            a('v_add_f32 v%d, v%d, v%d' % (T2 + 1, T2 + 1, T2 + 3))
            a('v_add_f32 v%d, v%d, v%d' % (T2 + 2, T2 + 2, T2 + 4))
            a('v_cvt_pk_bf16_f32 v%d, v%d, v%d' % (HP[j][q], T2 + 1, T2 + 2))
            a('v_lshlrev_b32 v%d, 16, v%d' % (X[j][k], HP[j][q]))
            a('v_and_b32 v%d, 0xffff0000, v%d' % (X[j][k + 1], HP[j][q]))
    for j in range(2):
        for t in range(2):
            a('buffer_store_dwordx2 %s, v5, s[32:35], s%d offen offset:%d' % (vr(HP[j][2 * t], 2), 15 + j, t * 512))
    PK = [[104 + j * 4 + q for q in range(4)] for j in range(2)]
    ln_rows(a, X, 112, 40, 2, out_pk=PK, keep_f32=True)
    ln_rows(a, X, 112, 40, 2, out_pk=PK)
    st()
    for j in range(2):
        for t in range(2):
            a('ds_write_b64 v62, %s offset:%d' % (vr(PK[j][2 * t], 2), j * 1088 + t * 512))
    a('s_waitcnt lgkmcnt(0)')
    a('s_barrier')
    O = 72
    for half in range(2):
        for q in range(2):
            a('ds_read_b64_tr_b16 %s, v63 offset:%d' % (vr(O + half * 4 + q * 2, 2), q * 4 * 1088 + half * 128))
    a('s_lshl_b32 s30, s12, 3')
    a('s_add_u32 s30, s30, s13')
    a('s_lshl_b32 s30, s30, 13')
    a('s_lshl_b32 s31, s3, 11')
    a('s_add_u32 s30, s30, s31')
    a('v_lshlrev_b32 v4, 4, v1')
    for half in range(2):
        a('s_waitcnt lgkmcnt(%d)' % (2 - 2 * half))
        a('buffer_store_dwordx4 %s, v4, s[36:39], s30 offen offset:%d' % (vr(O + half * 4, 4), half * 1024))
    st()
    st.flush()
    a.label('K3_END')
    a('s_endpgm')
    return dict(name=L, asm=a, grid=256, lds=10240 + 8 * 1088, vgpr=132, sgpr=56)

class VM:
    def __init__(self, a):
        self.a = a
        self.q = []
        self.last = None

    def issue(self, text, tag):
        self.a(text)
        self.q.append(tag)
        assert len(self.q) <= 63 or True

    def wait(self, tags):
        idx = max([i for i, t in enumerate(self.q) if t in tags], default=-1)
        if idx < 0:
            return
        n = len(self.q) - 1 - idx
        assert n <= 63, n
        self.a('s_waitcnt vmcnt(%d)' % n)
        self.q = self.q[idx + 1:]


def gen_k4(DEPTH=8):
    a = Asm()
    L = 'k4_kernel'
    a.label(L)
    a('s_cmp_ge_u32 s2, 232')
    a('s_cbranch_scc1 K4_END')
    st = Stamper(a, 4)
    st()
    a('s_load_dwordx4 s[4:7], s[0:1], 32')
    a('s_load_dwordx2 s[12:13], s[0:1], 80')
    if pf_for(4):
        a('s_load_dwordx2 s[46:47], s[0:1], 48')
    a('v_and_b32 v1, 63, v0')
    a('v_lshrrev_b32 v2, 6, v0')
    a('s_and_b32 s14, s2, 7')
    a('s_lshr_b32 s15, s2, 3')
    a('v_readfirstlane_b32 s3, v2')
    a('s_lshr_b32 s16, s14, 1')
    a('s_mul_i32 s16, s16, 29')
    a('s_add_u32 s16, s16, s15')
    a('s_and_b32 s14, s14, 1')
    a('s_lshl_b32 s14, s14, 2')
    a('s_and_b32 s15, s16, 3')
    a('s_add_u32 s14, s14, s15')
    a('s_lshr_b32 s15, s16, 2')
    a('v_lshrrev_b32 v2, 4, v1')
    a('v_and_b32 v3, 15, v1')
    for m in range(3):
        a('v_add_u32 v10, %d, v1' % (64 * m))
        a('v_mul_u32_u24 v11, 171, v10')
        a('v_lshrrev_b32 v11, 10, v11')
        a('v_mul_u32_u24 v12, 6, v11')
        a('v_sub_u32 v12, v10, v12')
        a('v_bfe_u32 v13, v11, 2, 2')
        a('v_lshlrev_b32 v13, 8, v13')
        a('v_lshrrev_b32 v14, 4, v11')
        a('v_lshl_add_u32 v13, v14, 7, v13')
        a('v_and_b32 v14, 3, v11')
        a('v_lshl_add_u32 v13, v14, 5, v13')
        a('v_mul_u32_u24 v13, 2752, v13')
        a('v_lshl_add_u32 v%d, v12, 4, v13' % (4 + m))
        if m:
            a('v_subrev_u32 v%d, %d, v%d' % (4 + m, 1024 * m, 4 + m))
    a('v_lshlrev_b32 v7, 13, v2')
    a('v_lshl_add_u32 v7, v3, 4, v7')
    a('v_lshrrev_b32 v10, 2, v3')
    a('v_lshl_add_u32 v10, v2, 2, v10')
    a('v_mul_u32_u24 v10, 96, v10')
    a('v_and_b32 v11, 3, v1')
    a('v_lshl_add_u32 v8, v11, 3, v10')
    a('s_mul_i32 s17, s3, %d' % (DEPTH * 3072))
    a('v_add_u32 v8, s17, v8')
    a('s_mul_i32 s18, s3, %d' % (8 * 2752))
    a('s_mul_i32 s19, s15, 96')
    a('s_add_u32 s18, s18, s19')
    a('s_lshl_b32 s19, s3, 19')
    a('s_lshl_b32 s20, s14, 10')
    a('s_add_u32 s19, s19, s20')
    a('s_mul_i32 s21, s15, 96')
    a('v_lshlrev_b32 v9, 3, v2')
    a('s_waitcnt lgkmcnt(0)')
    srd(a, 8, 4, 2048 * 2752)
    srd(a, 24, 12, SZ_L2, WS_L2)
    srd(a, 28, 6, 2752)
    srd(a, 32, 12, SZ_U, WS_U)
    st()
    vm = VM(a)
    BI = 10
    ACC = 16
    AF = 64
    BR = 88

    ROT = os.environ.get('ROT', '1') == '1'
    if ROT:
        a('s_and_b32 s42, s15, 7')

    def stage(k):
        slot = k % DEPTH
        a('s_add_u32 m0, s17, %d' % (slot * 3072))
        if ROT:
            a('s_add_u32 s43, s42, %d' % (k >> 1))
            a('s_and_b32 s43, s43, 7')
            a('s_mul_i32 s22, s43, 2752')
            a('s_lshl_b32 s23, s43, 16')
            a('s_add_u32 s22, s22, s18')
            a('s_add_u32 s23, s23, s19')
            if k & 1:
                a('s_add_u32 s22, s22, %d' % (1024 * 2752))
                a('s_add_u32 s23, s23, 32768')
        else:
            a('s_add_u32 s22, s18, %d' % (((k & 1) * 1024 + (k >> 1)) * 2752))
            a('s_add_u32 s23, s19, %d' % (k * 32768))
        for m in range(3):
            vm.issue('buffer_load_dwordx4 v%d, s[8:11], s22 offen offset:%d lds' % (4 + m, 1024 * m), ('A', k))
        for nt in range(4):
            vm.issue('buffer_load_dwordx4 %s, v7, s[24:27], s23 offen offset:%d' % (vr(BR + slot * 16 + nt * 4, 4), nt * 256), ('B', k))

    def aread(k):
        slot = k % DEPTH
        for mt in range(3):
            for q in range(2):
                a('ds_read_b64_tr_b16 %s, v8 offset:%d' % (vr(AF + (k & 1) * 12 + mt * 4 + q * 2, 2), slot * 3072 + q * 16 * 96 + mt * 32))

    for k in range(DEPTH):
        stage(k)
    for mt in range(3):
        vm.issue('buffer_load_dwordx2 %s, v9, s[28:31], s21 offen offset:%d' % (vr(BI + 2 * mt, 2), 32 * mt), ('bias',))
    NK = 16
    st()
    vm.wait({('A', 0)})
    st()
    aread(0)
    for k in range(NK):
        if k + 1 < NK:
            vm.wait({('A', k + 1), ('B', k)})
            aread(k + 1)
            a('s_waitcnt lgkmcnt(6)')
        else:
            vm.wait({('B', k)})
            a('s_waitcnt lgkmcnt(0)')
        slot = k % DEPTH
        for mt in range(3):
            for nt in range(4):
                d = ACC + (mt * 4 + nt) * 4
                c = '0' if k == 0 else vr(d, 4)
                a('v_mfma_f32_16x16x32_bf16 %s, %s, %s, %s' % (vr(d, 4), vr(AF + (k & 1) * 12 + mt * 4, 4), vr(BR + slot * 16 + nt * 4, 4), c))
        if k + DEPTH < NK:
            stage(k + DEPTH)
        if k in (0, 3, 7, 11, 15):
            st()
    if pf_for(4):
        prefetch(a, 'b', 46, 48, 52, 1, 9, 8, issue=lambda t: vm.issue(t, ('pf',)), nwaves=116)
    a('s_barrier')
    a('v_lshlrev_b32 v4, 4, v1')
    a('s_mul_i32 s22, s3, 3072')
    a('v_add_u32 v5, s22, v4')
    for nt in range(4):
        for mt in range(3):
            a('ds_write_b128 v5, %s offset:%d' % (vr(ACC + (mt * 4 + nt) * 4, 4), nt * 12288 + mt * 1024))
    a('s_mul_i32 s22, s3, 12288')
    a('v_add_u32 v6, s22, v4')
    a('s_waitcnt lgkmcnt(0)')
    a('s_barrier')
    st()
    R = 88
    for src in range(4):
        for mt in range(3):
            a('ds_read_b128 %s, v6 offset:%d' % (vr(R + (src * 3 + mt) * 4, 4), src * 3072 + mt * 1024))
    a('s_lshl_b32 s22, s14, 2')
    a('s_add_u32 s22, s22, s3')
    a('s_mul_i32 s22, s22, %d' % (43 * 1024))
    a('s_mul_i32 s23, s15, 3')
    for mt in range(3):
        a('s_add_u32 s36, s23, %d' % mt)
        a('s_lshr_b32 s37, s36, 1')
        a('s_lshl_b32 s37, s37, 10')
        a('s_and_b32 s36, s36, 1')
        a('s_lshl_b32 s36, s36, 3')
        a('s_add_u32 s37, s37, s36')
        a('s_add_u32 s%d, s37, s22' % (38 + mt))
    a('s_waitcnt lgkmcnt(0)')
    vm.wait({('bias',)})
    S = 16
    for mt in range(3):
        for r in range(4):
            x0, x1, x2, x3 = [R + (src * 3 + mt) * 4 + r for src in range(4)]
            a('v_add_f32 v%d, v%d, v%d' % (x0, x0, x1))
            a('v_add_f32 v%d, v%d, v%d' % (x2, x2, x3))
            a('v_add_f32 v%d, v%d, v%d' % (S + mt * 4 + r, x0, x2))
    T = 40
    C1 = -2.0 * 1.4426950408889634 * 0.7978845608028654
    C2 = C1 * 0.044715
    a('v_mov_b32 v60, %s' % fl(C1))
    for mt in range(3):
        u = [S + mt * 4 + r for r in range(4)]
        a('v_cvt_pk_bf16_f32 v%d, v%d, v%d' % (T, u[0], u[1]))
        a('v_cvt_pk_bf16_f32 v%d, v%d, v%d' % (T + 1, u[2], u[3]))
        for h in range(2):
            a('v_lshlrev_b32 v%d, 16, v%d' % (u[2 * h], T + h))
            a('v_and_b32 v%d, 0xffff0000, v%d' % (u[2 * h + 1], T + h))
            a('v_lshlrev_b32 v%d, 16, v%d' % (T + 2, BI + 2 * mt + h))
            a('v_and_b32 v%d, 0xffff0000, v%d' % (T + 3, BI + 2 * mt + h))
            a('v_add_f32 v%d, v%d, v%d' % (u[2 * h], u[2 * h], T + 2))
            a('v_add_f32 v%d, v%d, v%d' % (u[2 * h + 1], u[2 * h + 1], T + 3))
        a('v_cvt_pk_bf16_f32 v%d, v%d, v%d' % (T, u[0], u[1]))
        a('v_cvt_pk_bf16_f32 v%d, v%d, v%d' % (T + 1, u[2], u[3]))
        for h in range(2):
            a('v_lshlrev_b32 v%d, 16, v%d' % (u[2 * h], T + h))
            a('v_and_b32 v%d, 0xffff0000, v%d' % (u[2 * h + 1], T + h))
        for r in range(4):
            a('v_mul_f32 v%d, v%d, v%d' % (T + 4 + r, u[r], u[r]))
        for r in range(4):
            a('v_fmamk_f32 v%d, v%d, %s, v60' % (T + 4 + r, T + 4 + r, fl(C2)))
        for r in range(4):
            a('v_mul_f32 v%d, v%d, v%d' % (T + 4 + r, T + 4 + r, u[r]))
        for r in range(4):
            a('v_exp_f32 v%d, v%d' % (T + 4 + r, T + 4 + r))
        for r in range(4):
            a('v_add_f32 v%d, 1.0, v%d' % (T + 4 + r, T + 4 + r))
        for r in range(4):
            a('v_rcp_f32 v%d, v%d' % (T + 4 + r, T + 4 + r))
        for r in range(4):
            a('v_mul_f32 v%d, v%d, v%d' % (u[r], u[r], T + 4 + r))
        o = 48 + 2 * mt
        a('v_cvt_pk_bf16_f32 v%d, v%d, v%d' % (o, u[0], u[1]))
        a('v_cvt_pk_bf16_f32 v%d, v%d, v%d' % (o + 1, u[2], u[3]))
        if mt == 2:
            a('s_cmp_eq_u32 s15, 28')
            a('s_cbranch_scc1 K4_FL')
        a('buffer_store_dwordx2 %s, v4, s[32:35], s%d offen' % (vr(o, 2), 38 + mt))
    a.label('K4_FL')
    st.flush()
    a.label('K4_END')
    a('s_endpgm')
    return dict(name=L, asm=a, grid=232, lds=4 * DEPTH * 3072, vgpr=88 + DEPTH * 16, sgpr=56)


def gen_k5(DEPTH=7):
    a = Asm()
    L = NAME + '_kernel'
    a.label(L)
    a('s_cmp_ge_u32 s2, 256')
    a('s_cbranch_scc1 K5_END')
    st = Stamper(a, 5)
    st()
    a('s_load_dwordx4 s[4:7], s[0:1], 48')
    a('s_load_dwordx2 s[12:13], s[0:1], 80')
    a('s_load_dwordx2 s[40:41], s[0:1], 64')
    a('v_and_b32 v1, 63, v0')
    a('v_lshrrev_b32 v2, 6, v0')
    a('s_and_b32 s14, s2, 7')
    a('s_lshr_b32 s15, s2, 3')
    a('v_readfirstlane_b32 s3, v2')
    a('s_and_b32 s16, s14, 1')
    a('s_lshl_b32 s16, s16, 2')
    a('s_and_b32 s17, s15, 3')
    a('s_add_u32 s16, s16, s17')
    a('s_lshr_b32 s14, s14, 1')
    a('s_lshl_b32 s14, s14, 3')
    a('s_lshr_b32 s15, s15, 2')
    a('s_add_u32 s15, s15, s14')
    a('v_lshrrev_b32 v2, 4, v1')
    a('v_and_b32 v3, 15, v1')
    a('v_lshrrev_b32 v10, 3, v1')
    a('v_bfe_u32 v11, v10, 1, 2')
    a('v_lshlrev_b32 v11, 1, v11')
    a('v_and_b32 v12, 7, v1')
    a('v_xor_b32 v11, v11, v12')
    a('v_lshlrev_b32 v11, 4, v11')
    a('v_lshl_add_u32 v4, v10, 12, v11')
    for m in range(1, 4):
        a('v_add_u32 v%d, %d, v4' % (4 + m, m * (32768 - 1024)))
    a('v_lshlrev_b32 v8, 4, v1')
    a('v_lshrrev_b32 v10, 2, v3')
    a('v_lshl_add_u32 v11, v2, 2, v10')
    a('v_bfe_u32 v9, v11, 1, 2')
    a('v_lshlrev_b32 v11, 7, v11')
    a('v_lshl_add_u32 v11, v9, 5, v11')
    a('v_and_b32 v10, 3, v1')
    a('v_lshl_add_u32 v11, v10, 3, v11')
    a('s_mul_i32 s18, s3, %d' % (DEPTH * 4096))
    a('v_add_u32 v12, s18, v11')
    for nt in range(1, 4):
        a('v_xor_b32 v%d, %d, v12' % (12 + nt, nt * 32))
    a('s_mul_i32 s19, s3, %d' % (11 * 32 * 4096))
    a('s_lshl_b32 s20, s15, 7')
    a('s_add_u32 s19, s19, s20')
    a('s_mul_i32 s20, s16, %d' % (4 * 43 * 1024))
    a('s_mul_i32 s21, s3, %d' % (11 * 1024))
    a('s_add_u32 s20, s20, s21')
    a('v_lshlrev_b32 v9, 10, v3')
    a('v_lshl_add_u32 v9, v2, 5, v9')
    a('s_lshl_b32 s21, s15, 6')
    a('s_lshl_b32 s22, s3, 4')
    a('s_add_u32 s21, s21, s22')
    a('s_lshl_b32 s22, s21, 10')
    a('s_lshl_b32 s23, s16, 7')
    a('s_add_u32 s22, s22, s23')
    a('s_lshl_b32 s21, s21, 1')
    a('v_lshlrev_b32 v10, 1, v3')
    a('s_waitcnt lgkmcnt(0)')
    srd(a, 8, 4, 1376 * 4096)
    srd(a, 24, 12, SZ_U, WS_U)
    srd(a, 28, 6, 4096)
    srd(a, 32, 12, SZ_H, WS_H)
    srd(a, 36, 40, 2048 * 1024)
    st()
    vm = VM(a)
    ACC = 24
    BF = 88
    AR = 120
    HR = 16
    NK = 11

    ROT = os.environ.get('ROT', '1') == '1'
    if ROT:
        a('s_and_b32 s43, s15, 7')
        a('s_mul_i32 s43, s43, 11')
        a('s_lshr_b32 s43, s43, 3')
        a('s_cmp_eq_u32 s3, 3')
        a('s_cselect_b32 s44, 10, 99')

    def stage(k):
        slot = k % DEPTH
        a('s_add_u32 m0, s18, %d' % (slot * 4096))
        if ROT:
            if k:
                a('s_add_u32 s43, s43, 1')
                a('s_cmp_eq_u32 s43, 11')
                a('s_cselect_b32 s43, 0, s43')
            a('s_lshl_b32 s23, s43, 17')
            a('s_add_u32 s23, s23, s19')
            a('s_lshl_b32 s42, s43, 10')
            a('s_add_u32 s42, s42, s20')
            a('s_cmp_eq_u32 s43, s44')
            a('s_cselect_b32 s42, 0x7000000, s42')
        else:
            a('s_add_u32 s23, s19, %d' % (k * 32 * 4096))
            a('s_add_u32 s42, s20, %d' % (k * 1024))
            if k == 10:
                a('s_cmp_eq_u32 s3, 3')
                a('s_cselect_b32 s42, 0x7000000, s42')
        for m in range(4):
            vm.issue('buffer_load_dwordx4 v%d, s[8:11], s23 offen offset:%d lds' % (4 + m, 1024 * m), ('B', k))
        for mt in range(4):
            if mt:
                a('s_add_u32 s42, s42, %d' % (43 * 1024))
            vm.issue('buffer_load_dwordx4 %s, v8, s[24:27], s42 offen' % vr(AR + slot * 16 + mt * 4, 4), ('A', k))

    def bread(k):
        slot = k % DEPTH
        for nt in range(4):
            for q in range(2):
                a('ds_read_b64_tr_b16 %s, v%d offset:%d' % (vr(BF + (k & 1) * 16 + nt * 4 + q * 2, 2), 12 + nt, slot * 4096 + q * 2048))

    for k in range(DEPTH):
        stage(k)
    vm.issue('buffer_load_dwordx4 %s, v9, s[32:35], s22 offen' % vr(HR, 4), ('h',))
    vm.issue('buffer_load_dwordx4 %s, v9, s[32:35], s22 offen offset:16' % vr(HR + 4, 4), ('h',))
    vm.issue('buffer_load_ushort v11, v10, s[28:31], s21 offen', ('h',))
    st()
    vm.wait({('B', 0)})
    st()
    bread(0)
    for k in range(NK):
        if k + 1 < NK:
            vm.wait({('B', k + 1), ('A', k)})
            bread(k + 1)
            a('s_waitcnt lgkmcnt(8)')
        else:
            vm.wait({('A', k)})
            a('s_waitcnt lgkmcnt(0)')
        slot = k % DEPTH
        for mt in range(4):
            for nt in range(4):
                d = ACC + (mt * 4 + nt) * 4
                c = '0' if k == 0 else vr(d, 4)
                a('v_mfma_f32_16x16x32_bf16 %s, %s, %s, %s' % (vr(d, 4), vr(AR + slot * 16 + mt * 4, 4), vr(BF + (k & 1) * 16 + nt * 4, 4), c))
        if k + DEPTH < NK:
            stage(k + DEPTH)
        if k in (0, 3, 7, 10):
            st()
    a('s_barrier')
    a('s_lshl_b32 s23, s3, 14')
    a('v_add_u32 v5, s23, v8')
    for mt in range(4):
        for nt in range(4):
            a('ds_write_b128 v5, %s offset:%d' % (vr(ACC + (mt * 4 + nt) * 4, 4), (mt * 4 + nt) * 1024))
    a('v_lshlrev_b32 v6, 12, v2')
    a('v_lshl_add_u32 v6, v3, 4, v6')
    a('s_lshl_b32 s23, s3, 10')
    a('v_add_u32 v6, s23, v6')
    a('s_waitcnt lgkmcnt(0)')
    a('s_barrier')
    st()
    R = 88
    for src in range(4):
        for gg in range(4):
            a('ds_read_b128 %s, v6 offset:%d' % (vr(R + (src * 4 + gg) * 4, 4), src * 16384 + gg * 256))
    a('s_waitcnt lgkmcnt(0)')
    vm.wait({('h',)})
    S = 24
    for q in range(16):
        x0, x1, x2, x3 = [R + src * 16 + q for src in range(4)]
        a('v_add_f32 v%d, v%d, v%d' % (x0, x0, x1))
        a('v_add_f32 v%d, v%d, v%d' % (x2, x2, x3))
        a('v_add_f32 v%d, v%d, v%d' % (S + q, x0, x2))
    a('v_lshlrev_b32 v11, 16, v11')
    T = 48
    O = 40
    for p in range(8):
        u0, u1 = S + 2 * p, S + 2 * p + 1
        a('v_cvt_pk_bf16_f32 v%d, v%d, v%d' % (T, u0, u1))
        a('v_lshlrev_b32 v%d, 16, v%d' % (u0, T))
        a('v_and_b32 v%d, 0xffff0000, v%d' % (u1, T))
        a('v_add_f32 v%d, v%d, v11' % (u0, u0))
        a('v_add_f32 v%d, v%d, v11' % (u1, u1))
        a('v_cvt_pk_bf16_f32 v%d, v%d, v%d' % (T, u0, u1))
        a('v_lshlrev_b32 v%d, 16, v%d' % (u0, T))
        a('v_and_b32 v%d, 0xffff0000, v%d' % (u1, T))
        a('v_lshlrev_b32 v%d, 16, v%d' % (T + 1, HR + p))
        a('v_and_b32 v%d, 0xffff0000, v%d' % (T + 2, HR + p))
        a('v_add_f32 v%d, v%d, v%d' % (u0, u0, T + 1))
        a('v_add_f32 v%d, v%d, v%d' % (u1, u1, T + 2))
        a('v_cvt_pk_bf16_f32 v%d, v%d, v%d' % (O + p, u0, u1))
    a('buffer_store_dwordx4 %s, v9, s[36:39], s22 offen' % vr(O, 4))
    a('buffer_store_dwordx4 %s, v9, s[36:39], s22 offen offset:16' % vr(O + 4, 4))
    st.flush()
    a.label('K5_END')
    a('s_endpgm')
    return dict(name=L, asm=a, grid=256, lds=max(4 * DEPTH * 4096, 65536), vgpr=120 + DEPTH * 16, sgpr=48)


def emit(kernels, path):
    out = []
    for k in kernels:
        out.append('; @launch kernel=%s grid=(%d,1,1) block=(256,1,1) lds=%d' % (k['name'], k['grid'], k['lds']))
    out.append('.amdgcn_target "amdgcn-amd-amdhsa--gfx950"')
    out.append('.text')
    done = set()
    for k in kernels:
        if k['name'] in done:
            continue
        done.add(k['name'])
        a = k['asm']
        n = a.fix_hazards()
        errs = a.check_waits(k['name'])
        for e in errs:
            print('WAITCHK', e)
        print('%s: %d instrs, %d auto wait states' % (k['name'], len(a.ins), n))
        out.append('.globl %s' % k['name'])
        out.append('.p2align 8')
        out.append('.type %s,@function' % k['name'])
        out.append(a.text())
    out.append('CODE_END:')
    out.append('.section .rodata,"a"')
    done = set()
    for k in kernels:
        if k['name'] in done:
            continue
        done.add(k['name'])
        if STAMPS:
            k['vgpr'] = 256; k['sgpr'] = 102
        acc = (k['vgpr'] + 3) // 4 * 4
        out.append('.p2align 6')
        out.append('.amdhsa_kernel %s' % k['name'])
        out.append('  .amdhsa_next_free_vgpr %d' % (k.get('total_vgpr', k['vgpr'])))
        out.append('  .amdhsa_next_free_sgpr %d' % k['sgpr'])
        out.append('  .amdhsa_accum_offset %d' % acc)
        out.append('  .amdhsa_group_segment_fixed_size 0')
        out.append('  .amdhsa_kernarg_size 88')
        out.append('  .amdhsa_user_sgpr_count 2')
        out.append('  .amdhsa_user_sgpr_kernarg_segment_ptr 1')
        out.append('  .amdhsa_system_sgpr_workgroup_id_x 1')
        out.append('.end_amdhsa_kernel')
    open(path, 'w').write('\n'.join(out) + '\n')


def gen_dummy(i):
    a = Asm()
    L = 'dummy%d_kernel' % i
    a.label(L)
    for q in range(int(os.environ.get('DUMMYN', '0'))):
        a('v_mov_b32 v1, 0x12345678')
    a('s_endpgm')
    return dict(name=L, asm=a, grid=256, lds=0, vgpr=8, sgpr=16)


if __name__ == '__main__':
    import os
    which = sys.argv[1] if len(sys.argv) > 1 else 'all'
    STAMPS = which in ('stamp', 'rt', 'dbg')
    DBG_MODE = which == 'dbg'
    if which in ('rt', 'dbg'):
        STAMP_OP = 's_memrealtime'
        RT_ONLY = True
    path = sys.argv[2] if len(sys.argv) > 2 else 'out.s'
    ks = [gen_k1(), gen_k2(), gen_k3(), gen_k4(), gen_k5()]
    nd = int(os.environ.get('DUMMY', '0'))
    for i in range(nd):
        ks.insert(2 + (2 * i if os.environ.get('DUMMYADJ', '0') == '0' else 0), gen_dummy(0))
    emit(ks, path)
```
